```python
import torch

def _softmax(x, axis=-1):
    return torch.softmax(x, dim=axis)
def _gelu(x):
    return torch.nn.functional.gelu(x, approximate="tanh")
def _silu(x):
    return torch.nn.functional.silu(x)
def _sigmoid(x):
    return torch.sigmoid(x)
def _layernorm(x, axis=-1, eps=1e-5):
    m = x.mean(dim=axis, keepdim=True)
    v = x.var(dim=axis, keepdim=True, unbiased=False)
    return (x - m) / torch.sqrt(v + eps)
def _scatter_add(tgt, idx, src, axis=0):
    return tgt.clone().index_add_(axis, idx, src)
def _segment_sum(src, seg, n):
    out = torch.zeros((n,) + src.shape[1:], dtype=src.dtype)
    return out.index_add_(0, seg, src)
def _pad(x, pw):
    flat = tuple(v for pair in reversed(pw) for v in pair)
    return torch.nn.functional.pad(x, flat)

kernel_name = 'standalone__mha_softmax__near_ridge'

def setup_inputs():

    _w = (lambda a: (lambda t: t.to(torch.bfloat16) if t.is_floating_point() else t)(torch.as_tensor(a)))
    B, H, Sq, Sk, D = 16, 16, 736, 512, 256
    return {
        "q": _w((lambda *s: torch.randn(*s, dtype=torch.bfloat16) * 0.8)(B, H, Sq, D)),
        "k": _w((lambda *s: torch.randn(*s, dtype=torch.bfloat16) * 0.8)(B, H, Sk, D)),
        "v": _w((lambda *s: torch.randn(*s, dtype=torch.bfloat16) * 0.05)(B, H, Sk, D)),
    }

def reference(q, k, v):
    scale = q.shape[-1] ** -0.5
    scores = torch.einsum("bhqd,bhkd->bhqk", q, k) * scale
    p = _softmax(scores, axis=-1)
    return torch.einsum("bhqk,bhkd->bhqd", p, v)
```

```python
import re


def R(kind, lo, n=1):
    return [(kind, lo + i) for i in range(n)]


def rs(kind, lo, n=1):
    if n == 1:
        return f"{kind}{lo}"
    return f"{kind}[{lo}:{lo + n - 1}]"


class Ins:
    __slots__ = ("text", "rd", "wr", "kind", "cost", "tag", "passes", "srcc", "note")

    def __init__(self, text, rd=(), wr=(), kind="valu", cost=4, tag=None, passes=0, srcc=()):
        self.text = text
        self.rd = list(rd)
        self.wr = list(wr)
        self.kind = kind
        self.cost = cost
        self.tag = tag
        self.passes = passes
        self.srcc = list(srcc)
        self.note = None

    def __repr__(self):
        return self.text


def mfma32(d, a, b, c=None):
    dk, dl = d
    ak, al = a
    bk, bl = b
    if c is None:
        cs = "0"
        crd = []
    else:
        ck, cl = c
        cs = rs(ck, cl, 16)
        crd = R(ck, cl, 16)
    t = f"v_mfma_f32_32x32x16_bf16 {rs(dk, dl, 16)}, {rs(ak, al, 4)}, {rs(bk, bl, 4)}, {cs}"
    return Ins(t, rd=R(ak, al, 4) + R(bk, bl, 4) + crd, wr=R(dk, dl, 16), kind="mfma", cost=8, passes=8, srcc=crd)


def valu(op, d, *srcs, cost=4, kind="valu", extra="", dn=1):
    rd = []
    ss = []
    for s in srcs:
        if isinstance(s, int):
            ss.append(f"v{s}")
            rd.append(("v", s))
        elif isinstance(s, tuple):
            k, n = s
            if k == "-v":
                ss.append(f"-v{n}")
                rd.append(("v", n))
            elif k == "a":
                ss.append(f"a{n}")
                rd.append(("a", n))
            elif k == "v2":
                ss.append(f"v[{n}:{n+1}]")
                rd += R("v", n, 2)
            else:
                raise ValueError(s)
        else:
            ss.append(s)
            m = re.fullmatch(r"s(\d+)", s)
            if m:
                rd.append(("s", int(m.group(1))))
            if s == "vcc":
                rd.append(("s", "vcc"))
    if isinstance(d, int):
        if dn == 1:
            ds = f"v{d}"
            wr = [("v", d)]
        else:
            ds = rs("v", d, dn)
            wr = R("v", d, dn)
    elif isinstance(d, tuple):
        k, n = d
        ds = f"{k}{n}"
        wr = [(k, n)]
    else:
        ds = d
        wr = []
        m = re.fullmatch(r"s(\d+)", d)
        if m:
            wr = [("s", int(m.group(1)))]
        if d == "vcc":
            wr = [("s", "vcc")]
    t = f"{op} {ds}, " + ", ".join(ss) + (" " + extra if extra else "")
    return Ins(t, rd=rd, wr=wr, kind=kind, cost=cost)


def trans(op, d, s):
    return valu(op, d, s, cost=8, kind="trans")


def salu(text, rd=(), wr=()):
    return Ins(text, rd=[("s", r) for r in rd], wr=[("s", r) for r in wr], kind="salu", cost=4)


def ds_read(op, dk, dl, n, addr, off):
    t = f"{op} {rs(dk, dl, n)}, v{addr}" + (f" offset:{off}" if off else "")
    return Ins(t, rd=[("v", addr)], wr=R(dk, dl, n), kind="ds_rd", cost=4)


def ds_write(op, addr, sk, sl, n, off):
    t = f"{op} v{addr}, {rs(sk, sl, n)}" + (f" offset:{off}" if off else "")
    return Ins(t, rd=[("v", addr)] + R(sk, sl, n), wr=[], kind="ds_wr", cost=8)


def dma(voff, srd, soff, imm, tag=None, flags=""):
    t = f"buffer_load_dwordx4 v{voff}, s[{srd}:{srd+3}], {soff} offen" + (f" offset:{imm}" if imm else "") + flags + " lds"
    return Ins(t, rd=[("v", voff), ("s", "m0")], wr=[], kind="dma", cost=16, tag=tag)


def bload(dk, dl, n, voff, srd, soff, imm, tag=None, flags=""):
    op = {1: "buffer_load_dword", 2: "buffer_load_dwordx2", 4: "buffer_load_dwordx4"}[n]
    t = f"{op} {rs(dk, dl, n)}, v{voff}, s[{srd}:{srd+3}], {soff} offen" + (f" offset:{imm}" if imm else "") + flags
    return Ins(t, rd=[("v", voff)], wr=R(dk, dl, n), kind="vmem_ld", cost=8, tag=tag)


def bstore(sk, sl, n, voff, srd, soff, imm, tag=None, flags=""):
    op = {1: "buffer_store_dword", 2: "buffer_store_dwordx2", 4: "buffer_store_dwordx4"}[n]
    t = f"{op} {rs(sk, sl, n)}, v{voff}, s[{srd}:{srd+3}], {soff} offen" + (f" offset:{imm}" if imm else "") + flags
    return Ins(t, rd=[("v", voff)] + R(sk, sl, n), wr=[], kind="vmem_st", cost=8, tag=tag)


def raw(text, kind="other", cost=4, rd=(), wr=()):
    return Ins(text, rd=rd, wr=wr, kind=kind, cost=cost)


def label(name):
    return Ins(name + ":", kind="label", cost=0)


def wait_vm(tag):
    return Ins("s_waitcnt vmcnt(?)", kind="wait_vm", cost=4, tag=tag)


def wait_lgkm0():
    return Ins("s_waitcnt lgkmcnt(0)", kind="wait_lgkm0", cost=4)


def barrier():
    return Ins("s_barrier", kind="barrier", cost=4)


def nop(n):
    return Ins(f"s_nop {n}", kind="nop", cost=4 * (n + 1))


class WaitState:
    def __init__(self):
        self.lds = []
        self.vm = []

    def clone(self):
        w = WaitState()
        w.lds = list(self.lds)
        w.vm = list(self.vm)
        return w

    def sig(self):
        return (tuple(tuple(sorted(x)) for x in self.lds), tuple((t, tuple(sorted(x))) for t, x in self.vm))


def insert_waits(seq, st):
    out = []
    for ins in seq:
        if ins.kind == "wait_vm":
            idx = -1
            for i, (t, _) in enumerate(st.vm):
                if t == ins.tag:
                    idx = i
            if idx >= 0:
                n = len(st.vm) - 1 - idx
                assert n <= 63
                out.append(Ins(f"s_waitcnt vmcnt({n})", kind="wait"))
                st.vm = st.vm[idx + 1:]
            continue
        if ins.kind == "wait_lgkm0":
            out.append(Ins("s_waitcnt lgkmcnt(0)", kind="wait"))
            st.lds = []
            continue
        touched = set(ins.rd) | set(ins.wr)
        idx = -1
        for i, w in enumerate(st.lds):
            if w & touched:
                idx = i
        if idx >= 0:
            n = len(st.lds) - 1 - idx
            assert n <= 15, "lgkmcnt overflow"
            out.append(Ins(f"s_waitcnt lgkmcnt({n})", kind="wait"))
            st.lds = st.lds[idx + 1:]
        idx = -1
        for i, (t, w) in enumerate(st.vm):
            if w & touched:
                idx = i
        if idx >= 0:
            n = len(st.vm) - 1 - idx
            assert n <= 63
            out.append(Ins(f"s_waitcnt vmcnt({n})", kind="wait"))
            st.vm = st.vm[idx + 1:]
        out.append(ins)
        if ins.kind in ("ds_rd", "ds_wr"):
            st.lds.append(set(ins.wr))
            assert len(st.lds) <= 15, "too many outstanding LDS ops"
        elif ins.kind in ("dma", "vmem_ld", "vmem_st"):
            st.vm.append((ins.tag, set(ins.wr)))
            assert len(st.vm) <= 63, "too many outstanding VMEM ops"
    return out


def states_of(ins):
    if ins.kind == "label":
        return 0
    if ins.kind == "nop":
        return int(ins.text.split()[1]) + 1
    return 1


def check_hazards(seq, name=""):
    errs = []
    pos = 0
    last_valu_wr = {}
    last_trans_wr = {}
    last_mfma_wr = {}
    last_mfma_srcc = {}
    last_valu_sgpr_wr = {}
    last_store_data = {}
    last_m0 = -100
    for ins in seq:
        k = ins.kind
        if k == "label":
            continue
        isvalu = k in ("valu", "trans")
        if k == "mfma":
            for r in ins.rd:
                if r in last_valu_wr and pos - last_valu_wr[r] - 1 < 2:
                    errs.append(f"VALU->MFMA {r} dist {pos - last_valu_wr[r] - 1}: {ins.text}")
                if r in last_mfma_wr:
                    p, ps, tup = last_mfma_wr[r]
                    d = pos - p - 1
                    if r in ins.srcc:
                        same = tuple(ins.srcc) == tup
                        need = 0 if same else ps + 2
                        if d < need:
                            errs.append(f"MFMA->MFMA srcC {r} dist {d} need {need}: {ins.text}")
                    else:
                        need = ps + 4
                        if d < need:
                            errs.append(f"MFMA->MFMA A/B {r} dist {d} need {need}: {ins.text}")
            for r in ins.wr:
                if r in last_mfma_wr and r not in ins.srcc:
                    p, ps, tup = last_mfma_wr[r]
                    d = pos - p - 1
                    if d < ps + 2:
                        errs.append(f"MFMA->MFMA WAW {r} dist {d}: {ins.text}")
        else:
            if isvalu or k in ("ds_rd", "ds_wr", "vmem_ld", "vmem_st", "dma"):
                for r in list(ins.rd) + list(ins.wr):
                    if r in last_mfma_wr:
                        p, ps, tup = last_mfma_wr[r]
                        d = pos - p - 1
                        if d < ps + 4:
                            errs.append(f"MFMA->{k} {r} dist {d} need {ps+4}: {ins.text}")
            if isvalu:
                for r in ins.wr:
                    if r in last_mfma_srcc:
                        p, ps = last_mfma_srcc[r]
                        d = pos - p - 1
                        if d < ps - 1:
                            errs.append(f"MFMA srcC WAR {r} dist {d}: {ins.text}")
                    if r in last_store_data and pos - last_store_data[r] - 1 < 2:
                        errs.append(f"store data WAR {r}: {ins.text}")
                for r in ins.rd:
                    if r in last_trans_wr and k != "trans" and pos - last_trans_wr[r] - 1 < 1:
                        errs.append(f"trans->valu {r}: {ins.text}")
                    if r[0] == "s" and r in last_valu_sgpr_wr and pos - last_valu_sgpr_wr[r] - 1 < 2:
                        errs.append(f"valu sgpr->valu {r}: {ins.text}")
                if "permlane" in ins.text:
                    for r in ins.rd:
                        if r in last_valu_wr and pos - last_valu_wr[r] - 1 < 2:
                            errs.append(f"valu->permlane {r}: {ins.text}")
                if "readfirstlane" in ins.text or "readlane" in ins.text:
                    for r in ins.rd:
                        if r in last_valu_wr and pos - last_valu_wr[r] - 1 < 1:
                            errs.append(f"valu->readlane {r}: {ins.text}")
            if k in ("vmem_ld", "vmem_st", "dma"):
                for r in ins.rd:
                    if r[0] == "s" and r in last_valu_sgpr_wr and pos - last_valu_sgpr_wr[r] - 1 < 5:
                        errs.append(f"valu sgpr->vmem {r}: {ins.text}")
                if k == "dma" and pos - last_m0 - 1 < 1:
                    errs.append(f"m0->dma: {ins.text}")
            if k == "ds_rd":
                for r in ins.wr:
                    if r in last_store_data and pos - last_store_data[r] - 1 < 1:
                        errs.append(f"store data WAR(ds) {r}: {ins.text}")
        if k == "mfma":
            tup = tuple(ins.wr)
            for r in ins.wr:
                last_mfma_wr[r] = (pos, ins.passes, tup)
                last_valu_wr.pop(r, None)
                last_trans_wr.pop(r, None)
            for r in ins.srcc:
                last_mfma_srcc[r] = (pos, ins.passes)
        elif isvalu:
            for r in ins.wr:
                last_valu_wr[r] = pos
                last_mfma_wr.pop(r, None)
                if k == "trans":
                    last_trans_wr[r] = pos
                else:
                    last_trans_wr.pop(r, None)
                if r[0] == "s":
                    last_valu_sgpr_wr[r] = pos
        elif k in ("ds_rd", "vmem_ld"):
            for r in ins.wr:
                last_valu_wr.pop(r, None)
                last_trans_wr.pop(r, None)
                last_mfma_wr.pop(r, None)
        elif k == "salu":
            for r in ins.wr:
                if r == ("s", "m0"):
                    last_m0 = pos
                last_valu_sgpr_wr.pop(r, None)
        if k == "vmem_st":
            for r in ins.rd[1:]:
                last_store_data[r] = pos
        pos += states_of(ins)
    if errs:
        for e in errs[:40]:
            print("HAZARD", name, e)
        raise RuntimeError(f"{len(errs)} hazards in {name}")


def render(seq):
    out = []
    for ins in seq:
        if ins.kind == "label":
            out.append(ins.text)
        else:
            out.append("    " + ins.text)
    return "\n".join(out)
```

```python
import sys, math, struct
sys.path.insert(0, "work")
from fw import *

NAME = "standalone__mha_softmax__near_ridge"

OA = ("v", 0)
OB = ("a", 0)
QA = 128
QB = 192
SB = [128, 160]
P0 = 192
P1 = 208
FB = 216
TT = 232
V_KA = 236
V_VA = 237
V_DMA = 238
V_NMC = [239, 240]
V_L = [241, 242]
V_LT = [243, 244]
V_TMP = 245
V_QO = 246
V_T2 = 247
V_T3 = 248

S_Q, S_K, S_V, S_O = 4, 8, 12, 16
S_W = 20
S_C = 21
S_THR = 22
S_KOFF = 23
S_VOFF = 24
S_KM0 = 25
S_VM0 = 26
S_CNT = 27
S_QA = 28
S_QB = 29
S_NC = 30

KBLK, VBLK = 1040, 1088
KSLOT = [0, 16 * KBLK]
VSLOT = [32 * KBLK, 32 * KBLK + 16 * VBLK]
LDS_BYTES = 32 * KBLK + 32 * VBLK

SCALE = (256 ** -0.5) * math.log2(math.e)


def f32bits(x):
    return struct.unpack("<I", struct.pack("<f", x))[0]


def Oacc(qb, t):
    k, lo = (OA, OB)[qb]
    return (k, lo + 16 * t)


def Qfrag(qb, ks):
    return ("a", (QA, QB)[qb] + 4 * ks)


def Sacc(buf, qb):
    return ("v", SB[buf] + 16 * qb)


def Pfrag(par, qb, s):
    if s == 0:
        return ("v", P0 + par * 8 + qb * 4)
    return ("v", P1 + qb * 4)


def k_read(f, slot):
    return [ds_read("ds_read_b128", "v", FB + 4 * (f % 4), 4, V_KA, KSLOT[slot] + 32 * f)]


def v_read(fp, slot):
    s, t = fp >> 3, fp & 7
    b = FB + 4 * (fp % 4)
    return [ds_read("ds_read_b64_tr_b16", "v", b + 2 * u, 2, V_VA, VSLOT[slot] + (2 * s + u) * 4 * VBLK + 64 * t) for u in (0, 1)]


def dma_unit(kind, j):
    slot = j & 1
    if kind == "K":
        base, blk, sl, srd, soff = S_KM0, KBLK, KSLOT, S_K, S_KOFF
    else:
        base, blk, sl, srd, soff = S_VM0, VBLK, VSLOT, S_V, S_VOFF
    rel = sl[slot] - sl[0]
    groups = []
    for q in range(4):
        g = [salu(f"s_add_u32 m0, s{base}, {rel + (blk - 512) * q}", rd=[base], wr=["m0"]),
             None,
             dma(V_DMA, srd, f"s{soff}", 512 * q, tag=(kind, j))]
        groups.append(g)
    upd = salu(f"s_add_u32 s{soff}, s{soff}, 16384", rd=[soff], wr=[soff])
    return groups, upd


def softmax_steps(buf, par):
    def elem(e):
        s = e >> 4
        qb = (e >> 3) & 1
        r = 8 * s + (e & 7)
        return s, qb, r
    steps = []
    for k in range(34):
        st = []
        if k < 32:
            s, qb, r = elem(k)
            st.append(valu("v_fma_f32", TT + k % 4, SB[buf] + 16 * qb + r, f"s{S_C}", V_NMC[qb]))
        if 0 <= k - 1 < 32:
            e = k - 1
            st.append(trans("v_exp_f32", TT + e % 4, TT + e % 4))
        if 0 <= k - 2 < 32:
            e = k - 2
            s, qb, r = elem(e)
            if r == 1:
                st.append(valu("v_add_f32", V_LT[qb], TT + (e - 1) % 4, TT + e % 4))
            elif r > 1:
                st.append(valu("v_add_f32", V_LT[qb], V_LT[qb], TT + e % 4))
            if r & 1:
                pk, pl = Pfrag(par, qb, s)
                st.append(valu("v_cvt_pk_bf16_f32", pl + ((r & 7) >> 1), TT + (e - 1) % 4, TT + e % 4))
        steps.append(st)
    return steps


def row_max(buf, qb, dst, tmp):
    b = SB[buf] + 16 * qb
    out = [valu("v_max3_f32", dst, b, b + 1, b + 2)]
    for i in range(3, 15, 2):
        out.append(valu("v_max3_f32", dst, dst, b + i, b + i + 1))
    out.append(valu("v_max_f32", dst, dst, b + 15))
    out.append(valu("v_mov_b32", tmp, dst))
    out.append(nop(1))
    out.append(Ins(f"v_permlane32_swap_b32 v{tmp}, v{dst}", rd=[("v", tmp), ("v", dst)], wr=[("v", tmp), ("v", dst)], kind="valu"))
    out.append(nop(0))
    out.append(valu("v_max_f32", dst, dst, tmp))
    return out


def flat(steps):
    out = []
    for st in steps:
        out += st
        out.append(nop(0))
    return out


def rare_path(par):
    out = [label(f"L_rare{par}")]
    out.append(nop(7))
    for qb in (0, 1):
        out += row_max(par, qb, V_T2, V_TMP)
        out.append(valu("v_mul_f32", V_T2, f"s{S_NC}", V_T2))
        out.append(valu("v_min_f32", V_T2, V_T2, V_NMC[qb]))
        out.append(valu("v_sub_f32", V_T3, V_T2, V_NMC[qb]))
        out.append(trans("v_exp_f32", V_T3, V_T3))
        out.append(valu("v_mov_b32", V_NMC[qb], V_T2))
        out.append(valu("v_mul_f32", V_L[qb], V_L[qb], V_T3))
        for r in range(128):
            if qb == 0:
                out.append(valu("v_mul_f32", r, r, V_T3))
            else:
                out.append(valu("v_accvgpr_read_b32", V_TMP, ("a", r)))
                out.append(valu("v_mul_f32", V_TMP, V_TMP, V_T3))
                out.append(valu("v_accvgpr_write_b32", ("a", r), V_TMP))
    out += flat(softmax_steps(par, par))
    out.append(nop(3))
    out.append(raw(f"s_branch L_back{par}", kind="branch"))
    return out


def iteration(i, par, do_A=True, do_B=True, next_sm=True, nextK=True, dmaK=True, dmaV=True, first=False):
    gaps = {g: [] for g in range(-1, 64)}
    mf = []
    np_ = par ^ 1
    for ks in range(16):
        for qb in (0, 1):
            F = ("v", FB + 4 * (ks % 4))
            D = Sacc(np_, qb)
            mf.append(mfma32(D, F, Qfrag(qb, ks), None if ks == 0 else D) if do_A else None)
    for fp in range(16):
        s, t = fp >> 3, fp & 7
        for qb in (0, 1):
            F = ("v", FB + 4 * (fp % 4))
            D = Oacc(qb, t)
            mf.append(mfma32(D, F, Pfrag(par, qb, s), D) if do_B else None)
    if do_A:
        for f in range(4, 16):
            gaps[2 * f - 7] += k_read(f, np_)
    if do_B:
        if do_A:
            gaps[27] += [wait_vm(("V", i)), wait_lgkm0(), barrier()]
            gaps[27] += v_read(0, par) + v_read(1, par)
            gaps[29] += v_read(2, par)
            gaps[31] += v_read(3, par)
        for fp in range(4, 16):
            gaps[32 + 2 * fp - 7] += v_read(fp, par)
        if nextK:
            gaps[59] += [wait_vm(("K", i + 2)), wait_lgkm0(), barrier()]
            gaps[59] += k_read(0, par) + k_read(1, par)
            gaps[61] += k_read(2, par)
            gaps[63] += k_read(3, par)
    if dmaK:
        grp, upd = dma_unit("K", i + 3)
        for q, g in enumerate(grp):
            gaps[33 + 3 * q] += [g[0], nop(0), g[2]]
        gaps[44] += [upd]
    if dmaV:
        grp, upd = dma_unit("V", i + 2)
        for q, g in enumerate(grp):
            gaps[60 + q] += [g[0], nop(0), g[2]]
        gaps[63] += [upd]
    if do_A or True:
        st = softmax_steps(par, par)
        rest = st[19:]
        n = len(rest)
        for k, s_ in enumerate(rest):
            g = (k * 28) // n
            gaps[g] += s_
        gaps[29] += [valu("v_add_f32", V_TMP, V_LT[0], V_LT[1])]
        gaps[30] += [valu("v_cmp_nge_f32", "vcc", f"s{S_THR}", V_TMP),
                     raw(f"s_cbranch_vccnz L_rare{par}", kind="branch"),
                     label(f"L_back{par}") if not first else None,
                     valu("v_add_f32", V_L[0], V_L[0], V_LT[0]),
                     valu("v_add_f32", V_L[1], V_L[1], V_LT[1])]
    if next_sm:
        st = softmax_steps(np_, np_)
        head = st[:19]
        n = len(head)
        for k, s_ in enumerate(head):
            g = 35 + (k * 28) // n
            gaps[g] += s_
    out = []
    for g in range(64):
        if mf[g] is not None:
            out.append(mf[g])
        out += [x for x in gaps[g] if x is not None]
    return out


def prologue():
    o = []
    A = o.append
    A(raw("s_cmp_ge_u32 s2, 768", kind="salu"))
    A(raw("s_cbranch_scc1 L_end", kind="branch"))
    A(raw("s_load_dwordx4 s[32:35], s[0:1], 0", kind="salu"))
    A(raw("s_load_dwordx4 s[36:39], s[0:1], 16", kind="salu"))
    A(raw("s_and_b32 s40, s2, 7", kind="salu"))
    A(raw("s_lshr_b32 s41, s2, 3", kind="salu"))
    A(raw("s_mul_hi_u32 s42, s41, 0x55555556", kind="salu"))
    A(raw("s_mul_i32 s43, s42, 3", kind="salu"))
    A(raw("s_sub_u32 s43, s41, s43", kind="salu"))
    A(raw("s_lshl_b32 s40, s40, 5", kind="salu"))
    A(raw("s_add_u32 s40, s40, s42", kind="salu"))
    A(raw("s_mul_i32 s44, s40, 376832", kind="salu"))
    A(raw("s_lshl_b32 s45, s40, 18", kind="salu"))
    A(raw(f"s_lshl_b32 s{S_QA}, s43, 17", kind="salu"))
    A(raw(f"s_add_u32 s{S_QB}, s{S_QA}, 16384", kind="salu"))
    A(valu("v_lshrrev_b32", V_TMP, "6", 0))
    A(valu("v_and_b32", V_T2, "63", 0))
    A(valu("v_readfirstlane_b32", f"s{S_W}", V_TMP))
    A(raw("s_waitcnt lgkmcnt(0)", kind="wait"))
    for srd, plo, off, nrec in ((S_Q, 32, 44, 376832), (S_K, 34, 45, 262144), (S_V, 36, 45, 262144), (S_O, 38, 44, 376832)):
        A(raw(f"s_add_u32 s{srd}, s{plo}, s{off}", kind="salu"))
        A(raw(f"s_addc_u32 s{srd+1}, s{plo+1}, 0", kind="salu"))
        A(raw(f"s_and_b32 s{srd+1}, s{srd+1}, 0xffff", kind="salu"))
        A(raw(f"s_mov_b32 s{srd+2}, {nrec}", kind="salu"))
        A(raw(f"s_mov_b32 s{srd+3}, 0x00020000", kind="salu"))
    A(raw(f"s_mov_b32 s{S_C}, {f32bits(SCALE):#x}", kind="salu"))
    A(raw(f"s_mov_b32 s{S_NC}, {f32bits(-SCALE):#x}", kind="salu"))
    A(raw(f"s_mov_b32 s{S_THR}, {f32bits(4096.0):#x}", kind="salu"))
    A(raw(f"s_mov_b32 s{S_KOFF}, 0", kind="salu"))
    A(raw(f"s_mov_b32 s{S_VOFF}, 0", kind="salu"))
    A(raw(f"s_mul_i32 s{S_KM0}, s{S_W}, {4*KBLK}", kind="salu"))
    A(raw(f"s_add_u32 s{S_KM0}, s{S_KM0}, {KSLOT[0]}", kind="salu"))
    A(raw(f"s_mul_i32 s{S_VM0}, s{S_W}, {4*VBLK}", kind="salu"))
    A(raw(f"s_add_u32 s{S_VM0}, s{S_VM0}, {VSLOT[0]}", kind="salu"))
    L = V_T2
    A(valu("v_lshrrev_b32", V_TMP, "5", L))
    A(valu("v_lshlrev_b32", V_DMA, "11", V_TMP))
    A(valu("v_and_b32", V_T3, "31", L))
    A(valu("v_lshl_add_u32", V_DMA, V_T3, "4", V_DMA))
    A(raw(f"s_lshl_b32 s46, s{S_W}, 12", kind="salu"))
    A(valu("v_add_u32", V_DMA, "s46", V_DMA))
    A(valu("v_lshlrev_b32", V_QO, "9", V_T3))
    A(valu("v_lshl_add_u32", V_QO, V_TMP, "4", V_QO))
    A(raw(f"s_lshl_b32 s46, s{S_W}, 15", kind="salu"))
    A(valu("v_add_u32", V_QO, "s46", V_QO))
    A(valu("v_and_b32", V_KA, "3", V_T3))
    A(valu("v_lshrrev_b32", TT, "3", V_T3))
    A(valu("v_lshl_add_u32", V_KA, TT, "2", V_KA))
    A(raw(f"s_movk_i32 s46, {KBLK}", kind="salu"))
    A(valu("v_mul_lo_u32", V_KA, V_KA, "s46"))
    A(valu("v_bfe_u32", TT, V_T3, "2", "1"))
    A(valu("v_lshl_add_u32", V_KA, TT, "9", V_KA))
    A(valu("v_lshl_add_u32", V_KA, V_TMP, "4", V_KA))
    A(valu("v_bfe_u32", V_VA, L, "2", "2"))
    A(raw(f"s_movk_i32 s46, {VBLK}", kind="salu"))
    A(valu("v_mul_lo_u32", V_VA, V_VA, "s46"))
    A(valu("v_lshl_add_u32", V_VA, V_TMP, "9", V_VA))
    A(valu("v_bfe_u32", TT, L, "4", "1"))
    A(valu("v_lshl_add_u32", V_VA, TT, "5", V_VA))
    A(valu("v_and_b32", TT, "1", L))
    A(valu("v_lshl_add_u32", V_VA, TT, "4", V_VA))
    A(valu("v_bfe_u32", TT, L, "1", "1"))
    A(valu("v_lshl_add_u32", V_VA, TT, "3", V_VA))
    def issue(kind, j):
        grp, upd = dma_unit(kind, j)
        r = []
        for g in grp:
            r += [g[0], nop(0), g[2]]
        r.append(upd)
        return r
    o += issue("K", 0)
    for ks in range(16):
        for qb in (0, 1):
            k, lo = Qfrag(qb, ks)
            A(bload(k, lo, 4, V_QO, S_Q, f"s{(S_QA, S_QB)[qb]}", 32 * ks, tag="Q"))
    o += issue("K", 1)
    o += issue("V", 0)
    for r in range(128):
        A(valu("v_mov_b32", r, "0"))
        A(valu("v_accvgpr_write_b32", ("a", r), "0"))
    A(valu("v_mov_b32", V_L[0], "0"))
    A(valu("v_mov_b32", V_L[1], "0"))
    A(wait_vm(("K", 0)))
    A(barrier())
    for f in range(4):
        o += k_read(f, 0)
    for ks in range(16):
        for qb in (0, 1):
            F = ("v", FB + 4 * (ks % 4))
            D = Sacc(0, qb)
            A(mfma32(D, F, Qfrag(qb, ks), None if ks == 0 else D))
            g = 2 * ks + qb
            if g >= 1 and (g + 7) % 2 == 0 and 4 <= (g + 7) // 2 < 16:
                o += k_read((g + 7) // 2, 0)
            if g == 27:
                o += [wait_vm(("K", 1)), wait_lgkm0(), barrier()]
                o += k_read(0, 1) + k_read(1, 1)
            if g == 29:
                o += k_read(2, 1)
            if g == 31:
                o += k_read(3, 1)
    o += issue("K", 2)
    o += issue("V", 1)
    A(nop(7))
    A(nop(7))
    for qb in (0, 1):
        o += row_max(0, qb, V_T2, V_TMP)
        A(valu("v_mul_f32", V_NMC[qb], f"s{S_NC}", V_T2))
    o += flat(softmax_steps(0, 0)[:19])
    A(raw(f"s_mov_b32 s{S_CNT}, 0", kind="salu"))
    return o


def epilogue():
    o = []
    A = o.append
    A(nop(15))
    for qb in (0, 1):
        A(valu("v_mov_b32", V_TMP, V_L[qb]))
        A(nop(1))
        A(Ins(f"v_permlane32_swap_b32 v{V_TMP}, v{V_L[qb]}", rd=[("v", V_TMP), ("v", V_L[qb])], wr=[("v", V_TMP), ("v", V_L[qb])], kind="valu"))
        A(nop(0))
        A(valu("v_add_f32", V_L[qb], V_L[qb], V_TMP))
        A(trans("v_rcp_f32", V_L[qb], V_L[qb]))
    A(nop(0))
    tb = 0
    for qb in (0, 1):
        for t in range(8):
            for gp in (0, 1):
                T = 128 + 16 * (tb % 4)
                tb += 1
                for e in range(8):
                    r = 16 * t + 8 * gp + e
                    if qb == 0:
                        A(valu("v_mul_f32", T + e, r, V_L[qb]))
                    else:
                        A(valu("v_accvgpr_read_b32", T + e, ("a", r)))
                        A(valu("v_mul_f32", T + e, T + e, V_L[qb]))
                for e in range(4):
                    A(valu("v_cvt_pk_bf16_f32", T + 8 + e, T + 2 * e, T + 2 * e + 1))
                A(bstore("v", T + 8, 4, V_QO, S_O, f"s{(S_QA, S_QB)[qb]}", 64 * t + 32 * gp))
    return o


def build():
    pro = prologue()
    st = WaitState()
    pro_r = insert_waits(pro, st)
    b0 = iteration(0, 0) + iteration(1, 1)
    st1 = st.clone()
    b0_r = insert_waits(b0, st1)
    sig1 = st1.sig
    b1 = iteration(2, 0) + iteration(3, 1)
    st2 = st1.clone()
    b1_r = insert_waits(b1, st2)
    t0 = [x.text for x in b0_r]
    t1 = [x.text for x in b1_r]
    if t0 != t1:
        nd = 0
        for x, y in zip(t0, t1):
            if x != y and nd < 5:
                print("DIFF", x, "|", y); nd += 1
        raise RuntimeError("loop body not in steady state")
    tail = iteration(4, 0, dmaK=False, dmaV=False, nextK=False, first=True)
    tail2_pre = [wait_vm(("V", 3)), wait_vm(("V", 5)), wait_lgkm0(), barrier()] + v_read(0, 1) + v_read(1, 1) + v_read(2, 1) + v_read(3, 1)
    tail2 = iteration(5, 1, do_A=False, next_sm=False, nextK=False, dmaK=False, dmaV=False, first=True)
    return pro_r, b0_r, st2, tail, tail2_pre, tail2


def main():
    pro_r, body_r, st, tail, tail2_pre, tail2 = build()
    def relabel(seq, suffix):
        out = []
        for x in seq:
            if x.kind == "branch" and "L_rare" in x.text:
                p = x.text[-1]
                out.append(raw(f"s_cbranch_vccnz L_rare{p}{suffix}", kind="branch"))
                out.append(label(f"L_back{p}{suffix}"))
            else:
                out.append(x)
        return out
    tail = relabel(tail, "t")
    tail2 = relabel(tail2, "t")
    tail_all = insert_waits(tail + tail2_pre + tail2 + epilogue(), st)
    def rare(par, suffix):
        r = rare_path(par)
        out = []
        for x in r:
            if x.kind == "label":
                out.append(label(f"L_rare{par}{suffix}"))
            elif x.kind == "branch":
                out.append(raw(f"s_branch L_back{par}{suffix}", kind="branch"))
            else:
                out.append(x)
        return out
    loop_ctl = [raw(f"s_add_u32 s{S_CNT}, s{S_CNT}, 1", kind="salu"),
                raw(f"s_cmp_lt_u32 s{S_CNT}, 7", kind="salu"),
                raw("s_cbranch_scc1 L_loop", kind="branch")]
    check_hazards(pro_r + body_r + loop_ctl + body_r + loop_ctl + tail_all, "main")
    for par in (0, 1):
        check_hazards(rare(par, ""), "rare")
    seq = pro_r + [label("L_loop")] + body_r + loop_ctl + tail_all + [label("L_end"), raw("s_endpgm")]
    seq += rare(0, "") + rare(1, "") + rare(0, "t") + rare(1, "t")
    hdr = open(f"cdna_kernels/{NAME}.s.ref").read().split("\n")
    head = [l for l in hdr if l.startswith(";") and "@launch" not in l and "Override" not in l and "grid=ceil" not in l]
    txt = "\n".join(head) + "\n"
    txt += f"; @launch grid=(768,1,1) block=(256,1,1) lds={LDS_BYTES}\n"
    txt += f'.amdgcn_target "amdgcn-amd-amdhsa--gfx950"\n.text\n.globl {NAME}_kernel\n.p2align 8\n.type {NAME}_kernel,@function\n{NAME}_kernel:\n'
    txt += render(seq) + "\n"
    txt += f""".section .rodata,"a"
.p2align 6
.amdhsa_kernel {NAME}_kernel
  .amdhsa_next_free_vgpr 512
  .amdhsa_next_free_sgpr 64
  .amdhsa_accum_offset 256
  .amdhsa_group_segment_fixed_size 0
  .amdhsa_kernarg_size 48
  .amdhsa_user_sgpr_count 2
  .amdhsa_user_sgpr_kernarg_segment_ptr 1
  .amdhsa_system_sgpr_workgroup_id_x 1
.end_amdhsa_kernel
"""
    out = sys.argv[1] if len(sys.argv) > 1 else f"cdna_kernels/{NAME}.s"
    open(out, "w").write(txt)
    print("wrote", out, len(seq), "instructions")


main()
```

```python
import sys, math, struct
sys.path.insert(0, "work")
from fw import *

NAME = "standalone__mha_softmax__near_ridge"

OA = ("v", 0)
OB = ("a", 0)
QA = 128
QB = 192
SB = [128, 160]
P0 = 192
P1 = 208
FB = 216
TT = 232
V_KA = 236
V_VA = 237
V_DMA = 238
V_NMC = [239, 240]
V_L = [241, 242]
V_LT = [243, 244]
V_TMP = 245
V_QO = 246
V_T2 = 247
V_T3 = 248

S_Q, S_K, S_V, S_O = 4, 8, 12, 16
S_W = 20
S_C = 21
S_THR = 22
S_KOFF = 23
S_VOFF = 24
S_KM0 = 25
S_VM0 = 26
S_CNT = 27
S_QA = 28
S_QB = 29
S_NC = 30

KBLK, VBLK = 1040, 1088
KSLOT = [0, 16 * KBLK]
VSLOT = [32 * KBLK, 32 * KBLK + 16 * VBLK]
LDS_BYTES = 32 * KBLK + 32 * VBLK

SCALE = (256 ** -0.5) * math.log2(math.e)


def f32bits(x):
    return struct.unpack("<I", struct.pack("<f", x))[0]


def Oacc(qb, t):
    k, lo = (OA, OB)[qb]
    return (k, lo + 16 * t)


def Qfrag(qb, ks):
    return ("a", (QA, QB)[qb] + 4 * ks)


def Sacc(buf, qb):
    return ("v", SB[buf] + 16 * qb)


def Pfrag(par, qb, s):
    if s == 0:
        return ("v", P0 + par * 8 + qb * 4)
    return ("v", P1 + qb * 4)


def k_read(f, slot):
    return [ds_read("ds_read_b128", "v", FB + 4 * (f % 4), 4, V_KA, KSLOT[slot] + 32 * f)]


def v_read(fp, slot):
    s, t = fp >> 3, fp & 7
    b = FB + 4 * (fp % 4)
    return [ds_read("ds_read_b64_tr_b16", "v", b + 2 * u, 2, V_VA, VSLOT[slot] + (2 * s + u) * 4 * VBLK + 64 * t) for u in (0, 1)]


def dma_unit(kind, j):
    slot = j & 1
    if kind == "K":
        base, blk, sl, srd, soff = S_KM0, KBLK, KSLOT, S_K, S_KOFF
    else:
        base, blk, sl, srd, soff = S_VM0, VBLK, VSLOT, S_V, S_VOFF
    rel = sl[slot] - sl[0]
    groups = []
    for q in range(4):
        g = [salu(f"s_add_u32 m0, s{base}, {rel + (blk - 512) * q}", rd=[base], wr=["m0"]),
             None,
             dma(V_DMA, srd, f"s{soff}", 512 * q, tag=(kind, j))]
        groups.append(g)
    upd = salu(f"s_add_u32 s{soff}, s{soff}, 16384", rd=[soff], wr=[soff])
    return groups, upd


def softmax_steps(buf, par):
    def elem(e):
        s = e >> 4
        qb = (e >> 3) & 1
        r = 8 * s + (e & 7)
        return s, qb, r
    steps = []
    for k in range(34):
        st = []
        if k < 32:
            s, qb, r = elem(k)
            st.append(valu("v_fma_f32", TT + k % 4, SB[buf] + 16 * qb + r, f"s{S_C}", V_NMC[qb]))
        if 0 <= k - 1 < 32:
            e = k - 1
            st.append(trans("v_exp_f32", TT + e % 4, TT + e % 4))
        if 0 <= k - 2 < 32:
            e = k - 2
            s, qb, r = elem(e)
            if r == 1:
                st.append(valu("v_add_f32", V_LT[qb], TT + (e - 1) % 4, TT + e % 4))
            elif r > 1:
                st.append(valu("v_add_f32", V_LT[qb], V_LT[qb], TT + e % 4))
            if r & 1:
                pk, pl = Pfrag(par, qb, s)
                st.append(valu("v_cvt_pk_bf16_f32", pl + ((r & 7) >> 1), TT + (e - 1) % 4, TT + e % 4))
        steps.append(st)
    return steps


def row_max(buf, qb, dst, tmp):
    b = SB[buf] + 16 * qb
    out = [valu("v_max3_f32", dst, b, b + 1, b + 2)]
    for i in range(3, 15, 2):
        out.append(valu("v_max3_f32", dst, dst, b + i, b + i + 1))
    out.append(valu("v_max_f32", dst, dst, b + 15))
    out.append(valu("v_mov_b32", tmp, dst))
    out.append(nop(1))
    out.append(Ins(f"v_permlane32_swap_b32 v{tmp}, v{dst}", rd=[("v", tmp), ("v", dst)], wr=[("v", tmp), ("v", dst)], kind="valu"))
    out.append(nop(0))
    out.append(valu("v_max_f32", dst, dst, tmp))
    return out


def flat(steps):
    out = []
    for st in steps:
        out += st
        out.append(nop(0))
    return out


def rare_path(par):
    out = [label(f"L_rare{par}")]
    out.append(nop(7))
    for qb in (0, 1):
        out += row_max(par, qb, V_T2, V_TMP)
        out.append(valu("v_mul_f32", V_T2, f"s{S_NC}", V_T2))
        out.append(valu("v_min_f32", V_T2, V_T2, V_NMC[qb]))
        out.append(valu("v_sub_f32", V_T3, V_T2, V_NMC[qb]))
        out.append(trans("v_exp_f32", V_T3, V_T3))
        out.append(valu("v_mov_b32", V_NMC[qb], V_T2))
        out.append(valu("v_mul_f32", V_L[qb], V_L[qb], V_T3))
        for r in range(128):
            if qb == 0:
                out.append(valu("v_mul_f32", r, r, V_T3))
            else:
                out.append(valu("v_accvgpr_read_b32", V_TMP, ("a", r)))
                out.append(valu("v_mul_f32", V_TMP, V_TMP, V_T3))
                out.append(valu("v_accvgpr_write_b32", ("a", r), V_TMP))
    out += flat(softmax_steps(par, par))
    out.append(nop(3))
    out.append(raw(f"s_branch L_back{par}", kind="branch"))
    return out


def iteration(i, par, do_A=True, do_B=True, next_sm=True, nextK=True, dmaK=True, dmaV=True, first=False):
    gaps = {g: [] for g in range(-1, 64)}
    mf = []
    np_ = par ^ 1
    for ks in range(16):
        for qb in (0, 1):
            F = ("v", FB + 4 * (ks % 4))
            D = Sacc(np_, qb)
            mf.append(mfma32(D, F, Qfrag(qb, ks), None if ks == 0 else D) if do_A else None)
    for fp in range(16):
        s, t = fp >> 3, fp & 7
        for qb in (0, 1):
            F = ("v", FB + 4 * (fp % 4))
            D = Oacc(qb, t)
            mf.append(mfma32(D, F, Pfrag(par, qb, s), D) if do_B else None)
    if do_A:
        for f in range(4, 16):
            gaps[2 * f - 7] += k_read(f, np_)
    if do_B:
        if do_A:
            gaps[27] += [wait_vm(("V", i)), wait_lgkm0(), barrier()]
            gaps[27] += v_read(0, par) + v_read(1, par)
            gaps[29] += v_read(2, par)
            gaps[31] += v_read(3, par)
        for fp in range(4, 16):
            gaps[32 + 2 * fp - 7] += v_read(fp, par)
        if nextK:
            gaps[59] += [wait_vm(("K", i + 2)), wait_lgkm0(), barrier()]
            gaps[59] += k_read(0, par) + k_read(1, par)
            gaps[61] += k_read(2, par)
            gaps[63] += k_read(3, par)
    if dmaK:
        grp, upd = dma_unit("K", i + 3)
        for q, g in enumerate(grp):
            gaps[33 + 3 * q] += [g[0], nop(0), g[2]]
        gaps[44] += [upd]
    if dmaV:
        grp, upd = dma_unit("V", i + 2)
        for q, g in enumerate(grp):
            gaps[60 + q] += [g[0], nop(0), g[2]]
        gaps[63] += [upd]
    if do_A or True:
        st = softmax_steps(par, par)
        rest = st[19:]
        n = len(rest)
        for k, s_ in enumerate(rest):
            g = (k * 28) // n
            gaps[g] += s_
        gaps[29] += [valu("v_add_f32", V_TMP, V_LT[0], V_LT[1])]
        gaps[30] += [valu("v_cmp_nge_f32", "vcc", f"s{S_THR}", V_TMP),
                     raw(f"s_cbranch_vccnz L_rare{par}", kind="branch"),
                     label(f"L_back{par}") if not first else None,
                     valu("v_add_f32", V_L[0], V_L[0], V_LT[0]),
                     valu("v_add_f32", V_L[1], V_L[1], V_LT[1])]
    if next_sm:
        st = softmax_steps(np_, np_)
        head = st[:19]
        n = len(head)
        for k, s_ in enumerate(head):
            g = 35 + (k * 28) // n
            gaps[g] += s_
    out = []
    for g in range(64):
        if mf[g] is not None:
            out.append(mf[g])
        out += [x for x in gaps[g] if x is not None]
    return out


def prologue():
    o = []
    A = o.append
    A(raw("s_cmp_ge_u32 s2, 768", kind="salu"))
    A(raw("s_cbranch_scc1 L_end", kind="branch"))
    A(raw("s_load_dwordx4 s[32:35], s[0:1], 0", kind="salu"))
    A(raw("s_load_dwordx4 s[36:39], s[0:1], 16", kind="salu"))
    A(raw("s_and_b32 s40, s2, 7", kind="salu"))
    A(raw("s_lshr_b32 s41, s2, 3", kind="salu"))
    A(raw("s_mul_hi_u32 s42, s41, 0x55555556", kind="salu"))
    A(raw("s_mul_i32 s43, s42, 3", kind="salu"))
    A(raw("s_sub_u32 s43, s41, s43", kind="salu"))
    A(raw("s_lshl_b32 s40, s40, 5", kind="salu"))
    A(raw("s_add_u32 s40, s40, s42", kind="salu"))
    A(raw("s_mul_i32 s44, s40, 376832", kind="salu"))
    A(raw("s_lshl_b32 s45, s40, 18", kind="salu"))
    A(raw(f"s_lshl_b32 s{S_QA}, s43, 17", kind="salu"))
    A(raw(f"s_add_u32 s{S_QB}, s{S_QA}, 16384", kind="salu"))
    A(valu("v_lshrrev_b32", V_TMP, "6", 0))
    A(valu("v_and_b32", V_T2, "63", 0))
    A(valu("v_readfirstlane_b32", f"s{S_W}", V_TMP))
    A(raw("s_waitcnt lgkmcnt(0)", kind="wait"))
    for srd, plo, off, nrec in ((S_Q, 32, 44, 376832), (S_K, 34, 45, 262144), (S_V, 36, 45, 262144), (S_O, 38, 44, 376832)):
        A(raw(f"s_add_u32 s{srd}, s{plo}, s{off}", kind="salu"))
        A(raw(f"s_addc_u32 s{srd+1}, s{plo+1}, 0", kind="salu"))
        A(raw(f"s_and_b32 s{srd+1}, s{srd+1}, 0xffff", kind="salu"))
        A(raw(f"s_mov_b32 s{srd+2}, {nrec}", kind="salu"))
        A(raw(f"s_mov_b32 s{srd+3}, 0x00020000", kind="salu"))
    A(raw(f"s_mov_b32 s{S_C}, {f32bits(SCALE):#x}", kind="salu"))
    A(raw(f"s_mov_b32 s{S_NC}, {f32bits(-SCALE):#x}", kind="salu"))
    A(raw(f"s_mov_b32 s{S_THR}, {f32bits(4096.0):#x}", kind="salu"))
    A(raw(f"s_mov_b32 s{S_KOFF}, 0", kind="salu"))
    A(raw(f"s_mov_b32 s{S_VOFF}, 0", kind="salu"))
    A(raw(f"s_mul_i32 s{S_KM0}, s{S_W}, {4*KBLK}", kind="salu"))
    A(raw(f"s_add_u32 s{S_KM0}, s{S_KM0}, {KSLOT[0]}", kind="salu"))
    A(raw(f"s_mul_i32 s{S_VM0}, s{S_W}, {4*VBLK}", kind="salu"))
    A(raw(f"s_add_u32 s{S_VM0}, s{S_VM0}, {VSLOT[0]}", kind="salu"))
    L = V_T2
    A(valu("v_lshrrev_b32", V_TMP, "5", L))
    A(valu("v_lshlrev_b32", V_DMA, "11", V_TMP))
    A(valu("v_and_b32", V_T3, "31", L))
    A(valu("v_lshl_add_u32", V_DMA, V_T3, "4", V_DMA))
    A(raw(f"s_lshl_b32 s46, s{S_W}, 12", kind="salu"))
    A(valu("v_add_u32", V_DMA, "s46", V_DMA))
    A(valu("v_lshlrev_b32", V_QO, "9", V_T3))
    A(valu("v_lshl_add_u32", V_QO, V_TMP, "4", V_QO))
    A(raw(f"s_lshl_b32 s46, s{S_W}, 15", kind="salu"))
    A(valu("v_add_u32", V_QO, "s46", V_QO))
    A(valu("v_and_b32", V_KA, "3", V_T3))
    A(valu("v_lshrrev_b32", TT, "3", V_T3))
    A(valu("v_lshl_add_u32", V_KA, TT, "2", V_KA))
    A(raw(f"s_movk_i32 s46, {KBLK}", kind="salu"))
    A(valu("v_mul_lo_u32", V_KA, V_KA, "s46"))
    A(valu("v_bfe_u32", TT, V_T3, "2", "1"))
    A(valu("v_lshl_add_u32", V_KA, TT, "9", V_KA))
    A(valu("v_lshl_add_u32", V_KA, V_TMP, "4", V_KA))
    A(valu("v_bfe_u32", V_VA, L, "2", "2"))
    A(raw(f"s_movk_i32 s46, {VBLK}", kind="salu"))
    A(valu("v_mul_lo_u32", V_VA, V_VA, "s46"))
    A(valu("v_lshl_add_u32", V_VA, V_TMP, "9", V_VA))
    A(valu("v_bfe_u32", TT, L, "4", "1"))
    A(valu("v_lshl_add_u32", V_VA, TT, "5", V_VA))
    A(valu("v_and_b32", TT, "1", L))
    A(valu("v_lshl_add_u32", V_VA, TT, "4", V_VA))
    A(valu("v_bfe_u32", TT, L, "1", "1"))
    A(valu("v_lshl_add_u32", V_VA, TT, "3", V_VA))
    def issue(kind, j):
        grp, upd = dma_unit(kind, j)
        r = []
        for g in grp:
            r += [g[0], nop(0), g[2]]
        r.append(upd)
        return r
    o += issue("K", 0)
    for ks in range(16):
        for qb in (0, 1):
            k, lo = Qfrag(qb, ks)
            A(bload(k, lo, 4, V_QO, S_Q, f"s{(S_QA, S_QB)[qb]}", 32 * ks, tag="Q"))
    o += issue("K", 1)
    o += issue("V", 0)
    for r in range(128):
        A(valu("v_mov_b32", r, "0"))
        A(valu("v_accvgpr_write_b32", ("a", r), "0"))
    A(valu("v_mov_b32", V_L[0], "0"))
    A(valu("v_mov_b32", V_L[1], "0"))
    A(wait_vm(("K", 0)))
    A(barrier())
    for f in range(4):
        o += k_read(f, 0)
    for ks in range(16):
        for qb in (0, 1):
            F = ("v", FB + 4 * (ks % 4))
            D = Sacc(0, qb)
            A(mfma32(D, F, Qfrag(qb, ks), None if ks == 0 else D))
            g = 2 * ks + qb
            if g >= 1 and (g + 7) % 2 == 0 and 4 <= (g + 7) // 2 < 16:
                o += k_read((g + 7) // 2, 0)
            if g == 27:
                o += [wait_vm(("K", 1)), wait_lgkm0(), barrier()]
                o += k_read(0, 1) + k_read(1, 1)
            if g == 29:
                o += k_read(2, 1)
            if g == 31:
                o += k_read(3, 1)
    o += issue("K", 2)
    o += issue("V", 1)
    A(nop(7))
    A(nop(7))
    for qb in (0, 1):
        o += row_max(0, qb, V_T2, V_TMP)
        A(valu("v_mul_f32", V_NMC[qb], f"s{S_NC}", V_T2))
    o += flat(softmax_steps(0, 0)[:19])
    A(raw(f"s_mov_b32 s{S_CNT}, 0", kind="salu"))
    return o


def epilogue():
    o = []
    A = o.append
    A(nop(15))
    for qb in (0, 1):
        A(valu("v_mov_b32", V_TMP, V_L[qb]))
        A(nop(1))
        A(Ins(f"v_permlane32_swap_b32 v{V_TMP}, v{V_L[qb]}", rd=[("v", V_TMP), ("v", V_L[qb])], wr=[("v", V_TMP), ("v", V_L[qb])], kind="valu"))
        A(nop(0))
        A(valu("v_add_f32", V_L[qb], V_L[qb], V_TMP))
        A(trans("v_rcp_f32", V_L[qb], V_L[qb]))
    A(nop(0))
    tb = 0
    for qb in (0, 1):
        for t in range(8):
            for gp in (0, 1):
                T = 128 + 16 * (tb % 4)
                tb += 1
                for e in range(8):
                    r = 16 * t + 8 * gp + e
                    if qb == 0:
                        A(valu("v_mul_f32", T + e, r, V_L[qb]))
                    else:
                        A(valu("v_accvgpr_read_b32", T + e, ("a", r)))
                        A(valu("v_mul_f32", T + e, T + e, V_L[qb]))
                for e in range(4):
                    A(valu("v_cvt_pk_bf16_f32", T + 8 + e, T + 2 * e, T + 2 * e + 1))
                A(bstore("v", T + 8, 4, V_QO, S_O, f"s{(S_QA, S_QB)[qb]}", 64 * t + 32 * gp))
    return o


def build():
    pro = prologue()
    st = WaitState()
    pro_r = insert_waits(pro, st)
    b0 = iteration(0, 0) + iteration(1, 1)
    st1 = st.clone()
    b0_r = insert_waits(b0, st1)
    sig1 = st1.sig
    b1 = iteration(2, 0) + iteration(3, 1)
    st2 = st1.clone()
    b1_r = insert_waits(b1, st2)
    t0 = [x.text for x in b0_r]
    t1 = [x.text for x in b1_r]
    if t0 != t1:
        nd = 0
        for x, y in zip(t0, t1):
            if x != y and nd < 5:
                print("DIFF", x, "|", y); nd += 1
        raise RuntimeError("loop body not in steady state")
    tail = iteration(4, 0, dmaK=False, dmaV=False, nextK=False, first=True)
    tail2_pre = [wait_vm(("V", 3)), wait_vm(("V", 5)), wait_lgkm0(), barrier()] + v_read(0, 1) + v_read(1, 1) + v_read(2, 1) + v_read(3, 1)
    tail2 = iteration(5, 1, do_A=False, next_sm=False, nextK=False, dmaK=False, dmaV=False, first=True)
    return pro_r, b0_r, st2, tail, tail2_pre, tail2


STAMP = len(sys.argv) > 2 and sys.argv[2] == "stamp"


def stamp(k):
    if not STAMP:
        return []
    return [raw(f"s_memtime s[{48+2*k}:{49+2*k}]", kind="salu"), raw("s_waitcnt lgkmcnt(0)", kind="wait")]


def stamp_out():
    if not STAMP:
        return []
    o = []
    A = o.append
    A(raw("s_waitcnt vmcnt(0)", kind="wait"))
    o += stamp(3)
    A(raw("s_mov_b32 s60, -1", kind="salu"))
    A(raw("s_cmp_eq_u32 s2, 0", kind="salu"))
    A(raw("s_cselect_b32 s60, 0, s60", kind="salu"))
    A(raw("s_cmp_eq_u32 s2, 259", kind="salu"))
    A(raw("s_cselect_b32 s60, 16, s60", kind="salu"))
    A(raw("s_cmp_eq_u32 s2, 517", kind="salu"))
    A(raw("s_cselect_b32 s60, 32, s60", kind="salu"))
    A(raw("s_cmp_eq_u32 s60, -1", kind="salu"))
    A(raw("s_cbranch_scc1 L_end", kind="branch"))
    A(raw(f"s_cmp_lg_u32 s{S_W}, 0", kind="salu"))
    A(raw("s_cbranch_scc1 L_end", kind="branch"))
    A(raw("s_load_dwordx2 s[32:33], s[0:1], 32", kind="salu"))
    A(raw("s_waitcnt lgkmcnt(0)", kind="wait"))
    A(raw("s_mov_b32 s34, 256", kind="salu"))
    A(raw("s_mov_b32 s35, 0x00020000", kind="salu"))
    A(raw("s_sub_u32 s49, s50, s48", kind="salu"))
    A(raw("s_sub_u32 s51, s52, s50", kind="salu"))
    A(raw("s_sub_u32 s53, s54, s52", kind="salu"))
    A(raw("v_mov_b32 v0, s49"))
    A(raw("v_mov_b32 v1, s51"))
    A(raw("v_mov_b32 v2, s53"))
    A(raw("v_mov_b32 v3, s48"))
    A(raw("v_mov_b32 v4, s60"))
    A(raw("s_mov_b64 exec, 1", kind="salu"))
    A(raw("buffer_store_dwordx4 v[0:3], v4, s[32:35], 0 offen"))
    return o


def main():
    pro_r, body_r, st, tail, tail2_pre, tail2 = build()
    def relabel(seq, suffix):
        out = []
        for x in seq:
            if x.kind == "branch" and "L_rare" in x.text:
                p = x.text[-1]
                out.append(raw(f"s_cbranch_vccnz L_rare{p}{suffix}", kind="branch"))
                out.append(label(f"L_back{p}{suffix}"))
            else:
                out.append(x)
        return out
    tail = relabel(tail, "t")
    tail2 = relabel(tail2, "t")
    tail_all = insert_waits(tail + tail2_pre + tail2 + epilogue(), st)
    def rare(par, suffix):
        r = rare_path(par)
        out = []
        for x in r:
            if x.kind == "label":
                out.append(label(f"L_rare{par}{suffix}"))
            elif x.kind == "branch":
                out.append(raw(f"s_branch L_back{par}{suffix}", kind="branch"))
            else:
                out.append(x)
        return out
    loop_ctl = [raw(f"s_add_u32 s{S_CNT}, s{S_CNT}, 1", kind="salu"),
                raw(f"s_cmp_lt_u32 s{S_CNT}, 7", kind="salu"),
                raw("s_cbranch_scc1 L_loop", kind="branch")]
    check_hazards(pro_r + body_r + loop_ctl + body_r + loop_ctl + tail_all, "main")
    for par in (0, 1):
        check_hazards(rare(par, ""), "rare")
    seq = pro_r[:2] + stamp(0) + pro_r[2:] + stamp(1) + [label("L_loop")] + body_r + loop_ctl + stamp(2) + tail_all + stamp_out() + [label("L_end"), raw("s_endpgm")]
    seq += rare(0, "") + rare(1, "") + rare(0, "t") + rare(1, "t")
    hdr = open(f"cdna_kernels/{NAME}.s.ref").read().split("\n")
    head = [l for l in hdr if l.startswith(";") and "@launch" not in l and "Override" not in l and "grid=ceil" not in l]
    txt = "\n".join(head) + "\n"
    txt += f"; @launch grid=(768,1,1) block=(256,1,1) lds={LDS_BYTES}\n"
    txt += f'.amdgcn_target "amdgcn-amd-amdhsa--gfx950"\n.text\n.globl {NAME}_kernel\n.p2align 8\n.type {NAME}_kernel,@function\n{NAME}_kernel:\n'
    txt += render(seq) + "\n"
    txt += f""".section .rodata,"a"
.p2align 6
.amdhsa_kernel {NAME}_kernel
  .amdhsa_next_free_vgpr 512
  .amdhsa_next_free_sgpr 64
  .amdhsa_accum_offset 256
  .amdhsa_group_segment_fixed_size 0
  .amdhsa_kernarg_size 48
  .amdhsa_user_sgpr_count 2
  .amdhsa_user_sgpr_kernarg_segment_ptr 1
  .amdhsa_system_sgpr_workgroup_id_x 1
.end_amdhsa_kernel
"""
    out = sys.argv[1] if len(sys.argv) > 1 else f"cdna_kernels/{NAME}.s"
    open(out, "w").write(txt)
    print("wrote", out, len(seq), "instructions")


main()
```

```python
import re


def R(kind, lo, n=1):
    return [(kind, lo + i) for i in range(n)]


def rs(kind, lo, n=1):
    if n == 1:
        return f"{kind}{lo}"
    return f"{kind}[{lo}:{lo + n - 1}]"


class Ins:
    __slots__ = ("text", "rd", "wr", "kind", "cost", "tag", "passes", "srcc", "note", "counted")

    def __init__(self, text, rd=(), wr=(), kind="valu", cost=4, tag=None, passes=0, srcc=()):
        self.text = text
        self.rd = list(rd)
        self.wr = list(wr)
        self.kind = kind
        self.cost = cost
        self.tag = tag
        self.passes = passes
        self.srcc = list(srcc)
        self.note = None
        self.counted = True

    def __repr__(self):
        return self.text


def mfma32(d, a, b, c=None):
    dk, dl = d
    ak, al = a
    bk, bl = b
    if c is None:
        cs = "0"
        crd = []
    else:
        ck, cl = c
        cs = rs(ck, cl, 16)
        crd = R(ck, cl, 16)
    t = f"v_mfma_f32_32x32x16_bf16 {rs(dk, dl, 16)}, {rs(ak, al, 4)}, {rs(bk, bl, 4)}, {cs}"
    return Ins(t, rd=R(ak, al, 4) + R(bk, bl, 4) + crd, wr=R(dk, dl, 16), kind="mfma", cost=8, passes=8, srcc=crd)


def valu(op, d, *srcs, cost=4, kind="valu", extra="", dn=1):
    rd = []
    ss = []
    for s in srcs:
        if isinstance(s, int):
            ss.append(f"v{s}")
            rd.append(("v", s))
        elif isinstance(s, tuple):
            k, n = s
            if k == "-v":
                ss.append(f"-v{n}")
                rd.append(("v", n))
            elif k == "a":
                ss.append(f"a{n}")
                rd.append(("a", n))
            elif k == "v2":
                ss.append(f"v[{n}:{n+1}]")
                rd += R("v", n, 2)
            else:
                raise ValueError(s)
        else:
            ss.append(s)
            m = re.fullmatch(r"s(\d+)", s)
            if m:
                rd.append(("s", int(m.group(1))))
            if s == "vcc":
                rd.append(("s", "vcc"))
    if isinstance(d, int):
        if dn == 1:
            ds = f"v{d}"
            wr = [("v", d)]
        else:
            ds = rs("v", d, dn)
            wr = R("v", d, dn)
    elif isinstance(d, tuple):
        k, n = d
        ds = f"{k}{n}"
        wr = [(k, n)]
    else:
        ds = d
        wr = []
        m = re.fullmatch(r"s(\d+)", d)
        if m:
            wr = [("s", int(m.group(1)))]
        if d == "vcc":
            wr = [("s", "vcc")]
    t = f"{op} {ds}, " + ", ".join(ss) + (" " + extra if extra else "")
    return Ins(t, rd=rd, wr=wr, kind=kind, cost=cost)


def trans(op, d, s):
    return valu(op, d, s, cost=8, kind="trans")


def salu(text, rd=(), wr=()):
    return Ins(text, rd=[("s", r) for r in rd], wr=[("s", r) for r in wr], kind="salu", cost=4)


def ds_read(op, dk, dl, n, addr, off):
    t = f"{op} {rs(dk, dl, n)}, v{addr}" + (f" offset:{off}" if off else "")
    return Ins(t, rd=[("v", addr)], wr=R(dk, dl, n), kind="ds_rd", cost=4)


def ds_write(op, addr, sk, sl, n, off):
    t = f"{op} v{addr}, {rs(sk, sl, n)}" + (f" offset:{off}" if off else "")
    return Ins(t, rd=[("v", addr)] + R(sk, sl, n), wr=[], kind="ds_wr", cost=8)


def dma(voff, srd, soff, imm, tag=None, flags=""):
    t = f"buffer_load_dwordx4 v{voff}, s[{srd}:{srd+3}], {soff} offen" + (f" offset:{imm}" if imm else "") + flags + " lds"
    return Ins(t, rd=[("v", voff), ("s", "m0")], wr=[], kind="dma", cost=16, tag=tag)


def bload(dk, dl, n, voff, srd, soff, imm, tag=None, flags=""):
    op = {1: "buffer_load_dword", 2: "buffer_load_dwordx2", 4: "buffer_load_dwordx4"}[n]
    t = f"{op} {rs(dk, dl, n)}, v{voff}, s[{srd}:{srd+3}], {soff} offen" + (f" offset:{imm}" if imm else "") + flags
    return Ins(t, rd=[("v", voff)], wr=R(dk, dl, n), kind="vmem_ld", cost=8, tag=tag)


def bstore(sk, sl, n, voff, srd, soff, imm, tag=None, flags=""):
    op = {1: "buffer_store_dword", 2: "buffer_store_dwordx2", 4: "buffer_store_dwordx4"}[n]
    t = f"{op} {rs(sk, sl, n)}, v{voff}, s[{srd}:{srd+3}], {soff} offen" + (f" offset:{imm}" if imm else "") + flags
    return Ins(t, rd=[("v", voff)] + R(sk, sl, n), wr=[], kind="vmem_st", cost=8, tag=tag)


def raw(text, kind="other", cost=4, rd=(), wr=()):
    return Ins(text, rd=rd, wr=wr, kind=kind, cost=cost)


def label(name):
    return Ins(name + ":", kind="label", cost=0)


def wait_vm(tag):
    return Ins("s_waitcnt vmcnt(?)", kind="wait_vm", cost=4, tag=tag)


def wait_lgkm0():
    return Ins("s_waitcnt lgkmcnt(0)", kind="wait_lgkm0", cost=4)


def barrier():
    return Ins("s_barrier", kind="barrier", cost=4)


def touch(regs):
    return Ins("; touch", rd=list(regs), kind="touch", cost=0)


def uncounted(ins):
    ins.counted = False
    return ins


def nop(n):
    return Ins(f"s_nop {n}", kind="nop", cost=4 * (n + 1))


class WaitState:
    def __init__(self):
        self.lds = []
        self.vm = []

    def clone(self):
        w = WaitState()
        w.lds = list(self.lds)
        w.vm = list(self.vm)
        return w

    def sig(self):
        return (tuple(tuple(sorted(x)) for x in self.lds), tuple((t, tuple(sorted(x))) for t, x in self.vm))


def insert_waits(seq, st):
    out = []
    for ins in seq:
        if ins.kind == "wait_vm":
            idx = -1
            for i, (t, _) in enumerate(st.vm):
                if t == ins.tag:
                    idx = i
            if idx >= 0:
                n = len(st.vm) - 1 - idx
                assert n <= 63
                out.append(Ins(f"s_waitcnt vmcnt({n})", kind="wait"))
                st.vm = st.vm[idx + 1:]
            continue
        if ins.kind == "wait_lgkm0":
            out.append(Ins("s_waitcnt lgkmcnt(0)", kind="wait"))
            st.lds = []
            continue
        touched = set(ins.rd) | set(ins.wr)
        idx = -1
        for i, w in enumerate(st.lds):
            if w & touched:
                idx = i
        if idx >= 0:
            n = len(st.lds) - 1 - idx
            assert n <= 15, "lgkmcnt overflow"
            out.append(Ins(f"s_waitcnt lgkmcnt({n})", kind="wait"))
            st.lds = st.lds[idx + 1:]
        idx = -1
        for i, (t, w) in enumerate(st.vm):
            if w & touched:
                idx = i
        if idx >= 0:
            n = len(st.vm) - 1 - idx
            assert n <= 63
            out.append(Ins(f"s_waitcnt vmcnt({n})", kind="wait"))
            st.vm = st.vm[idx + 1:]
        if ins.kind == "touch":
            continue
        if ins.kind in ("ds_rd", "ds_wr") and len(st.lds) >= 15:
            out.append(Ins("s_waitcnt lgkmcnt(8)", kind="wait"))
            st.lds = st.lds[-8:]
        out.append(ins)
        if ins.kind in ("ds_rd", "ds_wr"):
            st.lds.append(set(ins.wr))
            assert len(st.lds) <= 15, "too many outstanding LDS ops"
        elif ins.kind in ("dma", "vmem_ld", "vmem_st") and ins.counted:
            st.vm.append((ins.tag, set(ins.wr)))
            if len(st.vm) > 63:
                st.vm.pop(0)
    return out


def states_of(ins):
    if ins.kind == "label":
        return 0
    if ins.kind == "nop":
        return int(ins.text.split()[1]) + 1
    return 1


def check_hazards(seq, name=""):
    errs = []
    pos = 0
    last_valu_wr = {}
    last_trans_wr = {}
    last_mfma_wr = {}
    last_mfma_srcc = {}
    last_valu_sgpr_wr = {}
    last_store_data = {}
    last_m0 = -100
    for ins in seq:
        k = ins.kind
        if k == "label":
            continue
        isvalu = k in ("valu", "trans")
        if k == "mfma":
            for r in ins.rd:
                if r in last_valu_wr and pos - last_valu_wr[r] - 1 < 2:
                    errs.append(f"VALU->MFMA {r} dist {pos - last_valu_wr[r] - 1}: {ins.text}")
                if r in last_mfma_wr:
                    p, ps, tup = last_mfma_wr[r]
                    d = pos - p - 1
                    if r in ins.srcc:
                        same = tuple(ins.srcc) == tup
                        need = 0 if same else ps + 2
                        if d < need:
                            errs.append(f"MFMA->MFMA srcC {r} dist {d} need {need}: {ins.text}")
                    else:
                        need = ps + 4
                        if d < need:
                            errs.append(f"MFMA->MFMA A/B {r} dist {d} need {need}: {ins.text}")
            for r in ins.wr:
                if r in last_mfma_wr and r not in ins.srcc:
                    p, ps, tup = last_mfma_wr[r]
                    d = pos - p - 1
                    if d < ps + 2:
                        errs.append(f"MFMA->MFMA WAW {r} dist {d}: {ins.text}")
        else:
            if isvalu or k in ("ds_rd", "ds_wr", "vmem_ld", "vmem_st", "dma"):
                for r in list(ins.rd) + list(ins.wr):
                    if r in last_mfma_wr:
                        p, ps, tup = last_mfma_wr[r]
                        d = pos - p - 1
                        if d < ps + 4:
                            errs.append(f"MFMA->{k} {r} dist {d} need {ps+4}: {ins.text}")
            if isvalu:
                for r in ins.wr:
                    if r in last_mfma_srcc:
                        p, ps = last_mfma_srcc[r]
                        d = pos - p - 1
                        if d < ps - 1:
                            errs.append(f"MFMA srcC WAR {r} dist {d}: {ins.text}")
                    if r in last_store_data and pos - last_store_data[r] - 1 < 2:
                        errs.append(f"store data WAR {r}: {ins.text}")
                for r in ins.rd:
                    if r in last_trans_wr and k != "trans" and pos - last_trans_wr[r] - 1 < 1:
                        errs.append(f"trans->valu {r}: {ins.text}")
                    if r[0] == "s" and r in last_valu_sgpr_wr and pos - last_valu_sgpr_wr[r] - 1 < 2:
                        errs.append(f"valu sgpr->valu {r}: {ins.text}")
                if "permlane" in ins.text:
                    for r in ins.rd:
                        if r in last_valu_wr and pos - last_valu_wr[r] - 1 < 2:
                            errs.append(f"valu->permlane {r}: {ins.text}")
                if "readfirstlane" in ins.text or "readlane" in ins.text:
                    for r in ins.rd:
                        if r in last_valu_wr and pos - last_valu_wr[r] - 1 < 1:
                            errs.append(f"valu->readlane {r}: {ins.text}")
            if k in ("vmem_ld", "vmem_st", "dma"):
                for r in ins.rd:
                    if r[0] == "s" and r in last_valu_sgpr_wr and pos - last_valu_sgpr_wr[r] - 1 < 5:
                        errs.append(f"valu sgpr->vmem {r}: {ins.text}")
                if k == "dma" and pos - last_m0 - 1 < 1:
                    errs.append(f"m0->dma: {ins.text}")
            if k == "ds_rd":
                for r in ins.wr:
                    if r in last_store_data and pos - last_store_data[r] - 1 < 1:
                        errs.append(f"store data WAR(ds) {r}: {ins.text}")
        if k == "mfma":
            tup = tuple(ins.wr)
            for r in ins.wr:
                last_mfma_wr[r] = (pos, ins.passes, tup)
                last_valu_wr.pop(r, None)
                last_trans_wr.pop(r, None)
            for r in ins.srcc:
                last_mfma_srcc[r] = (pos, ins.passes)
        elif isvalu:
            for r in ins.wr:
                last_valu_wr[r] = pos
                last_mfma_wr.pop(r, None)
                if k == "trans":
                    last_trans_wr[r] = pos
                else:
                    last_trans_wr.pop(r, None)
                if r[0] == "s":
                    last_valu_sgpr_wr[r] = pos
        elif k in ("ds_rd", "vmem_ld"):
            for r in ins.wr:
                last_valu_wr.pop(r, None)
                last_trans_wr.pop(r, None)
                last_mfma_wr.pop(r, None)
        elif k == "salu":
            for r in ins.wr:
                if r == ("s", "m0"):
                    last_m0 = pos
                last_valu_sgpr_wr.pop(r, None)
        if k == "vmem_st":
            for r in ins.rd[1:]:
                last_store_data[r] = pos
        pos += states_of(ins)
    if errs:
        for e in errs[:40]:
            print("HAZARD", name, e)
        raise RuntimeError(f"{len(errs)} hazards in {name}")


def render(seq):
    out = []
    for ins in seq:
        if ins.kind == "label":
            out.append(ins.text)
        else:
            out.append("    " + ins.text)
    return "\n".join(out)
```

```python
import sys, math, struct
sys.path.insert(0, "work")
from fw import *

NAME = "standalone__mha_softmax__near_ridge"
ARGS = sys.argv[2:]
STAMP = "stamp" in ARGS


def opt(name, default):
    for a in ARGS:
        if a.startswith(name + "="):
            return int(a.split("=")[1])
    return default


OA = ("v", 0)
OB = ("a", 0)
QA = 128
QB = 192
SB = [128, 160]
P0 = 192
P1 = 208
FB = 216
TT = 232
V_KA, V_VA, V_DMA = 236, 237, 238
V_NMC = [239, 240]
V_L = [241, 242]
V_LT = [243, 244]
V_TMP = 245
V_QO = 246
V_T2 = 247
V_T3 = 248
V_QDMA = 249
V_QRD = 250
V_PF = 251
V_RINV = [252, 254]
V_QCUR = 253
V_TMP2 = 255

S_Q, S_K, S_V, S_O = 4, 8, 12, 16
S_XH = 3
S_W = 20
S_C = 21
S_THR = 22
S_KOFF = 23
S_VOFF = 24
S_KM0 = 25
S_VM0 = 26
S_CNT = 27
S_QS = 28
S_QSTEP = 29
S_NC = 30
S_QM = 31
S_KN = 48
S_VN = 50
S_KVN = 52
S_16K = 53
S_ON = 54
S_T = 57
S_QMB = 58
S_RHO = 59

KBLK, VBLK = 1040, 1088
KSLOT = [0, 16 * KBLK]
VSLOT = [32 * KBLK, 32 * KBLK + 16 * VBLK]
QBASE = 32 * KBLK + 32 * VBLK
QUNIT = 4224
QDUMMY = QBASE + 4 * 5 * QUNIT
LDS_BYTES = QDUMMY + 4224

SCALE = (256 ** -0.5) * math.log2(math.e)
HEAD = opt("head", 19)
HEAD0 = opt("head0", 12)
UNITS = [(0, 0), (1, 0), (0, 1), (1, 1), (0, 2)]
LATE = [((1, 2), 0), ((0, 3), 1), ((1, 3), 2)]


def f32bits(x):
    return struct.unpack("<I", struct.pack("<f", x))[0]


def Oacc(qb, t):
    k, lo = (OA, OB)[qb]
    return (k, lo + 16 * t)


def Qfrag(qb, ks):
    return ("a", (QA, QB)[qb] + 4 * ks)


def Sacc(buf, qb):
    return ("v", SB[buf] + 16 * qb)


def Pfrag(par, qb, s):
    if s == 0:
        return ("v", P0 + par * 8 + qb * 4)
    return ("v", P1 + qb * 4)


def S(text, rd=(), wr=()):
    return salu(text, rd=rd, wr=wr)


def k_read(f, slot):
    return [ds_read("ds_read_b128", "v", FB + 4 * (f % 4), 4, V_KA, KSLOT[slot] + 32 * f)]


def v_read(f, slot):
    t, s = f >> 1, f & 1
    b = FB + 4 * (f % 4)
    return [ds_read("ds_read_b64_tr_b16", "v", b + 2 * u, 2, V_VA, VSLOT[slot] + (2 * s + u) * 4 * VBLK + 64 * t) for u in (0, 1)]


def q_read(qb, ks, space):
    k, lo = Qfrag(qb, ks)
    return ds_read("ds_read_b128", k, lo, 4, V_QRD, space * QUNIT + 32 * (ks & 3))


def dma_unit(kind, j):
    slot = j & 1
    if kind == "K":
        base, blk, sl, srd, soff = S_KM0, KBLK, KSLOT, S_K, S_KOFF
    else:
        base, blk, sl, srd, soff = S_VM0, VBLK, VSLOT, S_V, S_VOFF
    rel = sl[slot] - sl[0]
    groups = []
    for q in range(4):
        g = [S(f"s_add_u32 m0, s{base}, {rel + (blk - 512) * q}", rd=[base], wr=["m0"]),
             nop(0),
             dma(V_DMA, srd, f"s{soff}", 512 * q, tag=(kind, j))]
        groups.append(g)
    upd = S(f"s_add_u32 s{soff}, s{soff}, 16384", rd=[soff], wr=[soff])
    return groups, upd


def q_dma_static(qb, lam, space, tag):
    groups = []
    for io in range(4):
        groups.append([S(f"s_add_u32 m0, s{S_QMB}, {space * QUNIT + 1056 * io}", rd=[S_QMB], wr=["m0"]),
                       S(f"s_mov_b32 s40, {qb * 16384 + lam * 128 + io * 4096}", wr=[40]),
                       dma(V_QDMA, S_Q, "s40", 0, tag=tag)])
    return groups


def softmax_steps(buf, par):
    def elem(e):
        s = e >> 4
        qb = (e >> 3) & 1
        r = 8 * s + (e & 7)
        return s, qb, r
    steps = []
    for k in range(34):
        st = []
        if k < 32:
            s, qb, r = elem(k)
            st.append(valu("v_fma_f32", TT + k % 4, SB[buf] + 16 * qb + r, f"s{S_C}", V_NMC[qb]))
        if 0 <= k - 1 < 32:
            e = k - 1
            st.append(trans("v_exp_f32", TT + e % 4, TT + e % 4))
        if 0 <= k - 2 < 32:
            e = k - 2
            s, qb, r = elem(e)
            if r == 1:
                st.append(valu("v_add_f32", V_LT[qb], TT + (e - 1) % 4, TT + e % 4))
            elif r > 1:
                st.append(valu("v_add_f32", V_LT[qb], V_LT[qb], TT + e % 4))
            if r & 1:
                pk, pl = Pfrag(par, qb, s)
                st.append(valu("v_cvt_pk_bf16_f32", pl + ((r & 7) >> 1), TT + (e - 1) % 4, TT + e % 4))
        steps.append(st)
    return steps


def swap32(a, b):
    return Ins(f"v_permlane32_swap_b32 v{a}, v{b}", rd=[("v", a), ("v", b)], wr=[("v", a), ("v", b)], kind="valu")


def row_max2(buf):
    dst = [V_T2, V_T3]
    tmp = [V_TMP, V_TMP2]
    groups = []
    b = [SB[buf], SB[buf] + 16]
    groups.append([valu("v_max3_f32", dst[q], b[q], b[q] + 1, b[q] + 2) for q in (0, 1)])
    for i in range(3, 15, 2):
        groups.append([valu("v_max3_f32", dst[q], dst[q], b[q] + i, b[q] + i + 1) for q in (0, 1)])
    groups.append([valu("v_max_f32", dst[q], dst[q], b[q] + 15) for q in (0, 1)])
    g = [valu("v_mov_b32", tmp[q], dst[q]) for q in (0, 1)]
    g += [nop(1)]
    g += [swap32(tmp[q], dst[q]) for q in (0, 1)]
    g += [nop(0)]
    g += [valu("v_max_f32", dst[q], dst[q], tmp[q]) for q in (0, 1)]
    g += [valu("v_mul_f32", V_NMC[q], f"s{S_NC}", dst[q]) for q in (0, 1)]
    groups.append(g)
    return groups


def rinv_group():
    tmp = [V_TMP, V_TMP2]
    g = [valu("v_mov_b32", tmp[q], V_L[q]) for q in (0, 1)]
    g += [nop(1)]
    g += [swap32(tmp[q], V_L[q]) for q in (0, 1)]
    g += [nop(0)]
    g += [valu("v_add_f32", V_L[q], V_L[q], tmp[q]) for q in (0, 1)]
    g += [trans("v_rcp_f32", V_RINV[q], V_L[q]) for q in (0, 1)]
    return g


def row_max(buf, qb, dst, tmp):
    b = SB[buf] + 16 * qb
    out = [valu("v_max3_f32", dst, b, b + 1, b + 2)]
    for i in range(3, 15, 2):
        out.append(valu("v_max3_f32", dst, dst, b + i, b + i + 1))
    out.append(valu("v_max_f32", dst, dst, b + 15))
    out.append(valu("v_mov_b32", tmp, dst))
    out.append(nop(1))
    out.append(swap32(tmp, dst))
    out.append(nop(0))
    out.append(valu("v_max_f32", dst, dst, tmp))
    return out


def flat(steps):
    out = []
    for st in steps:
        out += st
        out.append(nop(0))
    return out


def rare_path(par, name):
    out = [label(f"L_rare{name}")]
    out.append(nop(7))
    for qb in (0, 1):
        out += row_max(par, qb, V_T2, V_TMP)
        out.append(valu("v_mul_f32", V_T2, f"s{S_NC}", V_T2))
        out.append(valu("v_min_f32", V_T2, V_T2, V_NMC[qb]))
        out.append(valu("v_sub_f32", V_T3, V_T2, V_NMC[qb]))
        out.append(trans("v_exp_f32", V_T3, V_T3))
        out.append(valu("v_mov_b32", V_NMC[qb], V_T2))
        out.append(valu("v_mul_f32", V_L[qb], V_L[qb], V_T3))
        for r in range(128):
            if qb == 0:
                out.append(valu("v_mul_f32", r, r, V_T3))
            else:
                out.append(valu("v_accvgpr_read_b32", V_TMP, ("a", r)))
                out.append(valu("v_mul_f32", V_TMP, V_TMP, V_T3))
                out.append(valu("v_accvgpr_write_b32", ("a", r), V_TMP))
    out += flat(softmax_steps(par, par))
    out.append(nop(3))
    out.append(raw(f"s_branch L_back{name}", kind="branch"))
    return out


def pk_mul(r, qb):
    sel = "op_sel_hi:[1,0]"
    p = V_RINV[qb]
    return Ins(f"v_pk_mul_f32 v[{r}:{r+1}], v[{r}:{r+1}], v[{p}:{p+1}] {sel}",
               rd=[("v", r), ("v", r + 1), ("v", V_RINV[qb])], wr=[("v", r), ("v", r + 1)], kind="valu")


def epi_items(t):
    b = 16 * t
    ga = []
    for gp in (0, 1):
        o = b + 8 * gp
        ga.append([pk_mul(o + 2 * j, 0) for j in range(4)])
        ga.append([valu("v_cvt_pk_bf16_f32", o + e, o + 2 * e, o + 2 * e + 1) for e in range(4)])
        ga.append([bstore("v", o, 4, V_QO, S_O, "0", 64 * t + 32 * gp, tag="ST")])
    gb = []
    tmp = [b + 4, b + 5, b + 6, b + 7, b + 12, b + 13, b + 14, b + 15]
    gb.append([valu("v_accvgpr_read_b32", tmp[e], ("a", b + e)) for e in range(4)])
    gb.append([valu("v_accvgpr_read_b32", tmp[e], ("a", b + e)) for e in range(4, 8)])
    gb.append([pk_mul(tmp[2 * j], 1) for j in range(4)])
    gb.append([valu("v_cvt_pk_bf16_f32", b + 4 + e, tmp[2 * e], tmp[2 * e + 1]) for e in range(4)])
    gb.append([bstore("v", b + 4, 4, V_QO, S_O, f"s{S_16K}", 64 * t, tag="ST")])
    tmp = [b + 8 + e for e in range(8)]
    gb.append([valu("v_accvgpr_read_b32", tmp[e], ("a", b + 8 + e)) for e in range(4)])
    gb.append([valu("v_accvgpr_read_b32", tmp[e], ("a", b + 8 + e)) for e in range(4, 8)])
    gb.append([pk_mul(tmp[2 * j], 1) for j in range(4)])
    gb.append([valu("v_cvt_pk_bf16_f32", b + 8 + e, tmp[2 * e], tmp[2 * e + 1]) for e in range(4)])
    gb.append([bstore("v", b + 8, 4, V_QO, S_O, f"s{S_16K}", 64 * t + 32, tag="ST")])
    return ga, gb


def tile_params():
    o = []
    A = lambda t: o.append([S(t)])
    A(f"s_mul_hi_u32 s42, s{S_T}, 0x55555556")
    A("s_mul_i32 s43, s42, 3")
    A(f"s_sub_u32 s43, s{S_T}, s43")
    A(f"s_add_u32 s42, s42, s{S_XH}")
    A("s_mul_i32 s44, s42, 376832")
    A("s_lshl_b32 s43, s43, 17")
    A("s_add_u32 s44, s44, s43")
    A("s_lshl_b32 s45, s42, 18")
    A("s_sub_u32 s43, 376832, s43")
    o.append([S(f"s_cmp_lt_u32 s{S_T}, 96"), S("s_cselect_b32 s43, s43, 0"), S(f"s_cselect_b32 s{S_KVN}, 262144, 0")])
    o.append([S(f"s_add_u32 s{S_Q}, s32, s44"), S(f"s_addc_u32 s{S_Q+1}, s33, 0")])
    A(f"s_and_b32 s{S_Q+1}, s{S_Q+1}, 0xffff")
    A(f"s_mov_b32 s{S_Q+2}, s43")
    o.append([S(f"s_add_u32 s{S_ON}, s38, s44"), S(f"s_addc_u32 s{S_ON+1}, s39, 0")])
    A(f"s_and_b32 s{S_ON+1}, s{S_ON+1}, 0xffff")
    A(f"s_mov_b32 s{S_ON+2}, s43")
    o.append([S(f"s_add_u32 s{S_KN}, s34, s45"), S(f"s_addc_u32 s{S_KN+1}, s35, 0")])
    A(f"s_and_b32 s{S_KN+1}, s{S_KN+1}, 0xffff")
    o.append([S(f"s_add_u32 s{S_VN}, s36, s45"), S(f"s_addc_u32 s{S_VN+1}, s37, 0")])
    A(f"s_and_b32 s{S_VN+1}, s{S_VN+1}, 0xffff")
    return o


class Region:
    def __init__(self, n):
        self.n = n
        self.mf = [None] * n
        self.g = [[] for _ in range(n)]

    def add(self, gap, items):
        self.g[gap] += [x for x in items if x is not None]

    def load(self, gap):
        return sum(x.cost for x in self.g[gap])

    def place(self, seqs, name=""):
        base = [self.load(i) for i in range(self.n)]

        def attempt(level):
            ld = list(base)
            res = []
            cur = 0
            for grp, rel, dl in seqs:
                c = sum(x.cost for x in grp)
                g = max(cur, rel)
                while g <= dl and ld[g] + c > level and not (ld[g] == 0):
                    g += 1
                if g > dl:
                    return None
                ld[g] += c
                res.append(g)
                cur = g
            return res
        level = 8
        while True:
            r = attempt(level)
            if r is not None:
                break
            level += 2
            assert level < 400, "cannot place " + name
        for (grp, rel, dl), g in zip(seqs, r):
            self.g[g] += grp
        if name:
            print(f"  place {name}: level {level}")

    def flatten(self):
        out = []
        for i in range(self.n):
            if self.mf[i] is not None:
                out.append(self.mf[i])
            out += self.g[i]
        return out


def base_iteration(R_, b, role, G, name):
    par = G & 1
    np_ = par ^ 1
    first_of_tile = (role == 0)
    for ks in range(16):
        for qb in (0, 1):
            F = ("v", FB + 4 * (ks % 4))
            D = Sacc(np_, qb)
            R_.mf[b + 2 * ks + qb] = mfma32(D, F, Qfrag(qb, ks), None if ks == 0 else D)
    for f in range(16):
        t, s = f >> 1, f & 1
        for qb in (0, 1):
            F = ("v", FB + 4 * (f % 4))
            D = Oacc(qb, t)
            C = None if (first_of_tile and s == 0) else D
            R_.mf[b + 32 + 2 * f + qb] = mfma32(D, F, Pfrag(par, qb, s), C)
    for f in range(4, 16):
        R_.add(b + 2 * f - 7, k_read(f, np_))
    R_.add(b + 27, [wait_vm(("V", G)), wait_lgkm0(), barrier()] + v_read(0, par) + v_read(1, par))
    R_.add(b + 29, v_read(2, par))
    R_.add(b + 31, v_read(3, par))
    for f in range(4, 16):
        R_.add(b + 32 + 2 * f - 7, v_read(f, par))
    R_.add(b + 59, [wait_vm(("K", G + 2)), wait_lgkm0(), barrier()] + k_read(0, par) + k_read(1, par))
    R_.add(b + 61, k_read(2, par))
    R_.add(b + 63, k_read(3, par))
    grp, upd = dma_unit("K", G + 3)
    for q, g in enumerate(grp):
        R_.add(b + KD[q], g)
    R_.add(b + KD[3], [upd])
    grp, upd = dma_unit("V", G + 2)
    for q, g in enumerate(grp):
        R_.add(b + VD[q], g)
    R_.add(b + VD[3], [upd])


KD = [33, 36, 39, 42]
VD = [60, 61, 62, 63]
QD = [45, 48, 51, 54]


def softmax_part(R_, b, role, G, name, head_prev, head_next, next_true_max=False):
    par = G & 1
    np_ = par ^ 1
    st = softmax_steps(par, par)
    R_.place([(s_, b + 0, b + 28) for s_ in st[head_prev:]], name + ".tail")
    if role == 0:
        R_.add(b + 30, [valu("v_mov_b32", V_L[0], V_LT[0]), valu("v_mov_b32", V_L[1], V_LT[1])])
    else:
        R_.add(b + 29, [valu("v_add_f32", V_TMP, V_LT[0], V_LT[1])])
        R_.add(b + 30, [valu("v_cmp_nge_f32", "vcc", f"s{S_THR}", V_TMP),
                        raw(f"s_cbranch_vccnz L_rare{name}", kind="branch"),
                        label(f"L_back{name}"),
                        valu("v_add_f32", V_L[0], V_L[0], V_LT[0]),
                        valu("v_add_f32", V_L[1], V_L[1], V_LT[1])])
    st = softmax_steps(np_, np_)
    seq = []
    lo = b + 35
    if next_true_max:
        seq.append((rinv_group(), b + 32, b + 34))
        for g in row_max2(np_):
            seq.append((g, b + 34, b + 63))
    for s_ in st[:head_next]:
        seq.append((s_, lo, b + 63))
    R_.place(seq, name + ".head")


def build_loop(G):
    R_ = Region(128)
    base_iteration(R_, 0, 2, G, "l0")
    base_iteration(R_, 64, 3, G + 1, "l1")
    c = S_CNT
    pre = [S(f"s_and_b32 s40, s{c}, 1"), S("s_lshl_b32 s40, s40, 14"), S(f"s_lshr_b32 s41, s{c}, 1"),
           S("s_lshl_b32 s41, s41, 7"), S(f"s_or_b32 s{S_QS}, s40, s41"),
           S(f"s_mul_i32 s{S_QM}, s{c}, {QUNIT}"), S(f"s_add_u32 s{S_QM}, s{S_QM}, s{S_QMB}")]
    sel = [S(f"s_cmp_eq_u32 s{c}, 5"), S(f"s_cselect_b32 s{S_QS}, 256, s{S_QS}"),
           S(f"s_cselect_b32 s{S_QM}, {QDUMMY}, s{S_QM}"),
           S(f"s_cselect_b32 s{S_QSTEP}, s{S_16K}, 0x1000"),
           S("s_cselect_b64 vcc, -1, 0"),
           valu("v_cndmask_b32", V_QCUR, V_QDMA, V_PF, "vcc")]
    for k, x in enumerate(pre):
        R_.add(1 + 2 * k, [x])
    R_.add(16, sel[:3])
    R_.add(16, sel[3:])
    for io in range(4):
        R_.add(QD[io], [S(f"s_add_u32 m0, s{S_QM}, {1056 * io}", rd=[S_QM], wr=["m0"]), nop(0),
                        dma(V_QCUR, S_Q, f"s{S_QS}", 0, tag=("Q", G)),
                        S(f"s_add_u32 s{S_QS}, s{S_QS}, s{S_QSTEP}")])
    R_.add(64 + 4, [S(f"s_cmp_eq_u32 s{c}, 5"),
                    S(f"s_cselect_b32 s{S_K}, s{S_KN}, s{S_K}"),
                    S(f"s_cselect_b32 s{S_K+1}, s{S_KN+1}, s{S_K+1}"),
                    S(f"s_cselect_b32 s{S_K+2}, s{S_KVN}, s{S_K+2}"),
                    S(f"s_cselect_b32 s{S_KOFF}, 0, s{S_KOFF}")])
    softmax_part(R_, 0, 2, G, "l0", HEAD, HEAD)
    softmax_part(R_, 64, 3, G + 1, "l1", HEAD, HEAD)
    return R_


def build_special(G):
    R_ = Region(256)
    base_iteration(R_, 0, 14, G, "s14")
    base_iteration(R_, 64, 15, G + 1, "s15")
    base_iteration(R_, 128, 0, G + 2, "s0")
    base_iteration(R_, 192, 1, G + 3, "s1")
    R_.add(50, [S(f"s_mov_b32 s{S_V}, s{S_VN}"), S(f"s_mov_b32 s{S_V+1}, s{S_VN+1}"),
                S(f"s_mov_b32 s{S_V+2}, s{S_KVN}"), S(f"s_mov_b32 s{S_VOFF}, 0")])
    for u, (qb, lam) in enumerate(UNITS):
        for ksl in range(4):
            ks = 4 * lam + ksl
            R_.add(2 * ks + qb + 2, [q_read(qb, ks, u)])
    def unit_regs(qb, lam):
        r = []
        for ksl in range(4):
            k, lo = Qfrag(qb, 4 * lam + ksl)
            r += R(k, lo, 4)
        return r
    late_start = [11, 12, 19]
    for idx, ((qb, lam), space) in enumerate(LATE):
        oq, ol = UNITS[space]
        grp = q_dma_static(qb, lam, space, ("QL", G, idx))
        grp[0] = [touch(unit_regs(oq, ol))] + grp[0]
        g0 = late_start[idx]
        for io in range(4):
            R_.add(g0 + 2 * io, grp[io])
    rd_at = [64 + LR0, 64 + LR1, 64 + LR2]
    for idx, ((qb, lam), space) in enumerate(LATE):
        R_.add(rd_at[idx], [wait_vm(("QL", G, idx))] + [q_read(qb, 4 * lam + ksl, space) for ksl in range(4)])
    softmax_part(R_, 0, 14, G, "s14", HEAD, HEAD)
    softmax_part(R_, 64, 15, G + 1, "s15", HEAD, HEAD0, next_true_max=True)
    softmax_part(R_, 128, 0, G + 2, "s0", HEAD0, HEAD)
    softmax_part(R_, 192, 1, G + 3, "s1", HEAD, HEAD)
    seq = []
    for t in range(8):
        ga, gb = epi_items(t)
        rel_a = 64 + 32 + 4 * t + 2 + EREL
        rel_b = rel_a + 1
        dl = 128 + 32 + 4 * t - 1
        seq += [(g, rel_a, dl) for g in ga] + [(g, rel_b, dl) for g in gb]
    R_.place(seq, "epilogue")
    seq = [([S(f"s_mov_b32 s{S_O}, s{S_ON}"), S(f"s_mov_b32 s{S_O+1}, s{S_ON+1}"), S(f"s_mov_b32 s{S_O+2}, s{S_ON+2}")], 192 + 2, 250)]
    seq.append(([S(f"s_add_u32 s{S_T}, s{S_T}, 32")], 192 + 2, 250))
    seq += [(g, 192 + 2, 250) for g in tile_params()]
    seq.append(([S(f"s_mov_b32 s{S_CNT}, 0")], 192 + 2, 250))
    R_.place(seq, "params")
    return R_


LR0 = opt("lr0", 10)
LR1 = opt("lr1", 16)
LR2 = opt("lr2", 18)
EREL = opt("erel", 4)


def prologue(it15_vm):
    o = []
    A = o.append
    T = lambda s: A(raw(s, kind="salu"))
    T("s_cmp_ge_u32 s2, 256")
    A(raw("s_cbranch_scc1 L_end", kind="branch"))
    T("s_load_dwordx4 s[32:35], s[0:1], 0")
    T("s_load_dwordx4 s[36:39], s[0:1], 16")
    T(f"s_and_b32 s{S_XH}, s2, 7")
    T(f"s_lshl_b32 s{S_XH}, s{S_XH}, 5")
    T(f"s_lshr_b32 s{S_T}, s2, 3")
    T(f"s_mov_b32 s{S_16K}, 16384")
    A(valu("v_lshrrev_b32", V_TMP, "6", 0))
    A(valu("v_and_b32", V_T2, "63", 0))
    A(valu("v_readfirstlane_b32", f"s{S_W}", V_TMP))
    A(raw("s_waitcnt lgkmcnt(0)", kind="wait"))
    for g in tile_params():
        o += g
    T(f"s_mov_b32 s{S_Q+3}, 0x00020000")
    T(f"s_mov_b32 s{S_K}, s{S_KN}")
    T(f"s_mov_b32 s{S_K+1}, s{S_KN+1}")
    T(f"s_mov_b32 s{S_K+2}, 262144")
    T(f"s_mov_b32 s{S_K+3}, 0x00020000")
    T(f"s_mov_b32 s{S_V}, s{S_VN}")
    T(f"s_mov_b32 s{S_V+1}, s{S_VN+1}")
    T(f"s_mov_b32 s{S_V+2}, 262144")
    T(f"s_mov_b32 s{S_V+3}, 0x00020000")
    T(f"s_mov_b32 s{S_O}, s{S_ON}")
    T(f"s_mov_b32 s{S_O+1}, s{S_ON+1}")
    T(f"s_mov_b32 s{S_O+2}, 0")
    T(f"s_mov_b32 s{S_O+3}, 0x00020000")
    T(f"s_mov_b32 s{S_C}, {f32bits(SCALE):#x}")
    T(f"s_mov_b32 s{S_NC}, {f32bits(-SCALE):#x}")
    T(f"s_mov_b32 s{S_THR}, {f32bits(4096.0):#x}")
    T(f"s_mov_b32 s{S_KOFF}, 0")
    T(f"s_mov_b32 s{S_VOFF}, 0")
    T(f"s_mov_b32 s{S_RHO}, 0")
    T(f"s_mul_i32 s{S_KM0}, s{S_W}, {4*KBLK}")
    T(f"s_add_u32 s{S_KM0}, s{S_KM0}, {KSLOT[0]}")
    T(f"s_mul_i32 s{S_VM0}, s{S_W}, {4*VBLK}")
    T(f"s_add_u32 s{S_VM0}, s{S_VM0}, {VSLOT[0]}")
    T(f"s_mul_i32 s{S_QMB}, s{S_W}, {5*QUNIT}")
    T(f"s_add_u32 s{S_QMB}, s{S_QMB}, {QBASE}")
    L = V_T2
    A(valu("v_lshrrev_b32", V_TMP, "5", L))
    A(valu("v_lshlrev_b32", V_DMA, "11", V_TMP))
    A(valu("v_and_b32", V_T3, "31", L))
    A(valu("v_lshl_add_u32", V_DMA, V_T3, "4", V_DMA))
    T(f"s_lshl_b32 s46, s{S_W}, 12")
    A(valu("v_add_u32", V_DMA, "s46", V_DMA))
    A(valu("v_and_b32", V_KA, "3", V_T3))
    A(valu("v_lshrrev_b32", TT, "3", V_T3))
    A(valu("v_lshl_add_u32", V_KA, TT, "2", V_KA))
    T(f"s_movk_i32 s46, {KBLK}")
    A(valu("v_mul_lo_u32", V_KA, V_KA, "s46"))
    A(valu("v_bfe_u32", TT, V_T3, "2", "1"))
    A(valu("v_lshl_add_u32", V_KA, TT, "9", V_KA))
    A(valu("v_lshl_add_u32", V_KA, V_TMP, "4", V_KA))
    T(f"s_lshl_b32 s47, s{S_W}, 15")
    A(valu("v_lshrrev_b32", TT, "3", L))
    A(valu("v_bfe_u32", TT + 1, L, "4", "1"))
    A(valu("v_and_b32", TT + 2, "7", L))
    A(valu("v_xor_b32", TT + 2, TT + 2, TT + 1))
    A(valu("v_lshlrev_b32", V_QDMA, "9", TT))
    A(valu("v_lshl_add_u32", V_QDMA, TT + 2, "4", V_QDMA))
    A(valu("v_add_u32", V_QDMA, "s47", V_QDMA))
    def issue(kind, j):
        grp, upd = dma_unit(kind, j)
        r = []
        for g in grp:
            r += g
        r.append(upd)
        return r
    o += issue("K", 0)
    for u, (qb, lam) in enumerate(UNITS):
        for g in q_dma_static(qb, lam, u, ("Q0", u)):
            o += g
    A(valu("v_lshlrev_b32", V_QO, "9", V_T3))
    A(valu("v_add_u32", V_QO, "s47", V_QO))
    A(valu("v_lshl_add_u32", V_PF, V_TMP, "7", V_QO))
    A(valu("v_lshl_add_u32", V_QO, V_TMP, "4", V_QO))
    for (qb, lam), _ in LATE:
        for ksl in range(4):
            ks = 4 * lam + ksl
            k, lo = Qfrag(qb, ks)
            A(bload(k, lo, 4, V_QO, S_Q, f"s{S_16K}" if qb else "0", 32 * ks, tag="QD"))
    o += issue("K", 1)
    o += issue("V", 0)
    A(valu("v_bfe_u32", V_VA, L, "2", "2"))
    T(f"s_movk_i32 s46, {VBLK}")
    A(valu("v_mul_lo_u32", V_VA, V_VA, "s46"))
    A(valu("v_lshl_add_u32", V_VA, V_TMP, "9", V_VA))
    A(valu("v_bfe_u32", TT, L, "4", "1"))
    A(valu("v_lshl_add_u32", V_VA, TT, "5", V_VA))
    A(valu("v_and_b32", TT, "1", L))
    A(valu("v_lshl_add_u32", V_VA, TT, "4", V_VA))
    A(valu("v_bfe_u32", TT, L, "1", "1"))
    A(valu("v_lshl_add_u32", V_VA, TT, "3", V_VA))
    A(valu("v_lshrrev_b32", TT, "3", V_T3))
    T("s_movk_i32 s46, 1056")
    A(valu("v_mul_lo_u32", V_QRD, TT, "s46"))
    A(valu("v_and_b32", TT, "7", V_T3))
    A(valu("v_lshl_add_u32", V_QRD, TT, "7", V_QRD))
    A(valu("v_bfe_u32", TT, V_T3, "1", "1"))
    A(valu("v_xor_b32", TT, TT, V_TMP))
    A(valu("v_lshl_add_u32", V_QRD, TT, "4", V_QRD))
    A(valu("v_add_u32", V_QRD, f"s{S_QMB}", V_QRD))
    A(valu("v_mov_b32", V_RINV[0], "0"))
    A(valu("v_mov_b32", V_RINV[1], "0"))
    A(wait_vm(("K", 0)))
    A(barrier())
    for f in range(4):
        o += k_read(f, 0)
    for ks in range(16):
        lam = ks >> 2
        if (ks & 3) == 0:
            for u, (qb, l2) in enumerate(UNITS):
                if l2 == lam:
                    A(wait_vm(("Q0", u)))
                    for ksl in range(4):
                        A(q_read(qb, 4 * lam + ksl, u))
        for qb in (0, 1):
            F = ("v", FB + 4 * (ks % 4))
            D = Sacc(0, qb)
            A(mfma32(D, F, Qfrag(qb, ks), None if ks == 0 else D))
            g = 2 * ks + qb
            if g >= 1 and (g + 7) % 2 == 0 and 4 <= (g + 7) // 2 < 16:
                o += k_read((g + 7) // 2, 0)
            if g == 27:
                o += [raw("s_waitcnt vmcnt(0)", kind="wait"), wait_lgkm0(), barrier()]
                o += k_read(0, 1) + k_read(1, 1)
            if g == 29:
                o += k_read(2, 1)
            if g == 31:
                o += k_read(3, 1)
    o += it15_vm
    A(nop(7))
    for g in row_max2(0):
        o += g
    o += flat(softmax_steps(0, 0)[:HEAD0])
    A(wait_lgkm0())
    return o


def stamp(k):
    if not STAMP:
        return []
    return [raw(f"s_memtime s[{64+2*k}:{65+2*k}]", kind="salu"), raw("s_waitcnt lgkmcnt(0)", kind="wait")]


def stamp_out(n):
    if not STAMP:
        return []
    o = []
    T = lambda s: o.append(raw(s, kind="salu"))
    T("s_waitcnt vmcnt(0)")
    o += stamp(n)
    T("s_mov_b32 s60, -1")
    T("s_cmp_eq_u32 s2, 0")
    T("s_cselect_b32 s60, 0, s60")
    T("s_cmp_eq_u32 s2, 123")
    T("s_cselect_b32 s60, 64, s60")
    T("s_cmp_eq_u32 s60, -1")
    T("s_cbranch_scc1 L_end")
    T(f"s_cmp_lg_u32 s{S_W}, 0")
    T("s_cbranch_scc1 L_end")
    T("s_load_dwordx2 s[32:33], s[0:1], 32")
    T("s_waitcnt lgkmcnt(0)")
    T("s_mov_b32 s34, 256")
    T("s_mov_b32 s35, 0x00020000")
    for k in range(n):
        T(f"s_sub_u32 s40, s{64+2*(k+1)}, s{64+2*k}")
        T(f"v_mov_b32 v{k}, s40")
    T("v_mov_b32 v16, s60")
    T("s_mov_b64 exec, 1")
    for k in range(n):
        T(f"buffer_store_dword v{k}, v16, s[32:35], 0 offen offset:{4*k}")
    return o


def main():
    st = WaitState()
    G = 14
    rounds = []
    import io, contextlib
    for r in range(3):
        buf = io.StringIO()
        with contextlib.redirect_stdout(buf):
            Sx = build_special(G)
            L1 = build_loop(G + 4)
            L2 = build_loop(G + 6)
        if r == 2:
            print(buf.getvalue(), end="")
            for nm, Rg in (("S", Sx), ("L", L1)):
                print(nm, "loads:", " ".join(str(Rg.load(i)) for i in range(Rg.n)))
                print(nm, "over24:", sum(max(0, Rg.load(i) - 24) for i in range(Rg.n)))
        fl = Sx.flatten()
        sr = insert_waits(fl, st)
        l1 = insert_waits(L1.flatten(), st)
        l2 = insert_waits(L2.flatten(), st)
        rounds.append((sr, l1, l2))
        G += 16
        G -= 8
    sr, l1, l2 = rounds[2]
    tx = lambda s: [x.text for x in s]
    assert tx(l1) == tx(l2), "loop not steady"
    assert tx(rounds[1][0]) == tx(sr), "special not steady"
    assert tx(rounds[1][1]) == tx(l1)
    mcount = 0
    split0 = None
    split15 = None
    split1 = None
    for i, x in enumerate(sr):
        if x.kind == "mfma":
            if mcount == 128:
                split0 = i
            if mcount == 64:
                split15 = i
            if mcount == 192:
                split1 = i
            mcount += 1
    while sr[split0 - 1].kind == "wait":
        split0 -= 1
    while sr[split1 - 1].kind == "wait":
        split1 -= 1
    s_a = sr[:split0]
    s_b = sr[split0:split1]
    s_c = sr[split1:]
    it15 = sr[split15:split0]
    vm = []
    started = False
    last_m0 = None
    for x in it15:
        if x.kind == "salu" and x.text.startswith("s_add_u32 m0"):
            last_m0 = x
        if x.kind == "dma" and x.tag[0] == "K":
            started = True
        if started:
            if x.kind == "dma":
                assert x.tag[0] in ("K", "V")
                vm += [last_m0, nop(0), x]
            elif x.kind == "vmem_st":
                vm.append(x)
            elif x.kind == "salu" and (x.text.startswith(f"s_add_u32 s{S_KOFF},") or x.text.startswith(f"s_add_u32 s{S_VOFF},")):
                vm.append(x)
    pro = prologue([uncountedcopy(x) for x in vm])
    pro_r = insert_waits(pro, WaitState())
    loop_ctl = [raw(f"s_add_u32 s{S_CNT}, s{S_CNT}, 1", kind="salu"),
                raw(f"s_cmp_lt_u32 s{S_CNT}, 6", kind="salu"),
                raw("s_cbranch_scc1 L_loop", kind="branch")]
    exit_ctl = [raw(f"s_add_u32 s{S_RHO}, s{S_RHO}, 1", kind="salu"),
                raw(f"s_cmp_eq_u32 s{S_RHO}, 4", kind="salu"),
                raw("s_cbranch_scc1 L_fin", kind="branch")]
    back = [raw("s_branch L_it0", kind="branch")]
    check_hazards(pro_r + s_b + exit_ctl + s_c + l1 + loop_ctl + l1 + loop_ctl + s_a + s_b + exit_ctl + s_c + l1, "main")
    names = [("l0", 0), ("l1", 1), ("s14", 0), ("s15", 1), ("s1", 1)]
    for nm, par in names:
        check_hazards(rare_path(par, nm), "rare")
    seq = pro_r[:2] + stamp(0) + pro_r[2:] + stamp(1) + [raw("s_branch L_it0", kind="branch")]
    seq += [label("L_sa")] + s_a + [label("L_it0")] + s_b + exit_ctl + s_c + [label("L_loop")] + l1 + loop_ctl
    seq += [raw("s_branch L_sa", kind="branch")]
    seq += [label("L_fin")] + stamp_out(2) + [label("L_end"), raw("s_endpgm")]
    for nm, par in names:
        seq += rare_path(par, nm)
    hdr = open(f"cdna_kernels/{NAME}.s.ref").read().split("\n")
    head = [l for l in hdr if l.startswith(";") and "@launch" not in l and "Override" not in l and "grid=ceil" not in l]
    txt = "\n".join(head) + "\n"
    txt += f"; @launch grid=(256,1,1) block=(256,1,1) lds={LDS_BYTES}\n"
    txt += f'.amdgcn_target "amdgcn-amd-amdhsa--gfx950"\n.text\n.globl {NAME}_kernel\n.p2align 8\n.type {NAME}_kernel,@function\n{NAME}_kernel:\n'
    txt += render(seq) + "\n"
    txt += f""".section .rodata,"a"
.p2align 6
.amdhsa_kernel {NAME}_kernel
  .amdhsa_next_free_vgpr 512
  .amdhsa_next_free_sgpr 96
  .amdhsa_accum_offset 256
  .amdhsa_group_segment_fixed_size 0
  .amdhsa_kernarg_size 48
  .amdhsa_user_sgpr_count 2
  .amdhsa_user_sgpr_kernarg_segment_ptr 1
  .amdhsa_system_sgpr_workgroup_id_x 1
.end_amdhsa_kernel
"""
    out = sys.argv[1] if len(sys.argv) > 1 else f"cdna_kernels/{NAME}.s"
    open(out, "w").write(txt)
    print("wrote", out, len(seq), "instructions")


def uncountedcopy(x):
    y = Ins(x.text, rd=x.rd, wr=x.wr, kind=x.kind, cost=x.cost, tag=x.tag)
    return y


main()
```

```python
import sys, math, struct
sys.path.insert(0, "work")
from fw import *

NAME = "standalone__mha_softmax__near_ridge"
ARGS = sys.argv[2:]
STAMP = "stamp" in ARGS


def opt(name, default):
    for a in ARGS:
        if a.startswith(name + "="):
            return int(a.split("=")[1])
    return default


OA = ("v", 0)
OB = ("a", 0)
QA = 128
QB = 192
SB = [128, 160]
P0 = 192
P1 = 208
FB = 216
TT = 232
V_KA, V_VA, V_DMA = 236, 237, 238
V_NMC = [239, 240]
V_L = [241, 242]
V_LT = [243, 244]
V_TMP = 245
V_QO = 246
V_T2 = 247
V_T3 = 248
V_QDMA = 249
V_QRD = 250
V_PF = 251
V_RINV = [252, 254]
V_QCUR = 253
V_TMP2 = 255

S_Q, S_K, S_V, S_O = 4, 8, 12, 16
S_XH = 3
S_W = 20
S_C = 21
S_THR = 22
S_KOFF = 23
S_VOFF = 24
S_KM0 = 25
S_VM0 = 26
S_CNT = 27
S_QS = 28
S_QSTEP = 29
S_NC = 30
S_QM = 31
S_KN = 48
S_VN = 50
S_KVN = 52
S_16K = 53
S_ON = 54
S_T = 57
S_QMB = 58
S_RHO = 59

KBLK, VBLK = 1040, 1088
KSLOT = [0, 16 * KBLK]
VSLOT = [32 * KBLK, 32 * KBLK + 16 * VBLK]
QBASE = 32 * KBLK + 32 * VBLK
QUNIT = 4224
QDUMMY = QBASE + 4 * 5 * QUNIT
LDS_BYTES = QDUMMY + 4224

SCALE = (256 ** -0.5) * math.log2(math.e)
HEAD = opt("head", 19)
HEAD0 = opt("head0", 12)
UNITS = [(0, 0), (1, 0), (0, 1), (1, 1), (0, 2)]
LATE = [((1, 2), 0), ((0, 3), 1), ((1, 3), 2)]


def f32bits(x):
    return struct.unpack("<I", struct.pack("<f", x))[0]


def Oacc(qb, t):
    k, lo = (OA, OB)[qb]
    return (k, lo + 16 * t)


def Qfrag(qb, ks):
    return ("a", (QA, QB)[qb] + 4 * ks)


def Sacc(buf, qb):
    return ("v", SB[buf] + 16 * qb)


def Pfrag(par, qb, s):
    if s == 0:
        return ("v", P0 + par * 8 + qb * 4)
    return ("v", P1 + qb * 4)


def S(text, rd=(), wr=()):
    return salu(text, rd=rd, wr=wr)


def k_read(f, slot):
    return [ds_read("ds_read_b128", "v", FB + 4 * (f % 4), 4, V_KA, KSLOT[slot] + 32 * f)]


def v_read(f, slot):
    t, s = f >> 1, f & 1
    b = FB + 4 * (f % 4)
    return [ds_read("ds_read_b64_tr_b16", "v", b + 2 * u, 2, V_VA, VSLOT[slot] + (2 * s + u) * 4 * VBLK + 64 * t) for u in (0, 1)]


def q_read(qb, ks, space):
    k, lo = Qfrag(qb, ks)
    return ds_read("ds_read_b128", k, lo, 4, V_QRD, space * QUNIT + 32 * (ks & 3))


def dma_unit(kind, j):
    slot = j & 1
    if kind == "K":
        base, blk, sl, srd, soff = S_KM0, KBLK, KSLOT, S_K, S_KOFF
    else:
        base, blk, sl, srd, soff = S_VM0, VBLK, VSLOT, S_V, S_VOFF
    rel = sl[slot] - sl[0]
    groups = []
    for q in range(4):
        g = [S(f"s_add_u32 m0, s{base}, {rel + (blk - 512) * q}", rd=[base], wr=["m0"]),
             nop(0),
             dma(V_DMA, srd, f"s{soff}", 512 * q, tag=(kind, j))]
        groups.append(g)
    upd = S(f"s_add_u32 s{soff}, s{soff}, 16384", rd=[soff], wr=[soff])
    return groups, upd


def q_dma_static(qb, lam, space, tag):
    groups = []
    for io in range(4):
        groups.append([S(f"s_add_u32 m0, s{S_QMB}, {space * QUNIT + 1056 * io}", rd=[S_QMB], wr=["m0"]),
                       S(f"s_mov_b32 s40, {qb * 16384 + lam * 128 + io * 4096}", wr=[40]),
                       dma(V_QDMA, S_Q, "s40", 0, tag=tag)])
    return groups


def softmax_steps(buf, par):
    def elem(e):
        s = e >> 4
        qb = (e >> 3) & 1
        r = 8 * s + (e & 7)
        return s, qb, r
    steps = []
    for k in range(34):
        st = []
        if k < 32:
            s, qb, r = elem(k)
            st.append(valu("v_fma_f32", TT + k % 4, SB[buf] + 16 * qb + r, f"s{S_C}", V_NMC[qb]))
        if 0 <= k - 1 < 32:
            e = k - 1
            st.append(trans("v_exp_f32", TT + e % 4, TT + e % 4))
        if 0 <= k - 2 < 32:
            e = k - 2
            s, qb, r = elem(e)
            if r == 1:
                st.append(valu("v_add_f32", V_LT[qb], TT + (e - 1) % 4, TT + e % 4))
            elif r > 1:
                st.append(valu("v_add_f32", V_LT[qb], V_LT[qb], TT + e % 4))
            if r & 1:
                pk, pl = Pfrag(par, qb, s)
                st.append(valu("v_cvt_pk_bf16_f32", pl + ((r & 7) >> 1), TT + (e - 1) % 4, TT + e % 4))
        steps.append(st)
    return steps


def swap32(a, b):
    return Ins(f"v_permlane32_swap_b32 v{a}, v{b}", rd=[("v", a), ("v", b)], wr=[("v", a), ("v", b)], kind="valu")


def row_max2(buf):
    dst = [V_T2, V_T3]
    tmp = [V_TMP, V_TMP2]
    groups = []
    b = [SB[buf], SB[buf] + 16]
    groups.append([valu("v_max3_f32", dst[q], b[q], b[q] + 1, b[q] + 2) for q in (0, 1)])
    for i in range(3, 15, 2):
        groups.append([valu("v_max3_f32", dst[q], dst[q], b[q] + i, b[q] + i + 1) for q in (0, 1)])
    groups.append([valu("v_max_f32", dst[q], dst[q], b[q] + 15) for q in (0, 1)])
    g = [valu("v_mov_b32", tmp[q], dst[q]) for q in (0, 1)]
    g += [nop(1)]
    g += [swap32(tmp[q], dst[q]) for q in (0, 1)]
    g += [nop(0)]
    g += [valu("v_max_f32", dst[q], dst[q], tmp[q]) for q in (0, 1)]
    g += [valu("v_mul_f32", V_NMC[q], f"s{S_NC}", dst[q]) for q in (0, 1)]
    groups.append(g)
    return groups


def rinv_group():
    tmp = [V_TMP, V_TMP2]
    g = [valu("v_mov_b32", tmp[q], V_L[q]) for q in (0, 1)]
    g += [nop(1)]
    g += [swap32(tmp[q], V_L[q]) for q in (0, 1)]
    g += [nop(0)]
    g += [valu("v_add_f32", V_L[q], V_L[q], tmp[q]) for q in (0, 1)]
    g += [trans("v_rcp_f32", V_RINV[q], V_L[q]) for q in (0, 1)]
    return g


def row_max(buf, qb, dst, tmp):
    b = SB[buf] + 16 * qb
    out = [valu("v_max3_f32", dst, b, b + 1, b + 2)]
    for i in range(3, 15, 2):
        out.append(valu("v_max3_f32", dst, dst, b + i, b + i + 1))
    out.append(valu("v_max_f32", dst, dst, b + 15))
    out.append(valu("v_mov_b32", tmp, dst))
    out.append(nop(1))
    out.append(swap32(tmp, dst))
    out.append(nop(0))
    out.append(valu("v_max_f32", dst, dst, tmp))
    return out


def flat(steps):
    out = []
    for st in steps:
        out += st
        out.append(nop(0))
    return out


def rare_path(par, name):
    out = [label(f"L_rare{name}")]
    out.append(nop(7))
    for qb in (0, 1):
        out += row_max(par, qb, V_T2, V_TMP)
        out.append(valu("v_mul_f32", V_T2, f"s{S_NC}", V_T2))
        out.append(valu("v_min_f32", V_T2, V_T2, V_NMC[qb]))
        out.append(valu("v_sub_f32", V_T3, V_T2, V_NMC[qb]))
        out.append(trans("v_exp_f32", V_T3, V_T3))
        out.append(valu("v_mov_b32", V_NMC[qb], V_T2))
        out.append(valu("v_mul_f32", V_L[qb], V_L[qb], V_T3))
        for r in range(128):
            if qb == 0:
                out.append(valu("v_mul_f32", r, r, V_T3))
            else:
                out.append(valu("v_accvgpr_read_b32", V_TMP, ("a", r)))
                out.append(valu("v_mul_f32", V_TMP, V_TMP, V_T3))
                out.append(valu("v_accvgpr_write_b32", ("a", r), V_TMP))
    out += flat(softmax_steps(par, par))
    out.append(nop(3))
    out.append(raw(f"s_branch L_back{name}", kind="branch"))
    return out


def pk_mul(r, qb):
    sel = "op_sel_hi:[1,0]"
    p = V_RINV[qb]
    return Ins(f"v_pk_mul_f32 v[{r}:{r+1}], v[{r}:{r+1}], v[{p}:{p+1}] {sel}",
               rd=[("v", r), ("v", r + 1), ("v", V_RINV[qb])], wr=[("v", r), ("v", r + 1)], kind="valu")


def epi_items(t):
    b = 16 * t
    ga = []
    for gp in (0, 1):
        o = b + 8 * gp
        ga.append([pk_mul(o + 2 * j, 0) for j in range(4)])
        ga.append([valu("v_cvt_pk_bf16_f32", o + e, o + 2 * e, o + 2 * e + 1) for e in range(4)])
        ga.append([bstore("v", o, 4, V_QO, S_O, "0", 64 * t + 32 * gp, tag="ST")])
    gb = []
    tmp = [b + 4, b + 5, b + 6, b + 7, b + 12, b + 13, b + 14, b + 15]
    gb.append([valu("v_accvgpr_read_b32", tmp[e], ("a", b + e)) for e in range(4)])
    gb.append([valu("v_accvgpr_read_b32", tmp[e], ("a", b + e)) for e in range(4, 8)])
    gb.append([pk_mul(tmp[2 * j], 1) for j in range(4)])
    gb.append([valu("v_cvt_pk_bf16_f32", b + 4 + e, tmp[2 * e], tmp[2 * e + 1]) for e in range(4)])
    gb.append([bstore("v", b + 4, 4, V_QO, S_O, f"s{S_16K}", 64 * t, tag="ST")])
    tmp = [b + 8 + e for e in range(8)]
    gb.append([valu("v_accvgpr_read_b32", tmp[e], ("a", b + 8 + e)) for e in range(4)])
    gb.append([valu("v_accvgpr_read_b32", tmp[e], ("a", b + 8 + e)) for e in range(4, 8)])
    gb.append([pk_mul(tmp[2 * j], 1) for j in range(4)])
    gb.append([valu("v_cvt_pk_bf16_f32", b + 8 + e, tmp[2 * e], tmp[2 * e + 1]) for e in range(4)])
    gb.append([bstore("v", b + 8, 4, V_QO, S_O, f"s{S_16K}", 64 * t + 32, tag="ST")])
    return ga, gb


def tile_params():
    o = []
    A = lambda t: o.append([S(t)])
    A(f"s_mul_hi_u32 s42, s{S_T}, 0x55555556")
    A("s_mul_i32 s43, s42, 3")
    A(f"s_sub_u32 s43, s{S_T}, s43")
    A(f"s_add_u32 s42, s42, s{S_XH}")
    A("s_mul_i32 s44, s42, 376832")
    A("s_lshl_b32 s43, s43, 17")
    A("s_add_u32 s44, s44, s43")
    A("s_lshl_b32 s45, s42, 18")
    A("s_sub_u32 s43, 376832, s43")
    o.append([S(f"s_cmp_lt_u32 s{S_T}, 96"), S("s_cselect_b32 s43, s43, 0"), S(f"s_cselect_b32 s{S_KVN}, 262144, 0")])
    o.append([S(f"s_add_u32 s{S_Q}, s32, s44"), S(f"s_addc_u32 s{S_Q+1}, s33, 0")])
    A(f"s_and_b32 s{S_Q+1}, s{S_Q+1}, 0xffff")
    A(f"s_mov_b32 s{S_Q+2}, s43")
    o.append([S(f"s_add_u32 s{S_ON}, s38, s44"), S(f"s_addc_u32 s{S_ON+1}, s39, 0")])
    A(f"s_and_b32 s{S_ON+1}, s{S_ON+1}, 0xffff")
    A(f"s_mov_b32 s{S_ON+2}, s43")
    o.append([S(f"s_add_u32 s{S_KN}, s34, s45"), S(f"s_addc_u32 s{S_KN+1}, s35, 0")])
    A(f"s_and_b32 s{S_KN+1}, s{S_KN+1}, 0xffff")
    o.append([S(f"s_add_u32 s{S_VN}, s36, s45"), S(f"s_addc_u32 s{S_VN+1}, s37, 0")])
    A(f"s_and_b32 s{S_VN+1}, s{S_VN+1}, 0xffff")
    return o


class Region:
    def __init__(self, n):
        self.n = n
        self.mf = [None] * n
        self.g = [[] for _ in range(n)]

    def add(self, gap, items):
        self.g[gap] += [x for x in items if x is not None]

    def load(self, gap):
        return sum(x.cost for x in self.g[gap])

    def place(self, seqs, name=""):
        base = [self.load(i) for i in range(self.n)]

        def attempt(level):
            ld = list(base)
            res = []
            cur = 0
            for grp, rel, dl in seqs:
                c = sum(x.cost for x in grp)
                g = max(cur, rel)
                while g <= dl and ld[g] + c > level and not (ld[g] == 0):
                    g += 1
                if g > dl:
                    return None
                ld[g] += c
                res.append(g)
                cur = g
            return res
        level = 8
        while True:
            r = attempt(level)
            if r is not None:
                break
            level += 2
            assert level < 400, "cannot place " + name
        for (grp, rel, dl), g in zip(seqs, r):
            self.g[g] += grp
        if name:
            print(f"  place {name}: level {level}")

    def flatten(self):
        out = []
        for i in range(self.n):
            if self.mf[i] is not None:
                out.append(self.mf[i])
            out += self.g[i]
        return out


def base_iteration(R_, b, role, G, name):
    par = G & 1
    np_ = par ^ 1
    first_of_tile = (role == 0)
    for ks in range(16):
        for qb in (0, 1):
            F = ("v", FB + 4 * (ks % 4))
            D = Sacc(np_, qb)
            R_.mf[b + 2 * ks + qb] = mfma32(D, F, Qfrag(qb, ks), None if ks == 0 else D)
    for f in range(16):
        t, s = f >> 1, f & 1
        for qb in (0, 1):
            F = ("v", FB + 4 * (f % 4))
            D = Oacc(qb, t)
            C = None if (first_of_tile and s == 0) else D
            R_.mf[b + 32 + 2 * f + qb] = mfma32(D, F, Pfrag(par, qb, s), C)
    for f in range(4, 16):
        R_.add(b + 2 * f - 7, k_read(f, np_))
    R_.add(b + 27, [wait_vm(("V", G)), wait_lgkm0(), barrier()] + v_read(0, par) + v_read(1, par))
    R_.add(b + 29, v_read(2, par))
    R_.add(b + 31, v_read(3, par))
    for f in range(4, 16):
        R_.add(b + 32 + 2 * f - 7, v_read(f, par))
    R_.add(b + 59, [wait_vm(("K", G + 2)), wait_lgkm0(), barrier()] + k_read(0, par) + k_read(1, par))
    R_.add(b + 61, k_read(2, par))
    R_.add(b + 63, k_read(3, par))
    grp, upd = dma_unit("K", G + 3)
    for q, g in enumerate(grp):
        R_.add(b + KD[q], g)
    R_.add(b + KD[3], [upd])
    grp, upd = dma_unit("V", G + 2)
    for q, g in enumerate(grp):
        R_.add(b + VD[q], g)
    R_.add(b + VD[3], [upd])


KD = [33, 36, 39, 42]
VD = [60, 61, 62, 63]
QD = [45, 48, 51, 54]


def softmax_part(R_, b, role, G, name, head_prev, head_next, next_true_max=False):
    par = G & 1
    np_ = par ^ 1
    st = softmax_steps(par, par)
    R_.place([(s_, b + 0, b + 28) for s_ in st[head_prev:]], name + ".tail")
    if role == 0:
        R_.add(b + 30, [valu("v_mov_b32", V_L[0], V_LT[0]), valu("v_mov_b32", V_L[1], V_LT[1])])
    else:
        R_.add(b + 29, [valu("v_add_f32", V_TMP, V_LT[0], V_LT[1])])
        R_.add(b + 30, [valu("v_cmp_nge_f32", "vcc", f"s{S_THR}", V_TMP),
                        raw(f"s_cbranch_vccnz L_rare{name}", kind="branch"),
                        label(f"L_back{name}"),
                        valu("v_add_f32", V_L[0], V_L[0], V_LT[0]),
                        valu("v_add_f32", V_L[1], V_L[1], V_LT[1])])
    st = softmax_steps(np_, np_)
    seq = []
    lo = b + 35
    if next_true_max:
        seq.append((rinv_group(), b + 32, b + 34))
        for g in row_max2(np_):
            seq.append((g, b + 34, b + 63))
    for s_ in st[:head_next]:
        seq.append((s_, lo, b + 63))
    R_.place(seq, name + ".head")


def build_loop(G):
    R_ = Region(128)
    base_iteration(R_, 0, 2, G, "l0")
    base_iteration(R_, 64, 3, G + 1, "l1")
    c = S_CNT
    pre = [S(f"s_and_b32 s40, s{c}, 1"), S("s_lshl_b32 s40, s40, 14"), S(f"s_lshr_b32 s41, s{c}, 1"),
           S("s_lshl_b32 s41, s41, 7"), S(f"s_or_b32 s{S_QS}, s40, s41"),
           S(f"s_mul_i32 s{S_QM}, s{c}, {QUNIT}"), S(f"s_add_u32 s{S_QM}, s{S_QM}, s{S_QMB}")]
    sel = [S(f"s_cmp_eq_u32 s{c}, 5"), S(f"s_cselect_b32 s{S_QS}, 256, s{S_QS}"),
           S(f"s_cselect_b32 s{S_QM}, {QDUMMY}, s{S_QM}"),
           S(f"s_cselect_b32 s{S_QSTEP}, s{S_16K}, 0x1000"),
           S("s_cselect_b64 vcc, -1, 0"),
           valu("v_cndmask_b32", V_QCUR, V_QDMA, V_PF, "vcc")]
    for k, x in enumerate(pre):
        R_.add(1 + 2 * k, [x])
    R_.add(16, sel[:3])
    R_.add(16, sel[3:])
    for io in range(4):
        R_.add(QD[io], [S(f"s_add_u32 m0, s{S_QM}, {1056 * io}", rd=[S_QM], wr=["m0"]), nop(0),
                        dma(V_QCUR, S_Q, f"s{S_QS}", 0, tag=("Q", G)),
                        S(f"s_add_u32 s{S_QS}, s{S_QS}, s{S_QSTEP}")])
    R_.add(64 + 4, [S(f"s_cmp_eq_u32 s{c}, 5"),
                    S(f"s_cselect_b32 s{S_K}, s{S_KN}, s{S_K}"),
                    S(f"s_cselect_b32 s{S_K+1}, s{S_KN+1}, s{S_K+1}"),
                    S(f"s_cselect_b32 s{S_K+2}, s{S_KVN}, s{S_K+2}"),
                    S(f"s_cselect_b32 s{S_KOFF}, 0, s{S_KOFF}")])
    softmax_part(R_, 0, 2, G, "l0", HEAD, HEAD)
    softmax_part(R_, 64, 3, G + 1, "l1", HEAD, HEAD)
    return R_


def build_special(G):
    R_ = Region(256)
    base_iteration(R_, 0, 14, G, "s14")
    base_iteration(R_, 64, 15, G + 1, "s15")
    base_iteration(R_, 128, 0, G + 2, "s0")
    base_iteration(R_, 192, 1, G + 3, "s1")
    R_.add(50, [S(f"s_mov_b32 s{S_V}, s{S_VN}"), S(f"s_mov_b32 s{S_V+1}, s{S_VN+1}"),
                S(f"s_mov_b32 s{S_V+2}, s{S_KVN}"), S(f"s_mov_b32 s{S_VOFF}, 0")])
    for u, (qb, lam) in enumerate(UNITS):
        for ksl in range(4):
            ks = 4 * lam + ksl
            R_.add(2 * ks + qb + 2, [q_read(qb, ks, u)])
    def unit_regs(qb, lam):
        r = []
        for ksl in range(4):
            k, lo = Qfrag(qb, 4 * lam + ksl)
            r += R(k, lo, 4)
        return r
    late_start = [11, 12, 19]
    for idx, ((qb, lam), space) in enumerate(LATE):
        oq, ol = UNITS[space]
        grp = q_dma_static(qb, lam, space, ("QL", G, idx))
        grp[0] = [touch(unit_regs(oq, ol))] + grp[0]
        g0 = late_start[idx]
        for io in range(4):
            R_.add(g0 + 2 * io, grp[io])
    rd_at = [64 + LR0, 64 + LR1, 64 + LR2]
    for idx, ((qb, lam), space) in enumerate(LATE):
        R_.add(rd_at[idx], [wait_vm(("QL", G, idx))] + [q_read(qb, 4 * lam + ksl, space) for ksl in range(4)])
    softmax_part(R_, 0, 14, G, "s14", HEAD, HEAD)
    softmax_part(R_, 64, 15, G + 1, "s15", HEAD, HEAD0, next_true_max=True)
    softmax_part(R_, 128, 0, G + 2, "s0", HEAD0, HEAD)
    softmax_part(R_, 192, 1, G + 3, "s1", HEAD, HEAD)
    seq = []
    for t in range(8):
        ga, gb = epi_items(t)
        rel_a = 64 + 32 + 4 * t + 2 + EREL
        rel_b = rel_a + 1
        dl = 128 + 32 + 4 * t - 1
        seq += [(g, rel_a, dl) for g in ga] + [(g, rel_b, dl) for g in gb]
    R_.place(seq, "epilogue")
    seq = [([S(f"s_mov_b32 s{S_O}, s{S_ON}"), S(f"s_mov_b32 s{S_O+1}, s{S_ON+1}"), S(f"s_mov_b32 s{S_O+2}, s{S_ON+2}")], 192 + 2, 250)]
    seq.append(([S(f"s_add_u32 s{S_T}, s{S_T}, 32")], 192 + 2, 250))
    seq += [(g, 192 + 2, 250) for g in tile_params()]
    seq.append(([S(f"s_mov_b32 s{S_CNT}, 0")], 192 + 2, 250))
    R_.place(seq, "params")
    return R_


LR0 = opt("lr0", 10)
LR1 = opt("lr1", 16)
LR2 = opt("lr2", 18)
EREL = opt("erel", 4)


def prologue(it15_vm):
    o = []
    A = o.append
    T = lambda s: A(raw(s, kind="salu"))
    T("s_cmp_ge_u32 s2, 256")
    A(raw("s_cbranch_scc1 L_end", kind="branch"))
    T("s_load_dwordx4 s[32:35], s[0:1], 0")
    T("s_load_dwordx4 s[36:39], s[0:1], 16")
    T(f"s_and_b32 s{S_XH}, s2, 7")
    T(f"s_lshl_b32 s{S_XH}, s{S_XH}, 5")
    T(f"s_lshr_b32 s{S_T}, s2, 3")
    T(f"s_mov_b32 s{S_16K}, 16384")
    A(valu("v_lshrrev_b32", V_TMP, "6", 0))
    A(valu("v_and_b32", V_T2, "63", 0))
    A(valu("v_readfirstlane_b32", f"s{S_W}", V_TMP))
    A(raw("s_waitcnt lgkmcnt(0)", kind="wait"))
    for g in tile_params():
        o += g
    T(f"s_mov_b32 s{S_Q+3}, 0x00020000")
    T(f"s_mov_b32 s{S_K}, s{S_KN}")
    T(f"s_mov_b32 s{S_K+1}, s{S_KN+1}")
    T(f"s_mov_b32 s{S_K+2}, 262144")
    T(f"s_mov_b32 s{S_K+3}, 0x00020000")
    T(f"s_mov_b32 s{S_V}, s{S_VN}")
    T(f"s_mov_b32 s{S_V+1}, s{S_VN+1}")
    T(f"s_mov_b32 s{S_V+2}, 262144")
    T(f"s_mov_b32 s{S_V+3}, 0x00020000")
    T(f"s_mov_b32 s{S_O}, s{S_ON}")
    T(f"s_mov_b32 s{S_O+1}, s{S_ON+1}")
    T(f"s_mov_b32 s{S_O+2}, 0")
    T(f"s_mov_b32 s{S_O+3}, 0x00020000")
    T(f"s_mov_b32 s{S_C}, {f32bits(SCALE):#x}")
    T(f"s_mov_b32 s{S_NC}, {f32bits(-SCALE):#x}")
    T(f"s_mov_b32 s{S_THR}, {f32bits(4096.0):#x}")
    T(f"s_mov_b32 s{S_KOFF}, 0")
    T(f"s_mov_b32 s{S_VOFF}, 0")
    T(f"s_mov_b32 s{S_RHO}, 0")
    T(f"s_mul_i32 s{S_KM0}, s{S_W}, {4*KBLK}")
    T(f"s_add_u32 s{S_KM0}, s{S_KM0}, {KSLOT[0]}")
    T(f"s_mul_i32 s{S_VM0}, s{S_W}, {4*VBLK}")
    T(f"s_add_u32 s{S_VM0}, s{S_VM0}, {VSLOT[0]}")
    T(f"s_mul_i32 s{S_QMB}, s{S_W}, {5*QUNIT}")
    T(f"s_add_u32 s{S_QMB}, s{S_QMB}, {QBASE}")
    L = V_T2
    A(valu("v_lshrrev_b32", V_TMP, "5", L))
    A(valu("v_lshlrev_b32", V_DMA, "11", V_TMP))
    A(valu("v_and_b32", V_T3, "31", L))
    A(valu("v_lshl_add_u32", V_DMA, V_T3, "4", V_DMA))
    T(f"s_lshl_b32 s46, s{S_W}, 12")
    A(valu("v_add_u32", V_DMA, "s46", V_DMA))
    A(valu("v_and_b32", V_KA, "3", V_T3))
    A(valu("v_lshrrev_b32", TT, "3", V_T3))
    A(valu("v_lshl_add_u32", V_KA, TT, "2", V_KA))
    T(f"s_movk_i32 s46, {KBLK}")
    A(valu("v_mul_lo_u32", V_KA, V_KA, "s46"))
    A(valu("v_bfe_u32", TT, V_T3, "2", "1"))
    A(valu("v_lshl_add_u32", V_KA, TT, "9", V_KA))
    A(valu("v_lshl_add_u32", V_KA, V_TMP, "4", V_KA))
    T(f"s_lshl_b32 s47, s{S_W}, 15")
    A(valu("v_lshrrev_b32", TT, "3", L))
    A(valu("v_bfe_u32", TT + 1, L, "4", "1"))
    A(valu("v_and_b32", TT + 2, "7", L))
    A(valu("v_xor_b32", TT + 2, TT + 2, TT + 1))
    A(valu("v_lshlrev_b32", V_QDMA, "9", TT))
    A(valu("v_lshl_add_u32", V_QDMA, TT + 2, "4", V_QDMA))
    A(valu("v_add_u32", V_QDMA, "s47", V_QDMA))
    def issue(kind, j):
        grp, upd = dma_unit(kind, j)
        r = []
        for g in grp:
            r += g
        r.append(upd)
        return r
    o += issue("K", 0)
    for u, (qb, lam) in enumerate(UNITS):
        for g in q_dma_static(qb, lam, u, ("Q0", u)):
            o += g
    A(valu("v_lshlrev_b32", V_QO, "9", V_T3))
    A(valu("v_add_u32", V_QO, "s47", V_QO))
    A(valu("v_lshl_add_u32", V_PF, V_TMP, "7", V_QO))
    A(valu("v_lshl_add_u32", V_QO, V_TMP, "4", V_QO))
    for (qb, lam), _ in LATE:
        for ksl in range(4):
            ks = 4 * lam + ksl
            k, lo = Qfrag(qb, ks)
            A(bload(k, lo, 4, V_QO, S_Q, f"s{S_16K}" if qb else "0", 32 * ks, tag="QD"))
    o += issue("K", 1)
    o += issue("V", 0)
    A(valu("v_bfe_u32", V_VA, L, "2", "2"))
    T(f"s_movk_i32 s46, {VBLK}")
    A(valu("v_mul_lo_u32", V_VA, V_VA, "s46"))
    A(valu("v_lshl_add_u32", V_VA, V_TMP, "9", V_VA))
    A(valu("v_bfe_u32", TT, L, "4", "1"))
    A(valu("v_lshl_add_u32", V_VA, TT, "5", V_VA))
    A(valu("v_and_b32", TT, "1", L))
    A(valu("v_lshl_add_u32", V_VA, TT, "4", V_VA))
    A(valu("v_bfe_u32", TT, L, "1", "1"))
    A(valu("v_lshl_add_u32", V_VA, TT, "3", V_VA))
    A(valu("v_lshrrev_b32", TT, "3", V_T3))
    T("s_movk_i32 s46, 1056")
    A(valu("v_mul_lo_u32", V_QRD, TT, "s46"))
    A(valu("v_and_b32", TT, "7", V_T3))
    A(valu("v_lshl_add_u32", V_QRD, TT, "7", V_QRD))
    A(valu("v_bfe_u32", TT, V_T3, "1", "1"))
    A(valu("v_xor_b32", TT, TT, V_TMP))
    A(valu("v_lshl_add_u32", V_QRD, TT, "4", V_QRD))
    A(valu("v_add_u32", V_QRD, f"s{S_QMB}", V_QRD))
    A(valu("v_mov_b32", V_RINV[0], "0"))
    A(valu("v_mov_b32", V_RINV[1], "0"))
    A(wait_vm(("K", 0)))
    A(barrier())
    for f in range(4):
        o += k_read(f, 0)
    for ks in range(16):
        lam = ks >> 2
        if (ks & 3) == 0:
            for u, (qb, l2) in enumerate(UNITS):
                if l2 == lam:
                    A(wait_vm(("Q0", u)))
                    for ksl in range(4):
                        A(q_read(qb, 4 * lam + ksl, u))
        for qb in (0, 1):
            F = ("v", FB + 4 * (ks % 4))
            D = Sacc(0, qb)
            A(mfma32(D, F, Qfrag(qb, ks), None if ks == 0 else D))
            g = 2 * ks + qb
            if g >= 1 and (g + 7) % 2 == 0 and 4 <= (g + 7) // 2 < 16:
                o += k_read((g + 7) // 2, 0)
            if g == 27:
                o += [raw("s_waitcnt vmcnt(0)", kind="wait"), wait_lgkm0(), barrier()]
                o += k_read(0, 1) + k_read(1, 1)
            if g == 29:
                o += k_read(2, 1)
            if g == 31:
                o += k_read(3, 1)
    o += it15_vm
    A(nop(7))
    for g in row_max2(0):
        o += g
    o += flat(softmax_steps(0, 0)[:HEAD0])
    A(wait_lgkm0())
    return o


def stamp(k=0):
    if not STAMP:
        return []
    return [raw("s_memtime s[60:61]", kind="salu"), raw("s_waitcnt lgkmcnt(0)", kind="wait"),
            raw("v_mov_b32 v255, s60"), raw("buffer_store_dword v255, off, s[64:67], s62"),
            raw("s_add_u32 s62, s62, 4", kind="salu")]


def stamp_init():
    if not STAMP:
        return []
    o = []
    T = lambda s: o.append(raw(s, kind="salu"))
    T("s_load_dwordx2 s[64:65], s[0:1], 32")
    T("v_lshrrev_b32 v255, 6, v0")
    T("s_nop 1")
    T("v_readfirstlane_b32 s62, v255")
    T("s_waitcnt lgkmcnt(0)")
    T("s_and_b32 s65, s65, 0xffff")
    T("s_mov_b32 s67, 0x00020000")
    T("s_lshl_b32 s62, s62, 8")
    T("s_add_u32 s62, s62, s2")
    T(f"s_cmp_eq_u32 s62, {opt('swg', 0)}")
    T("s_cselect_b32 s66, 256, 0")
    T("s_mov_b32 s62, 0")
    return o


def stamp_out(n):
    if not STAMP:
        return []
    return [raw("s_waitcnt vmcnt(0)", kind="wait")] + stamp()


def main():
    st = WaitState()
    G = 14
    rounds = []
    import io, contextlib
    for r in range(3):
        buf = io.StringIO()
        with contextlib.redirect_stdout(buf):
            Sx = build_special(G)
            L1 = build_loop(G + 4)
            L2 = build_loop(G + 6)
        if r == 2:
            print(buf.getvalue(), end="")
            for nm, Rg in (("S", Sx), ("L", L1)):
                print(nm, "loads:", " ".join(str(Rg.load(i)) for i in range(Rg.n)))
                print(nm, "over24:", sum(max(0, Rg.load(i) - 24) for i in range(Rg.n)))
        fl = Sx.flatten()
        sr = insert_waits(fl, st)
        l1 = insert_waits(L1.flatten(), st)
        l2 = insert_waits(L2.flatten(), st)
        rounds.append((sr, l1, l2))
        G += 16
        G -= 8
    sr, l1, l2 = rounds[2]
    tx = lambda s: [x.text for x in s]
    assert tx(l1) == tx(l2), "loop not steady"
    assert tx(rounds[1][0]) == tx(sr), "special not steady"
    assert tx(rounds[1][1]) == tx(l1)
    mcount = 0
    split0 = None
    split15 = None
    split1 = None
    for i, x in enumerate(sr):
        if x.kind == "mfma":
            if mcount == 128:
                split0 = i
            if mcount == 64:
                split15 = i
            if mcount == 192:
                split1 = i
            mcount += 1
    while sr[split0 - 1].kind == "wait":
        split0 -= 1
    while sr[split1 - 1].kind == "wait":
        split1 -= 1
    s_a = sr[:split0]
    s_b = sr[split0:split1]
    s_c = sr[split1:]
    it15 = sr[split15:split0]
    vm = []
    started = False
    last_m0 = None
    for x in it15:
        if x.kind == "salu" and x.text.startswith("s_add_u32 m0"):
            last_m0 = x
        if x.kind == "dma" and x.tag[0] == "K":
            started = True
        if started:
            if x.kind == "dma":
                assert x.tag[0] in ("K", "V")
                vm += [last_m0, nop(0), x]
            elif x.kind == "vmem_st":
                vm.append(x)
            elif x.kind == "salu" and (x.text.startswith(f"s_add_u32 s{S_KOFF},") or x.text.startswith(f"s_add_u32 s{S_VOFF},")):
                vm.append(x)
    pro = prologue([uncountedcopy(x) for x in vm])
    pro_r = insert_waits(pro, WaitState())
    loop_ctl = [raw(f"s_add_u32 s{S_CNT}, s{S_CNT}, 1", kind="salu"),
                raw(f"s_cmp_lt_u32 s{S_CNT}, 6", kind="salu"),
                raw("s_cbranch_scc1 L_loop", kind="branch")]
    exit_ctl = [raw(f"s_add_u32 s{S_RHO}, s{S_RHO}, 1", kind="salu"),
                raw(f"s_cmp_eq_u32 s{S_RHO}, 4", kind="salu"),
                raw("s_cbranch_scc1 L_fin", kind="branch")]
    back = [raw("s_branch L_it0", kind="branch")]
    check_hazards(pro_r + s_b + exit_ctl + s_c + l1 + loop_ctl + l1 + loop_ctl + s_a + s_b + exit_ctl + s_c + l1, "main")
    names = [("l0", 0), ("l1", 1), ("s14", 0), ("s15", 1), ("s1", 1)]
    for nm, par in names:
        check_hazards(rare_path(par, nm), "rare")
    seq = pro_r[:2] + stamp_init() + stamp(0) + pro_r[2:] + [raw("s_branch L_it0", kind="branch")]
    s14 = sr[:split15]
    s15 = sr[split15:split0]
    seq += [label("L_sa")] + stamp() + s14 + stamp() + s15 + [label("L_it0")] + stamp() + s_b + exit_ctl + stamp() + s_c + stamp() + [label("L_loop")] + l1 + loop_ctl
    seq += [raw("s_branch L_sa", kind="branch")]
    seq += [label("L_fin")] + stamp_out(2) + [label("L_end"), raw("s_endpgm")]
    for nm, par in names:
        seq += rare_path(par, nm)
    hdr = open(f"cdna_kernels/{NAME}.s.ref").read().split("\n")
    head = [l for l in hdr if l.startswith(";") and "@launch" not in l and "Override" not in l and "grid=ceil" not in l]
    txt = "\n".join(head) + "\n"
    txt += f"; @launch grid=(256,1,1) block=(256,1,1) lds={LDS_BYTES}\n"
    txt += f'.amdgcn_target "amdgcn-amd-amdhsa--gfx950"\n.text\n.globl {NAME}_kernel\n.p2align 8\n.type {NAME}_kernel,@function\n{NAME}_kernel:\n'
    txt += render(seq) + "\n"
    txt += f""".section .rodata,"a"
.p2align 6
.amdhsa_kernel {NAME}_kernel
  .amdhsa_next_free_vgpr 512
  .amdhsa_next_free_sgpr 96
  .amdhsa_accum_offset 256
  .amdhsa_group_segment_fixed_size 0
  .amdhsa_kernarg_size 48
  .amdhsa_user_sgpr_count 2
  .amdhsa_user_sgpr_kernarg_segment_ptr 1
  .amdhsa_system_sgpr_workgroup_id_x 1
.end_amdhsa_kernel
"""
    out = sys.argv[1] if len(sys.argv) > 1 else f"cdna_kernels/{NAME}.s"
    open(out, "w").write(txt)
    print("wrote", out, len(seq), "instructions")


def uncountedcopy(x):
    y = Ins(x.text, rd=x.rd, wr=x.wr, kind=x.kind, cost=x.cost, tag=x.tag)
    return y


main()
```

```python
import sys, math, struct
sys.path.insert(0, "work")
from fw import *

NAME = "standalone__mha_softmax__near_ridge"
ARGS = sys.argv[2:]
STAMP = "stamp" in ARGS


def opt(name, default):
    for a in ARGS:
        if a.startswith(name + "="):
            return int(a.split("=")[1])
    return default


OA = ("v", 0)
OB = ("a", 0)
QA = 128
QB = 192
SB = [128, 160]
P0 = 192
P1 = 208
FB = 216
TT = 232
V_KA, V_VA, V_DMA = 236, 237, 238
V_NMC = [239, 240]
V_L = [241, 242]
V_LT = [243, 244]
V_TMP = 245
V_QO = 246
V_T2 = 247
V_T3 = 248
V_QDMA = 249
V_QRD = 250
V_PF = 251
V_RINV = [252, 254]
V_QCUR = 253
V_TMP2 = 255

S_Q, S_K, S_V, S_O = 4, 8, 12, 16
S_XH = 3
S_W = 20
S_C = 21
S_THR = 22
S_KOFF = 23
S_VOFF = 24
S_KM0 = 25
S_VM0 = 26
S_CNT = 27
S_QS = 28
S_QSTEP = 29
S_NC = 30
S_QM = 31
S_KN = 48
S_VN = 50
S_KVN = 52
S_16K = 53
S_ON = 54
S_T = 57
S_QMB = 58
S_RHO = 59
S_KOFF2 = 68
S_VOFF2 = 69
S_PF = 72
S_PFOFF = 70
S_PFN = 76
S_WQ = 71
S_BQ = 78
S_BQM = 79
ROLE = "A"
PD = opt("pd", 6)

KBLK, VBLK = 1040, 1088
KSLOT = [0, 16 * KBLK]
VSLOT = [32 * KBLK, 32 * KBLK + 16 * VBLK]
QBASE = 32 * KBLK + 32 * VBLK
QUNIT = 4224
QDUMMY = QBASE + 4 * 5 * QUNIT
LDS_BYTES = QDUMMY + 4224

SCALE = (256 ** -0.5) * math.log2(math.e)
HEAD = opt("head", 19)
HEAD0 = opt("head0", 12)
UNITS = [(0, 0), (1, 0), (0, 1), (1, 1), (0, 2)]
LATE = [((1, 2), 0), ((0, 3), 1), ((1, 3), 2)]


def f32bits(x):
    return struct.unpack("<I", struct.pack("<f", x))[0]


def Oacc(qb, t):
    k, lo = (OA, OB)[qb]
    return (k, lo + 16 * t)


def Qfrag(qb, ks):
    return ("a", (QA, QB)[qb] + 4 * ks)


def Sacc(buf, qb):
    return ("v", SB[buf] + 16 * qb)


def Pfrag(par, qb, s):
    if s == 0:
        return ("v", P0 + par * 8 + qb * 4)
    return ("v", P1 + qb * 4)


def S(text, rd=(), wr=()):
    return salu(text, rd=rd, wr=wr)


def k_read(f, slot):
    return [ds_read("ds_read_b128", "v", FB + 4 * (f % 4), 4, V_KA, KSLOT[slot] + 32 * f)]


def v_read(f, slot):
    t, s = f >> 1, f & 1
    b = FB + 4 * (f % 4)
    return [ds_read("ds_read_b64_tr_b16", "v", b + 2 * u, 2, V_VA, VSLOT[slot] + (2 * s + u) * 4 * VBLK + 64 * t) for u in (0, 1)]


def q_read(qb, ks, space):
    k, lo = Qfrag(qb, ks)
    return ds_read("ds_read_b128", k, lo, 4, V_QRD, space * QUNIT + 32 * (ks & 3))


def dma_unit(kind, j, four=False):
    slot = j & 1
    if kind == "K":
        base, blk, sl, srd, soff, soff2 = S_KM0, KBLK, KSLOT, S_K, S_KOFF, S_KOFF2
    else:
        base, blk, sl, srd, soff, soff2 = S_VM0, VBLK, VSLOT, S_V, S_VOFF, S_VOFF2
    rel = sl[slot] - sl[0]
    groups = []
    for half in ((0,) if four else (0, 1)):
        so = (soff, soff2)[half]
        for q in range(4):
            g = [S(f"s_add_u32 m0, s{base}, {rel + half * 4 * blk + (blk - 512) * q}", rd=[base], wr=["m0"]),
                 nop(0),
                 dma(V_DMA, srd, f"s{so}", 512 * q, tag=(kind, j))]
            if q == 3:
                g.append(S(f"s_add_u32 s{so}, s{so}, 16384", rd=[so], wr=[so]))
            groups.append(g)
    return groups


def q_dma_static(qb, lam, space, tag):
    groups = []
    for io in range(4):
        groups.append([S(f"s_add_u32 m0, s{S_QMB}, {space * QUNIT + 1056 * io}", rd=[S_QMB], wr=["m0"]),
                       S(f"s_add_u32 s40, s{S_WQ}, {qb * 16384 + lam * 128 + io * 4096}", wr=[40]),
                       dma(V_QDMA, S_Q, "s40", 0, tag=tag)])
    return groups


def softmax_steps(buf, par):
    def elem(e):
        s = e >> 4
        qb = (e >> 3) & 1
        r = 8 * s + (e & 7)
        return s, qb, r
    steps = []
    for k in range(34):
        st = []
        if k < 32:
            s, qb, r = elem(k)
            st.append(valu("v_fma_f32", TT + k % 4, SB[buf] + 16 * qb + r, f"s{S_C}", V_NMC[qb]))
        if 0 <= k - 1 < 32:
            e = k - 1
            st.append(trans("v_exp_f32", TT + e % 4, TT + e % 4))
        if 0 <= k - 2 < 32:
            e = k - 2
            s, qb, r = elem(e)
            if r == 1:
                st.append(valu("v_add_f32", V_LT[qb], TT + (e - 1) % 4, TT + e % 4))
            elif r > 1:
                st.append(valu("v_add_f32", V_LT[qb], V_LT[qb], TT + e % 4))
            if r & 1:
                pk, pl = Pfrag(par, qb, s)
                st.append(valu("v_cvt_pk_bf16_f32", pl + ((r & 7) >> 1), TT + (e - 1) % 4, TT + e % 4))
        steps.append(st)
    return steps


def swap32(a, b):
    return Ins(f"v_permlane32_swap_b32 v{a}, v{b}", rd=[("v", a), ("v", b)], wr=[("v", a), ("v", b)], kind="valu")


def row_max2(buf):
    dst = [V_T2, V_T3]
    tmp = [V_TMP, V_TMP2]
    groups = []
    b = [SB[buf], SB[buf] + 16]
    groups.append([valu("v_max3_f32", dst[q], b[q], b[q] + 1, b[q] + 2) for q in (0, 1)])
    for i in range(3, 15, 2):
        groups.append([valu("v_max3_f32", dst[q], dst[q], b[q] + i, b[q] + i + 1) for q in (0, 1)])
    groups.append([valu("v_max_f32", dst[q], dst[q], b[q] + 15) for q in (0, 1)])
    g = [valu("v_mov_b32", tmp[q], dst[q]) for q in (0, 1)]
    g += [nop(1)]
    g += [swap32(tmp[q], dst[q]) for q in (0, 1)]
    g += [nop(0)]
    g += [valu("v_max_f32", dst[q], dst[q], tmp[q]) for q in (0, 1)]
    g += [valu("v_mul_f32", V_NMC[q], f"s{S_NC}", dst[q]) for q in (0, 1)]
    groups.append(g)
    return groups


def rinv_group():
    tmp = [V_TMP, V_TMP2]
    g = [valu("v_mov_b32", tmp[q], V_L[q]) for q in (0, 1)]
    g += [nop(1)]
    g += [swap32(tmp[q], V_L[q]) for q in (0, 1)]
    g += [nop(0)]
    g += [valu("v_add_f32", V_L[q], V_L[q], tmp[q]) for q in (0, 1)]
    g += [trans("v_rcp_f32", V_RINV[q], V_L[q]) for q in (0, 1)]
    return g


def row_max(buf, qb, dst, tmp):
    b = SB[buf] + 16 * qb
    out = [valu("v_max3_f32", dst, b, b + 1, b + 2)]
    for i in range(3, 15, 2):
        out.append(valu("v_max3_f32", dst, dst, b + i, b + i + 1))
    out.append(valu("v_max_f32", dst, dst, b + 15))
    out.append(valu("v_mov_b32", tmp, dst))
    out.append(nop(1))
    out.append(swap32(tmp, dst))
    out.append(nop(0))
    out.append(valu("v_max_f32", dst, dst, tmp))
    return out


def flat(steps):
    out = []
    for st in steps:
        out += st
        out.append(nop(0))
    return out


def rare_path(par, name):
    out = [label(f"L_rare{name}")]
    out.append(nop(7))
    for qb in (0, 1):
        out += row_max(par, qb, V_T2, V_TMP)
        out.append(valu("v_mul_f32", V_T2, f"s{S_NC}", V_T2))
        out.append(valu("v_min_f32", V_T2, V_T2, V_NMC[qb]))
        out.append(valu("v_sub_f32", V_T3, V_T2, V_NMC[qb]))
        out.append(trans("v_exp_f32", V_T3, V_T3))
        out.append(valu("v_mov_b32", V_NMC[qb], V_T2))
        out.append(valu("v_mul_f32", V_L[qb], V_L[qb], V_T3))
        for r in range(128):
            if qb == 0:
                out.append(valu("v_mul_f32", r, r, V_T3))
            else:
                out.append(valu("v_accvgpr_read_b32", V_TMP, ("a", r)))
                out.append(valu("v_mul_f32", V_TMP, V_TMP, V_T3))
                out.append(valu("v_accvgpr_write_b32", ("a", r), V_TMP))
    out += flat(softmax_steps(par, par))
    out.append(nop(3))
    out.append(raw(f"s_branch L_back{name}", kind="branch"))
    return out


def pk_mul(r, qb):
    sel = "op_sel_hi:[1,0]"
    p = V_RINV[qb]
    return Ins(f"v_pk_mul_f32 v[{r}:{r+1}], v[{r}:{r+1}], v[{p}:{p+1}] {sel}",
               rd=[("v", r), ("v", r + 1), ("v", V_RINV[qb])], wr=[("v", r), ("v", r + 1)], kind="valu")


def epi_items(t):
    b = 16 * t
    ga = []
    for gp in (0, 1):
        o = b + 8 * gp
        ga.append([pk_mul(o + 2 * j, 0) for j in range(4)])
        ga.append([valu("v_cvt_pk_bf16_f32", o + e, o + 2 * e, o + 2 * e + 1) for e in range(4)])
        ga.append([bstore("v", o, 4, V_QO, S_O, "0", 64 * t + 32 * gp, tag="ST")])
    gb = []
    tmp = [b + 4, b + 5, b + 6, b + 7, b + 12, b + 13, b + 14, b + 15]
    gb.append([valu("v_accvgpr_read_b32", tmp[e], ("a", b + e)) for e in range(4)])
    gb.append([valu("v_accvgpr_read_b32", tmp[e], ("a", b + e)) for e in range(4, 8)])
    gb.append([pk_mul(tmp[2 * j], 1) for j in range(4)])
    gb.append([valu("v_cvt_pk_bf16_f32", b + 4 + e, tmp[2 * e], tmp[2 * e + 1]) for e in range(4)])
    gb.append([bstore("v", b + 4, 4, V_QO, S_O, f"s{S_16K}", 64 * t, tag="ST")])
    tmp = [b + 8 + e for e in range(8)]
    gb.append([valu("v_accvgpr_read_b32", tmp[e], ("a", b + 8 + e)) for e in range(4)])
    gb.append([valu("v_accvgpr_read_b32", tmp[e], ("a", b + 8 + e)) for e in range(4, 8)])
    gb.append([pk_mul(tmp[2 * j], 1) for j in range(4)])
    gb.append([valu("v_cvt_pk_bf16_f32", b + 8 + e, tmp[2 * e], tmp[2 * e + 1]) for e in range(4)])
    gb.append([bstore("v", b + 8, 4, V_QO, S_O, f"s{S_16K}", 64 * t + 32, tag="ST")])
    return ga, gb


def tile_params():
    o = []
    A = lambda t: o.append([S(t)])
    A(f"s_mul_hi_u32 s42, s{S_T}, 0x55555556")
    A("s_mul_i32 s43, s42, 3")
    A(f"s_sub_u32 s43, s{S_T}, s43")
    A(f"s_add_u32 s42, s42, s{S_XH}")
    A("s_mul_i32 s44, s42, 376832")
    A("s_lshl_b32 s43, s43, 17")
    A("s_add_u32 s44, s44, s43")
    A("s_lshl_b32 s45, s42, 18")
    A("s_sub_u32 s43, 376832, s43")
    o.append([S(f"s_cmp_lt_u32 s{S_T}, 96"), S("s_cselect_b32 s43, s43, 0"), S(f"s_cselect_b32 s{S_KVN}, 262144, 0")])
    o.append([S(f"s_add_u32 s{S_Q}, s32, s44"), S(f"s_addc_u32 s{S_Q+1}, s33, 0")])
    A(f"s_and_b32 s{S_Q+1}, s{S_Q+1}, 0xffff")
    A(f"s_mov_b32 s{S_Q+2}, s43")
    o.append([S(f"s_add_u32 s{S_ON}, s38, s44"), S(f"s_addc_u32 s{S_ON+1}, s39, 0")])
    A(f"s_and_b32 s{S_ON+1}, s{S_ON+1}, 0xffff")
    A(f"s_mov_b32 s{S_ON+2}, s43")
    o.append([S(f"s_add_u32 s{S_KN}, s34, s45"), S(f"s_addc_u32 s{S_KN+1}, s35, 0")])
    A(f"s_and_b32 s{S_KN+1}, s{S_KN+1}, 0xffff")
    o.append([S(f"s_add_u32 s{S_VN}, s36, s45"), S(f"s_addc_u32 s{S_VN+1}, s37, 0")])
    A(f"s_and_b32 s{S_VN+1}, s{S_VN+1}, 0xffff")
    return o


class Region:
    def __init__(self, n):
        self.n = n
        self.mf = [None] * n
        self.g = [[] for _ in range(n)]

    def add(self, gap, items):
        self.g[gap] += [x for x in items if x is not None]

    def load(self, gap):
        return sum(x.cost for x in self.g[gap])

    def place(self, seqs, name=""):
        base = [self.load(i) for i in range(self.n)]

        def attempt(level):
            ld = list(base)
            res = []
            cur = 0
            for grp, rel, dl in seqs:
                c = sum(x.cost for x in grp)
                g = max(cur, rel)
                while g <= dl and ld[g] + c > level and not (ld[g] == 0):
                    g += 1
                if g > dl:
                    return None
                ld[g] += c
                res.append(g)
                cur = g
            return res
        level = 8
        while True:
            r = attempt(level)
            if r is not None:
                break
            level += 2
            assert level < 400, "cannot place " + name
        for (grp, rel, dl), g in zip(seqs, r):
            self.g[g] += grp
        if name:
            print(f"  place {name}: level {level}")

    def flatten(self):
        out = []
        for i in range(self.n):
            if self.mf[i] is not None:
                out.append(self.mf[i])
            out += self.g[i]
        return out


def base_iteration(R_, b, role, G, name, extra59=()):
    par = G & 1
    np_ = par ^ 1
    first_of_tile = (role == 0)
    for ks in range(16):
        for qb in (0, 1):
            F = ("v", FB + 4 * (ks % 4))
            D = Sacc(np_, qb)
            R_.mf[b + 2 * ks + qb] = mfma32(D, F, Qfrag(qb, ks), None if ks == 0 else D)
    for f in range(16):
        t, s = f >> 1, f & 1
        for qb in (0, 1):
            F = ("v", FB + 4 * (f % 4))
            D = Oacc(qb, t)
            C = None if (first_of_tile and s == 0) else D
            R_.mf[b + 32 + 2 * f + qb] = mfma32(D, F, Pfrag(par, qb, s), C)
    extra59 = list(extra59)
    for f in range(4, 16):
        R_.add(b + 2 * f - 7, k_read(f, np_))
    A_ = ROLE == "A"
    R_.add(b + 27, ([wait_vm(("V", G))] if A_ else []) + [wait_lgkm0(), barrier()] + v_read(0, par) + v_read(1, par))
    R_.add(b + 29, v_read(2, par))
    R_.add(b + 31, v_read(3, par))
    for f in range(4, 16):
        R_.add(b + 32 + 2 * f - 7, v_read(f, par))
    R_.add(b + 59, ([wait_vm(("K", G + 2))] if A_ else extra59) + [wait_lgkm0(), barrier()] + k_read(0, par) + k_read(1, par))
    R_.add(b + 61, k_read(2, par))
    R_.add(b + 63, k_read(3, par))
    if A_:
        grp = dma_unit("K", G + 3)
        for q, g in enumerate(grp):
            R_.add(b + KD[q], g)
        grp = dma_unit("V", G + 2)
        for q in range(4):
            R_.add(b + VD[q], grp[q])
        grp = dma_unit("V", G + 1)
        for q in range(4):
            R_.add(b + VD2[q], grp[4 + q])
    else:
        for q in range(2):
            g = [S(f"s_mov_b32 m0, {QDUMMY}", wr=["m0"]),
                 S(f"s_add_u32 s41, s{S_PFOFF}, {8192 * q}"),
                 Ins(f"buffer_load_dword v{V_DMA}, s[{S_PF}:{S_PF+3}], s41 offen lds", rd=[("v", V_DMA), ("s", "m0")], kind="dma", cost=16, tag=("PF", G))]
            if q == 1:
                g.append(S(f"s_add_u32 s{S_PFOFF}, s{S_PFOFF}, 16384"))
            R_.add(b + PFD[q], g)


KD = [29, 32, 35, 38, 41, 44, 47, 50]
VD = [60, 61, 62, 63]
VD2 = [0, 2, 4, 6]
QD = [34, 38, 42, 46]
PFD = [12, 20]


def softmax_part(R_, b, role, G, name, head_prev, head_next, next_true_max=False):
    name = name + ROLE
    par = G & 1
    np_ = par ^ 1
    st = softmax_steps(par, par)
    R_.place([(s_, b + 0, b + 28) for s_ in st[head_prev:]], name + ".tail")
    if role == 0:
        R_.add(b + 30, [valu("v_mov_b32", V_L[0], V_LT[0]), valu("v_mov_b32", V_L[1], V_LT[1])])
    else:
        R_.add(b + 29, [valu("v_add_f32", V_TMP, V_LT[0], V_LT[1])])
        R_.add(b + 30, [valu("v_cmp_nge_f32", "vcc", f"s{S_THR}", V_TMP),
                        raw(f"s_cbranch_vccnz L_rare{name}", kind="branch"),
                        label(f"L_back{name}"),
                        valu("v_add_f32", V_L[0], V_L[0], V_LT[0]),
                        valu("v_add_f32", V_L[1], V_L[1], V_LT[1])])
    st = softmax_steps(np_, np_)
    seq = []
    lo = b + 35
    if next_true_max:
        seq.append((rinv_group(), b + 32, b + 34))
        for g in row_max2(np_):
            seq.append((g, b + 34, b + 63))
    for s_ in st[:head_next]:
        seq.append((s_, lo, b + 63))
    R_.place(seq, name + ".head")


def build_loop(G):
    R_ = Region(128)
    c = S_CNT
    x59 = []
    if ROLE == "B":
        x59 = [S(f"s_cmp_lg_u32 s{c}, 5"), raw("s_cbranch_scc1 L_skipq", kind="branch"), wait_vm(("Q", G - 1)), label("L_skipq")]
    base_iteration(R_, 0, 2, G, "l0")
    base_iteration(R_, 64, 3, G + 1, "l1", extra59=x59)
    if ROLE == "B":
        R_.add(1, [S(f"s_cmp_eq_u32 s{c}, 4"),
                   S(f"s_cselect_b32 s{S_PF}, s{S_PFN}, s{S_PF}"),
                   S(f"s_cselect_b32 s{S_PF+1}, s{S_PFN+1}, s{S_PF+1}"),
                   S(f"s_cselect_b32 s{S_PF+2}, s{S_KVN}, s{S_PF+2}"),
                   S(f"s_cselect_b32 s{S_PFOFF}, 0, s{S_PFOFF}")])
        pre = [S(f"s_and_b32 s42, s{c}, 1"), S("s_lshl_b32 s42, s42, 14"), S(f"s_lshr_b32 s43, s{c}, 1"),
               S("s_lshl_b32 s43, s43, 7"), S("s_or_b32 s44, s42, s43"),
               S(f"s_mul_i32 s45, s{c}, {QUNIT}"), S(f"s_add_u32 s45, s45, s{S_BQM}")]
        sel = [S(f"s_cmp_eq_u32 s{c}, 5"), S("s_cselect_b32 s44, 256, s44"),
               S(f"s_cselect_b32 s{S_QSTEP}, s{S_16K}, 0x1000"),
               S(f"s_cselect_b32 s46, 0, {5 * QUNIT}"),
               S(f"s_cselect_b32 s45, {QDUMMY}, s45"),
               S("s_cselect_b64 vcc, -1, 0"),
               valu("v_cndmask_b32", V_QCUR, V_QDMA, V_PF, "vcc")]
        for k, x in enumerate(pre):
            R_.add(3 + 2 * k, [x])
        R_.add(18, sel)
        for it in (0, 1):
            b = 64 * it
            if it == 0:
                R_.add(b + 22, [S(f"s_add_u32 s{S_QS}, s44, s{S_BQ}"), S(f"s_mov_b32 s{S_QM}, s45")])
            else:
                R_.add(b + 22, [S(f"s_add_u32 s{S_QS}, s44, s{S_BQ}"), S(f"s_add_u32 s{S_QS}, s{S_QS}, 32768"), S(f"s_add_u32 s{S_QM}, s45, s46")])
            for io in range(4):
                R_.add(b + QD[io], [S(f"s_add_u32 m0, s{S_QM}, {1056 * io}", rd=[S_QM], wr=["m0"]), nop(0),
                                    dma(V_QCUR, S_Q, f"s{S_QS}", 0, tag=("Q", G + it)),
                                    S(f"s_add_u32 s{S_QS}, s{S_QS}, s{S_QSTEP}")])
    else:
        R_.add(64 + 4, [S(f"s_cmp_eq_u32 s{c}, 5"),
                        S(f"s_cselect_b32 s{S_K}, s{S_KN}, s{S_K}"),
                        S(f"s_cselect_b32 s{S_K+1}, s{S_KN+1}, s{S_K+1}"),
                        S(f"s_cselect_b32 s{S_K+2}, s{S_KVN}, s{S_K+2}"),
                        S(f"s_cselect_b32 s{S_KOFF}, 0, s{S_KOFF}"),
                        S(f"s_cselect_b32 s{S_KOFF2}, 0x1000, s{S_KOFF2}")])
    softmax_part(R_, 0, 2, G, "l0", HEAD, HEAD)
    softmax_part(R_, 64, 3, G + 1, "l1", HEAD, HEAD)
    return R_


def build_special(G):
    R_ = Region(256)
    base_iteration(R_, 0, 14, G, "s14")
    base_iteration(R_, 64, 15, G + 1, "s15")
    base_iteration(R_, 128, 0, G + 2, "s0")
    base_iteration(R_, 192, 1, G + 3, "s1")
    if ROLE == "A":
        R_.add(50, [S(f"s_mov_b32 s{S_V}, s{S_VN}"), S(f"s_mov_b32 s{S_V+1}, s{S_VN+1}"),
                    S(f"s_mov_b32 s{S_V+2}, s{S_KVN}"), S(f"s_mov_b32 s{S_VOFF}, 0"), S(f"s_mov_b32 s{S_VOFF2}, 0x1000")])
    for u, (qb, lam) in enumerate(UNITS):
        for ksl in range(4):
            ks = 4 * lam + ksl
            R_.add(2 * ks + qb + 2, [q_read(qb, ks, u)])
    def unit_regs(qb, lam):
        r = []
        for ksl in range(4):
            k, lo = Qfrag(qb, 4 * lam + ksl)
            r += R(k, lo, 4)
        return r
    late_start = [11, 12, 19]
    for idx, ((qb, lam), space) in enumerate(LATE):
        oq, ol = UNITS[space]
        grp = q_dma_static(qb, lam, space, ("QL", G, idx))
        grp[0] = [touch(unit_regs(oq, ol))] + grp[0]
        g0 = late_start[idx]
        for io in range(4):
            R_.add(g0 + 2 * io, grp[io])
    rd_at = [64 + LR0, 64 + LR1, 64 + LR2]
    for idx, ((qb, lam), space) in enumerate(LATE):
        R_.add(rd_at[idx], [wait_vm(("QL", G, idx))] + [q_read(qb, 4 * lam + ksl, space) for ksl in range(4)])
    softmax_part(R_, 0, 14, G, "s14", HEAD, HEAD)
    softmax_part(R_, 64, 15, G + 1, "s15", HEAD, HEAD0, next_true_max=True)
    softmax_part(R_, 128, 0, G + 2, "s0", HEAD0, HEAD)
    softmax_part(R_, 192, 1, G + 3, "s1", HEAD, HEAD)
    seq = []
    for t in range(8):
        ga, gb = epi_items(t)
        rel_a = 64 + 32 + 4 * t + 2 + EREL
        rel_b = rel_a + 1
        dl = 128 + 32 + 4 * t - 1
        seq += [(g, rel_a, dl) for g in ga] + [(g, rel_b, dl) for g in gb]
    R_.place(seq, "epilogue")
    seq = [([S(f"s_mov_b32 s{S_O}, s{S_ON}"), S(f"s_mov_b32 s{S_O+1}, s{S_ON+1}"), S(f"s_mov_b32 s{S_O+2}, s{S_ON+2}")], 192 + 2, 250)]
    seq.append(([S(f"s_add_u32 s{S_T}, s{S_T}, 32")], 192 + 2, 250))
    seq += [(g, 192 + 2, 250) for g in tile_params()]
    seq.append(([S(f"s_mov_b32 s{S_CNT}, 0")], 192 + 2, 250))
    if ROLE == "B":
        seq.append(([S(f"s_cmp_eq_u32 s{S_W}, 2"), S(f"s_cselect_b32 s{S_PFN}, s{S_KN}, s{S_VN}"),
                     S(f"s_cselect_b32 s{S_PFN+1}, s{S_KN+1}, s{S_VN+1}")], 192 + 2, 250))
    R_.place(seq, "params")
    return R_


LR0 = opt("lr0", 10)
LR1 = opt("lr1", 16)
LR2 = opt("lr2", 18)
EREL = opt("erel", 4)


def prologue_head():
    o = []
    A = o.append
    T = lambda s: A(raw(s, kind="salu"))
    T("s_cmp_ge_u32 s2, 256")
    A(raw("s_cbranch_scc1 L_end", kind="branch"))
    T("s_load_dwordx4 s[32:35], s[0:1], 0")
    T("s_load_dwordx4 s[36:39], s[0:1], 16")
    T(f"s_and_b32 s{S_XH}, s2, 7")
    T(f"s_lshl_b32 s{S_XH}, s{S_XH}, 5")
    T(f"s_lshr_b32 s{S_T}, s2, 3")
    T(f"s_mov_b32 s{S_16K}, 16384")
    A(valu("v_lshrrev_b32", V_TMP, "6", 0))
    A(valu("v_and_b32", V_T2, "63", 0))
    A(valu("v_readfirstlane_b32", f"s{S_W}", V_TMP))
    A(raw("s_waitcnt lgkmcnt(0)", kind="wait"))
    return o


def prologue(it15_vm):
    o = []
    A = o.append
    T = lambda s: A(raw(s, kind="salu"))
    for g in tile_params():
        o += g
    T(f"s_mov_b32 s{S_Q+3}, 0x00020000")
    T(f"s_mov_b32 s{S_K}, s{S_KN}")
    T(f"s_mov_b32 s{S_K+1}, s{S_KN+1}")
    T(f"s_mov_b32 s{S_K+2}, 262144")
    T(f"s_mov_b32 s{S_K+3}, 0x00020000")
    T(f"s_mov_b32 s{S_V}, s{S_VN}")
    T(f"s_mov_b32 s{S_V+1}, s{S_VN+1}")
    T(f"s_mov_b32 s{S_V+2}, 262144")
    T(f"s_mov_b32 s{S_V+3}, 0x00020000")
    T(f"s_mov_b32 s{S_O}, s{S_ON}")
    T(f"s_mov_b32 s{S_O+1}, s{S_ON+1}")
    T(f"s_mov_b32 s{S_O+2}, 0")
    T(f"s_mov_b32 s{S_O+3}, 0x00020000")
    T(f"s_mov_b32 s{S_C}, {f32bits(SCALE):#x}")
    T(f"s_mov_b32 s{S_NC}, {f32bits(-SCALE):#x}")
    T(f"s_mov_b32 s{S_THR}, {f32bits(4096.0):#x}")
    T(f"s_mov_b32 s{S_KOFF}, 0")
    T(f"s_mov_b32 s{S_VOFF}, 0")
    T(f"s_mov_b32 s{S_RHO}, 0")
    T(f"s_mul_i32 s{S_KM0}, s{S_W}, {4*KBLK}")
    T(f"s_add_u32 s{S_KM0}, s{S_KM0}, {KSLOT[0]}")
    T(f"s_mul_i32 s{S_VM0}, s{S_W}, {4*VBLK}")
    T(f"s_add_u32 s{S_VM0}, s{S_VM0}, {VSLOT[0]}")
    T(f"s_mul_i32 s{S_QMB}, s{S_W}, {5*QUNIT}")
    T(f"s_add_u32 s{S_QMB}, s{S_QMB}, {QBASE}")
    T(f"s_lshl_b32 s{S_WQ}, s{S_W}, 15")
    L = V_T2
    A(valu("v_lshrrev_b32", V_TMP, "5", L))
    A(valu("v_lshlrev_b32", V_DMA, "11", V_TMP))
    A(valu("v_and_b32", V_T3, "31", L))
    A(valu("v_lshl_add_u32", V_DMA, V_T3, "4", V_DMA))
    T(f"s_lshl_b32 s46, s{S_W}, 12")
    A(valu("v_add_u32", V_DMA, "s46", V_DMA))
    A(valu("v_lshrrev_b32", TT, "3", L))
    A(valu("v_bfe_u32", TT + 1, L, "4", "1"))
    A(valu("v_and_b32", TT + 2, "7", L))
    A(valu("v_xor_b32", TT + 2, TT + 2, TT + 1))
    A(valu("v_lshlrev_b32", V_QDMA, "9", TT))
    A(valu("v_lshl_add_u32", V_QDMA, TT + 2, "4", V_QDMA))

    def issue(kind, j):
        r = []
        for g in dma_unit(kind, j, four=True):
            r += g
        return r
    o += issue("K", 0)
    for u, (qb, lam) in enumerate(UNITS):
        for g in q_dma_static(qb, lam, u, ("Q0", u)):
            o += g
    A(valu("v_lshlrev_b32", V_QO, "9", V_T3))
    A(valu("v_lshl_add_u32", V_PF, V_TMP, "7", V_QO))
    A(valu("v_add_u32", V_QO, f"s{S_WQ}", V_QO))
    A(valu("v_lshl_add_u32", V_QO, V_TMP, "4", V_QO))
    for (qb, lam), _ in LATE:
        for ksl in range(4):
            ks = 4 * lam + ksl
            k, lo = Qfrag(qb, ks)
            A(bload(k, lo, 4, V_QO, S_Q, f"s{S_16K}" if qb else "0", 32 * ks, tag="QD"))
    o += issue("K", 1)
    o += issue("V", 0)
    A(valu("v_and_b32", V_KA, "3", V_T3))
    A(valu("v_lshrrev_b32", TT, "3", V_T3))
    A(valu("v_lshl_add_u32", V_KA, TT, "2", V_KA))
    T(f"s_movk_i32 s46, {KBLK}")
    A(valu("v_mul_lo_u32", V_KA, V_KA, "s46"))
    A(valu("v_bfe_u32", TT, V_T3, "2", "1"))
    A(valu("v_lshl_add_u32", V_KA, TT, "9", V_KA))
    A(valu("v_lshl_add_u32", V_KA, V_TMP, "4", V_KA))
    A(valu("v_bfe_u32", V_VA, L, "2", "2"))
    T(f"s_movk_i32 s46, {VBLK}")
    A(valu("v_mul_lo_u32", V_VA, V_VA, "s46"))
    A(valu("v_lshl_add_u32", V_VA, V_TMP, "9", V_VA))
    A(valu("v_bfe_u32", TT, L, "4", "1"))
    A(valu("v_lshl_add_u32", V_VA, TT, "5", V_VA))
    A(valu("v_and_b32", TT, "1", L))
    A(valu("v_lshl_add_u32", V_VA, TT, "4", V_VA))
    A(valu("v_bfe_u32", TT, L, "1", "1"))
    A(valu("v_lshl_add_u32", V_VA, TT, "3", V_VA))
    A(valu("v_lshrrev_b32", TT, "3", V_T3))
    T("s_movk_i32 s46, 1056")
    A(valu("v_mul_lo_u32", V_QRD, TT, "s46"))
    A(valu("v_and_b32", TT, "7", V_T3))
    A(valu("v_lshl_add_u32", V_QRD, TT, "7", V_QRD))
    A(valu("v_bfe_u32", TT, V_T3, "1", "1"))
    A(valu("v_xor_b32", TT, TT, V_TMP))
    A(valu("v_lshl_add_u32", V_QRD, TT, "4", V_QRD))
    A(valu("v_add_u32", V_QRD, f"s{S_QMB}", V_QRD))
    A(valu("v_mov_b32", V_RINV[0], "0"))
    A(valu("v_mov_b32", V_RINV[1], "0"))
    if ROLE == "A":
        T(f"s_lshl_b32 s46, s{S_W}, 12")
        A(valu("v_add_u32", V_DMA, "s46", V_DMA))
        T(f"s_mul_i32 s{S_KM0}, s{S_W}, {8*KBLK}")
        T(f"s_add_u32 s{S_KM0}, s{S_KM0}, {KSLOT[0]}")
        T(f"s_mul_i32 s{S_VM0}, s{S_W}, {8*VBLK}")
        T(f"s_add_u32 s{S_VM0}, s{S_VM0}, {VSLOT[0]}")
        T(f"s_mov_b32 s{S_KOFF2}, {32768 + 4096}")
        T(f"s_mov_b32 s{S_VOFF2}, {16384 + 4096}")
    else:
        A(valu("v_lshlrev_b32", V_DMA, "7", L))
        T(f"s_cmp_eq_u32 s{S_W}, 2")
        T(f"s_cselect_b32 s{S_PF}, s{S_K}, s{S_V}")
        T(f"s_cselect_b32 s{S_PF+1}, s{S_K+1}, s{S_V+1}")
        T(f"s_mov_b32 s{S_PF+2}, 262144")
        T(f"s_mov_b32 s{S_PF+3}, 0x00020000")
        T(f"s_sub_u32 s46, s{S_W}, 2")
        T(f"s_lshl_b32 s{S_BQ}, s46, 16")
        T(f"s_mul_i32 s{S_BQM}, s46, {10 * QUNIT}")
        T(f"s_add_u32 s{S_BQM}, s{S_BQM}, {QBASE}")
        T(f"s_mov_b32 s{S_PFOFF}, {2 * 16384}")
        T(f"s_mov_b32 m0, {QDUMMY}")
        for k in range(2 * (PD - 2)):
            A(Ins(f"buffer_load_dword v{V_DMA}, s[{S_PF}:{S_PF+3}], s{S_PFOFF} offen lds", rd=[("v", V_DMA), ("s", "m0")], kind="dma", cost=16, tag="PF0"))
            T(f"s_add_u32 s{S_PFOFF}, s{S_PFOFF}, 8192")
    A(wait_vm(("K", 0)))
    A(barrier())
    for f in range(4):
        o += k_read(f, 0)
    for ks in range(16):
        lam = ks >> 2
        if (ks & 3) == 0:
            for u, (qb, l2) in enumerate(UNITS):
                if l2 == lam:
                    A(wait_vm(("Q0", u)))
                    for ksl in range(4):
                        A(q_read(qb, 4 * lam + ksl, u))
        for qb in (0, 1):
            F = ("v", FB + 4 * (ks % 4))
            D = Sacc(0, qb)
            A(mfma32(D, F, Qfrag(qb, ks), None if ks == 0 else D))
            g = 2 * ks + qb
            if g >= 1 and (g + 7) % 2 == 0 and 4 <= (g + 7) // 2 < 16:
                o += k_read((g + 7) // 2, 0)
            if g == 27:
                o += [wait_vm(("V", 0)), wait_lgkm0(), barrier()]
                o += k_read(0, 1) + k_read(1, 1)
            if g == 29:
                o += k_read(2, 1)
            if g == 31:
                o += k_read(3, 1)
    o += it15_vm
    A(nop(7))
    A(nop(7))
    for g in row_max2(0):
        o += g
    o += flat(softmax_steps(0, 0)[:HEAD0])
    A(wait_lgkm0())
    return o


def stamp(k=0):
    if not STAMP:
        return []
    return [raw("s_memtime s[60:61]", kind="salu"), raw("s_waitcnt lgkmcnt(0)", kind="wait"),
            raw("v_mov_b32 v255, s60"), raw("buffer_store_dword v255, off, s[64:67], s62"),
            raw("s_add_u32 s62, s62, 4", kind="salu")]


def stamp_init():
    if not STAMP:
        return []
    o = []
    T = lambda s: o.append(raw(s, kind="salu"))
    T("s_load_dwordx2 s[64:65], s[0:1], 32")
    T("v_lshrrev_b32 v255, 6, v0")
    T("s_nop 1")
    T("v_readfirstlane_b32 s62, v255")
    T("s_waitcnt lgkmcnt(0)")
    T("s_and_b32 s65, s65, 0xffff")
    T("s_mov_b32 s67, 0x00020000")
    T("s_lshl_b32 s62, s62, 8")
    T("s_add_u32 s62, s62, s2")
    T(f"s_cmp_eq_u32 s62, {opt('swg', 0)}")
    T("s_cselect_b32 s66, 256, 0")
    T("s_mov_b32 s62, 0")
    return o


def stamp_out(n):
    if not STAMP:
        return []
    return [raw("s_waitcnt vmcnt(0)", kind="wait")] + stamp()


def build_role():
    import io, contextlib
    RL = ROLE
    st = WaitState()
    G = 14
    rounds = []
    for r in range(3):
        buf = io.StringIO()
        with contextlib.redirect_stdout(buf):
            Sx = build_special(G)
            L1 = build_loop(G + 4)
            L2 = build_loop(G + 6)
        if r == 2:
            print(buf.getvalue(), end="")
            for nm, Rg in (("S", Sx), ("L", L1)):
                print(RL, nm, "loads:", " ".join(str(Rg.load(i)) for i in range(Rg.n)))
                print(RL, nm, "over24:", sum(max(0, Rg.load(i) - 24) for i in range(Rg.n)))
        sr = insert_waits(Sx.flatten(), st)
        l1 = insert_waits(L1.flatten(), st)
        l2 = insert_waits(L2.flatten(), st)
        rounds.append((sr, l1, l2))
        G += 8
    sr, l1, l2 = rounds[2]
    l1 = l2
    tx = lambda s: [x.text for x in s]
    if RL == "A":
        assert tx(rounds[2][1]) == tx(l2), "loop not steady"
    assert tx(rounds[1][0]) == tx(sr), "special not steady"
    assert tx(rounds[1][2]) == tx(l2)
    sp = {}
    mcount = 0
    for i, x in enumerate(sr):
        if x.kind == "mfma":
            if mcount in (64, 128, 192):
                j = i
                while sr[j - 1].kind == "wait":
                    j -= 1
                sp[mcount] = j
            mcount += 1
    s14, s15, s_b, s_c = sr[:sp[64]], sr[sp[64]:sp[128]], sr[sp[128]:sp[192]], sr[sp[192]:]
    vm = []
    if RL == "A":
        started = False
        last_m0 = None
        offs = [f"s_add_u32 s{r}," for r in (S_KOFF, S_KOFF2, S_VOFF, S_VOFF2)]
        for x in s15:
            if x.kind == "salu" and x.text.startswith("s_add_u32 m0"):
                last_m0 = x
            if x.kind == "dma" and x.tag[0] == "K":
                started = True
            if started:
                if x.kind == "dma":
                    assert x.tag[0] in ("K", "V")
                    vm += [last_m0, nop(0), x]
                elif x.kind == "vmem_st":
                    vm.append(x)
                elif x.kind == "salu" and any(x.text.startswith(p) for p in offs):
                    vm.append(x)
    pro = prologue([uncountedcopy(x) for x in vm])
    pro_r = insert_waits(pro, WaitState())
    loop_ctl = [raw(f"s_add_u32 s{S_CNT}, s{S_CNT}, 1", kind="salu"),
                raw(f"s_cmp_lt_u32 s{S_CNT}, 6", kind="salu"),
                raw(f"s_cbranch_scc1 L_loop{RL}", kind="branch")]
    exit_ctl = [raw(f"s_add_u32 s{S_RHO}, s{S_RHO}, 1", kind="salu"),
                raw(f"s_cmp_eq_u32 s{S_RHO}, 4", kind="salu"),
                raw("s_cbranch_scc1 L_fin", kind="branch")]
    check_hazards(pro_r + s_b + exit_ctl + s_c + l1 + loop_ctl + l1 + loop_ctl + s14 + s15 + s_b + exit_ctl + s_c + l1, "main" + RL)
    names = [("l0" + RL, 0), ("l1" + RL, 1), ("s14" + RL, 0), ("s15" + RL, 1), ("s1" + RL, 1)]
    seq = [label(f"L_pro{RL}")] + pro_r + [raw(f"s_branch L_it0{RL}", kind="branch")]
    seq += [label(f"L_sa{RL}")] + stamp() + s14 + stamp() + s15 + [label(f"L_it0{RL}")] + stamp() + s_b + exit_ctl + stamp() + s_c + stamp() + [label(f"L_loop{RL}")] + l1 + loop_ctl
    seq += [raw(f"s_branch L_sa{RL}", kind="branch")]
    rare = []
    for nm, par in names:
        r = rare_path(par, nm)
        check_hazards(r, "rare")
        rare += r
    return seq, rare


def main():
    global ROLE
    head = prologue_head()
    ROLE = "A"
    sa, ra = build_role()
    ROLE = "B"
    sb, rb = build_role()
    seq = head[:2] + stamp_init() + stamp(0) + head[2:]
    seq += [raw(f"s_cmp_ge_u32 s{S_W}, 2", kind="salu"), raw("s_cbranch_scc1 L_proB", kind="branch")]
    seq += sa + [label("L_fin")] + stamp_out(2) + [label("L_end"), raw("s_endpgm")] + sb + ra + rb + [raw("s_endpgm")]
    hdr = open(f"cdna_kernels/{NAME}.s.ref").read().split("\n")
    head = [l for l in hdr if l.startswith(";") and "@launch" not in l and "Override" not in l and "grid=ceil" not in l]
    txt = "\n".join(head) + "\n"
    txt += f"; @launch grid=(256,1,1) block=(256,1,1) lds={LDS_BYTES}\n"
    txt += f'.amdgcn_target "amdgcn-amd-amdhsa--gfx950"\n.text\n.globl {NAME}_kernel\n.p2align 8\n.type {NAME}_kernel,@function\n{NAME}_kernel:\n'
    txt += render(seq) + "\n"
    txt += f""".section .rodata,"a"
.p2align 6
.amdhsa_kernel {NAME}_kernel
  .amdhsa_next_free_vgpr 512
  .amdhsa_next_free_sgpr 96
  .amdhsa_accum_offset 256
  .amdhsa_group_segment_fixed_size 0
  .amdhsa_kernarg_size 48
  .amdhsa_user_sgpr_count 2
  .amdhsa_user_sgpr_kernarg_segment_ptr 1
  .amdhsa_system_sgpr_workgroup_id_x 1
.end_amdhsa_kernel
"""
    out = sys.argv[1] if len(sys.argv) > 1 else f"cdna_kernels/{NAME}.s"
    open(out, "w").write(txt)
    print("wrote", out, len(seq), "instructions", len(txt), "bytes")


def uncountedcopy(x):
    y = Ins(x.text, rd=x.rd, wr=x.wr, kind=x.kind, cost=x.cost, tag=x.tag)
    return y


main()
```

```python
import sys, math, struct
sys.path.insert(0, "work")
from fw import *

NAME = "standalone__mha_softmax__near_ridge"
ARGS = sys.argv[2:]
STAMP = "stamp" in ARGS


def opt(name, default):
    for a in ARGS:
        if a.startswith(name + "="):
            return int(a.split("=")[1])
    return default


OA = ("v", 0)
OB = ("a", 0)
QA = 128
QB = 192
SB = [128, 160]
P0 = 192
P1 = 208
FB = 216
TT = 232
V_KA, V_VA, V_DMA = 236, 237, 238
V_NMC = [239, 240]
V_L = [241, 242]
V_LT = [243, 244]
V_TMP = 245
V_QO = 246
V_T2 = 247
V_T3 = 248
V_QDMA = 249
V_QRD = 250
V_PF = 251
V_RINV = [252, 254]
V_QCUR = 253
V_TMP2 = 255

S_Q, S_K, S_V, S_O = 4, 8, 12, 16
S_XH = 3
S_W = 20
S_C = 21
S_THR = 22
S_KOFF = 23
S_VOFF = 24
S_KM0 = 25
S_VM0 = 26
S_CNT = 27
S_QS = 28
S_QSTEP = 29
S_NC = 30
S_QM = 31
S_KN = 48
S_VN = 50
S_KVN = 52
S_16K = 53
S_ON = 54
S_T = 57
S_QMB = 58
S_RHO = 59
S_KOFF2 = 68
S_VOFF2 = 69
S_PF = 72
S_PFOFF = 70
S_PFN = 76
S_WQ = 71
S_BQ = 78
S_BQM = 79
S_ROT = 80
S_ROT2 = 81
ROTM = opt('rot', 15)
ROLE = "A"
PD = opt("pd", 6)

KBLK, VBLK = 1040, 1088
KSLOT = [0, 16 * KBLK]
VSLOT = [32 * KBLK, 32 * KBLK + 16 * VBLK]
QBASE = 32 * KBLK + 32 * VBLK
QUNIT = 4224
QDUMMY = QBASE + 4 * 5 * QUNIT
LDS_BYTES = QDUMMY + 4224

SCALE = (256 ** -0.5) * math.log2(math.e)
HEAD = opt("head", 19)
HEAD0 = opt("head0", 12)
UNITS = [(0, 0), (1, 0), (0, 1), (1, 1), (0, 2)]
LATE = [((1, 2), 0), ((0, 3), 1), ((1, 3), 2)]


def f32bits(x):
    return struct.unpack("<I", struct.pack("<f", x))[0]


def Oacc(qb, t):
    k, lo = (OA, OB)[qb]
    return (k, lo + 16 * t)


def Qfrag(qb, ks):
    return ("a", (QA, QB)[qb] + 4 * ks)


def Sacc(buf, qb):
    return ("v", SB[buf] + 16 * qb)


def Pfrag(par, qb, s):
    if s == 0:
        return ("v", P0 + par * 8 + qb * 4)
    return ("v", P1 + qb * 4)


def S(text, rd=(), wr=()):
    return salu(text, rd=rd, wr=wr)


def k_read(f, slot):
    return [ds_read("ds_read_b128", "v", FB + 4 * (f % 4), 4, V_KA, KSLOT[slot] + 32 * f)]


def v_read(f, slot):
    t, s = f >> 1, f & 1
    b = FB + 4 * (f % 4)
    return [ds_read("ds_read_b64_tr_b16", "v", b + 2 * u, 2, V_VA, VSLOT[slot] + (2 * s + u) * 4 * VBLK + 64 * t) for u in (0, 1)]


def q_read(qb, ks, space):
    k, lo = Qfrag(qb, ks)
    return ds_read("ds_read_b128", k, lo, 4, V_QRD, space * QUNIT + 32 * (ks & 3))


def dma_unit(kind, j, four=False):
    slot = j & 1
    if kind == "K":
        base, blk, sl, srd, soff, soff2 = S_KM0, KBLK, KSLOT, S_K, S_KOFF, S_KOFF2
    else:
        base, blk, sl, srd, soff, soff2 = S_VM0, VBLK, VSLOT, S_V, S_VOFF, S_VOFF2
    rel = sl[slot] - sl[0]
    groups = []
    for half in ((0,) if four else (0, 1)):
        so = (soff, soff2)[half]
        for q in range(4):
            g = [S(f"s_add_u32 m0, s{base}, {rel + half * 4 * blk + (blk - 512) * q}", rd=[base], wr=["m0"]),
                 nop(0),
                 dma(V_DMA, srd, f"s{so}", 512 * q, tag=(kind, j))]
            if q == 3:
                g.append(S(f"s_add_u32 s{so}, s{so}, 16384", rd=[so], wr=[so]))
                g.append(S(f"s_and_b32 s{so}, s{so}, 0x3ffff", rd=[so], wr=[so]))
            groups.append(g)
    return groups


def q_dma_static(qb, lam, space, tag):
    groups = []
    for io in range(4):
        groups.append([S(f"s_add_u32 m0, s{S_QMB}, {space * QUNIT + 1056 * io}", rd=[S_QMB], wr=["m0"]),
                       S(f"s_add_u32 s40, s{S_WQ}, {qb * 16384 + lam * 128 + io * 4096}", wr=[40]),
                       dma(V_QDMA, S_Q, "s40", 0, tag=tag)])
    return groups


def softmax_steps(buf, par):
    def elem(e):
        s = e >> 4
        qb = (e >> 3) & 1
        r = 8 * s + (e & 7)
        return s, qb, r
    steps = []
    for k in range(34):
        st = []
        if k < 32:
            s, qb, r = elem(k)
            st.append(valu("v_fma_f32", TT + k % 4, SB[buf] + 16 * qb + r, f"s{S_C}", V_NMC[qb]))
        if 0 <= k - 1 < 32:
            e = k - 1
            st.append(trans("v_exp_f32", TT + e % 4, TT + e % 4))
        if 0 <= k - 2 < 32:
            e = k - 2
            s, qb, r = elem(e)
            if r == 1:
                st.append(valu("v_add_f32", V_LT[qb], TT + (e - 1) % 4, TT + e % 4))
            elif r > 1:
                st.append(valu("v_add_f32", V_LT[qb], V_LT[qb], TT + e % 4))
            if r & 1:
                pk, pl = Pfrag(par, qb, s)
                st.append(valu("v_cvt_pk_bf16_f32", pl + ((r & 7) >> 1), TT + (e - 1) % 4, TT + e % 4))
        steps.append(st)
    return steps


def swap32(a, b):
    return Ins(f"v_permlane32_swap_b32 v{a}, v{b}", rd=[("v", a), ("v", b)], wr=[("v", a), ("v", b)], kind="valu")


def row_max2(buf):
    dst = [V_T2, V_T3]
    tmp = [V_TMP, V_TMP2]
    groups = []
    b = [SB[buf], SB[buf] + 16]
    groups.append([valu("v_max3_f32", dst[q], b[q], b[q] + 1, b[q] + 2) for q in (0, 1)])
    for i in range(3, 15, 2):
        groups.append([valu("v_max3_f32", dst[q], dst[q], b[q] + i, b[q] + i + 1) for q in (0, 1)])
    groups.append([valu("v_max_f32", dst[q], dst[q], b[q] + 15) for q in (0, 1)])
    g = [valu("v_mov_b32", tmp[q], dst[q]) for q in (0, 1)]
    g += [nop(1)]
    g += [swap32(tmp[q], dst[q]) for q in (0, 1)]
    g += [nop(0)]
    g += [valu("v_max_f32", dst[q], dst[q], tmp[q]) for q in (0, 1)]
    g += [valu("v_mul_f32", V_NMC[q], f"s{S_NC}", dst[q]) for q in (0, 1)]
    groups.append(g)
    return groups


def rinv_group():
    tmp = [V_TMP, V_TMP2]
    g = [valu("v_mov_b32", tmp[q], V_L[q]) for q in (0, 1)]
    g += [nop(1)]
    g += [swap32(tmp[q], V_L[q]) for q in (0, 1)]
    g += [nop(0)]
    g += [valu("v_add_f32", V_L[q], V_L[q], tmp[q]) for q in (0, 1)]
    g += [trans("v_rcp_f32", V_RINV[q], V_L[q]) for q in (0, 1)]
    return g


def row_max(buf, qb, dst, tmp):
    b = SB[buf] + 16 * qb
    out = [valu("v_max3_f32", dst, b, b + 1, b + 2)]
    for i in range(3, 15, 2):
        out.append(valu("v_max3_f32", dst, dst, b + i, b + i + 1))
    out.append(valu("v_max_f32", dst, dst, b + 15))
    out.append(valu("v_mov_b32", tmp, dst))
    out.append(nop(1))
    out.append(swap32(tmp, dst))
    out.append(nop(0))
    out.append(valu("v_max_f32", dst, dst, tmp))
    return out


def flat(steps):
    out = []
    for st in steps:
        out += st
        out.append(nop(0))
    return out


def rare_path(par, name):
    out = [label(f"L_rare{name}")]
    out.append(nop(7))
    for qb in (0, 1):
        out += row_max(par, qb, V_T2, V_TMP)
        out.append(valu("v_mul_f32", V_T2, f"s{S_NC}", V_T2))
        out.append(valu("v_min_f32", V_T2, V_T2, V_NMC[qb]))
        out.append(valu("v_sub_f32", V_T3, V_T2, V_NMC[qb]))
        out.append(trans("v_exp_f32", V_T3, V_T3))
        out.append(valu("v_mov_b32", V_NMC[qb], V_T2))
        out.append(valu("v_mul_f32", V_L[qb], V_L[qb], V_T3))
        for r in range(128):
            if qb == 0:
                out.append(valu("v_mul_f32", r, r, V_T3))
            else:
                out.append(valu("v_accvgpr_read_b32", V_TMP, ("a", r)))
                out.append(valu("v_mul_f32", V_TMP, V_TMP, V_T3))
                out.append(valu("v_accvgpr_write_b32", ("a", r), V_TMP))
    out += flat(softmax_steps(par, par))
    out.append(nop(3))
    out.append(raw(f"s_branch L_back{name}", kind="branch"))
    return out


def pk_mul(r, qb):
    sel = "op_sel_hi:[1,0]"
    p = V_RINV[qb]
    return Ins(f"v_pk_mul_f32 v[{r}:{r+1}], v[{r}:{r+1}], v[{p}:{p+1}] {sel}",
               rd=[("v", r), ("v", r + 1), ("v", V_RINV[qb])], wr=[("v", r), ("v", r + 1)], kind="valu")


def epi_items(t):
    b = 16 * t
    ga = []
    for gp in (0, 1):
        o = b + 8 * gp
        ga.append([pk_mul(o + 2 * j, 0) for j in range(4)])
        ga.append([valu("v_cvt_pk_bf16_f32", o + e, o + 2 * e, o + 2 * e + 1) for e in range(4)])
        ga.append([bstore("v", o, 4, V_QO, S_O, "0", 64 * t + 32 * gp, tag="ST")])
    gb = []
    tmp = [b + 4, b + 5, b + 6, b + 7, b + 12, b + 13, b + 14, b + 15]
    gb.append([valu("v_accvgpr_read_b32", tmp[e], ("a", b + e)) for e in range(4)])
    gb.append([valu("v_accvgpr_read_b32", tmp[e], ("a", b + e)) for e in range(4, 8)])
    gb.append([pk_mul(tmp[2 * j], 1) for j in range(4)])
    gb.append([valu("v_cvt_pk_bf16_f32", b + 4 + e, tmp[2 * e], tmp[2 * e + 1]) for e in range(4)])
    gb.append([bstore("v", b + 4, 4, V_QO, S_O, f"s{S_16K}", 64 * t, tag="ST")])
    tmp = [b + 8 + e for e in range(8)]
    gb.append([valu("v_accvgpr_read_b32", tmp[e], ("a", b + 8 + e)) for e in range(4)])
    gb.append([valu("v_accvgpr_read_b32", tmp[e], ("a", b + 8 + e)) for e in range(4, 8)])
    gb.append([pk_mul(tmp[2 * j], 1) for j in range(4)])
    gb.append([valu("v_cvt_pk_bf16_f32", b + 8 + e, tmp[2 * e], tmp[2 * e + 1]) for e in range(4)])
    gb.append([bstore("v", b + 8, 4, V_QO, S_O, f"s{S_16K}", 64 * t + 32, tag="ST")])
    return ga, gb


def tile_params():
    o = []
    A = lambda t: o.append([S(t)])
    A(f"s_mul_hi_u32 s42, s{S_T}, 0x55555556")
    A("s_mul_i32 s43, s42, 3")
    A(f"s_sub_u32 s43, s{S_T}, s43")
    A(f"s_add_u32 s42, s42, s{S_XH}")
    A("s_mul_i32 s44, s42, 376832")
    A("s_lshl_b32 s43, s43, 17")
    A("s_add_u32 s44, s44, s43")
    A("s_lshl_b32 s45, s42, 18")
    A(f"s_lshr_b32 s{S_ROT}, s42, 4")
    A(f"s_xor_b32 s{S_ROT}, s{S_ROT}, s42")
    A(f"s_and_b32 s{S_ROT}, s{S_ROT}, {ROTM}")
    A(f"s_lshl_b32 s{S_ROT}, s{S_ROT}, 14")
    A(f"s_add_u32 s{S_ROT2}, s{S_ROT}, 0x1000")
    A("s_sub_u32 s43, 376832, s43")
    o.append([S(f"s_cmp_lt_u32 s{S_T}, 96"), S("s_cselect_b32 s43, s43, 0"), S(f"s_cselect_b32 s{S_KVN}, 262144, 0")])
    o.append([S(f"s_add_u32 s{S_Q}, s32, s44"), S(f"s_addc_u32 s{S_Q+1}, s33, 0")])
    A(f"s_and_b32 s{S_Q+1}, s{S_Q+1}, 0xffff")
    A(f"s_mov_b32 s{S_Q+2}, s43")
    o.append([S(f"s_add_u32 s{S_ON}, s38, s44"), S(f"s_addc_u32 s{S_ON+1}, s39, 0")])
    A(f"s_and_b32 s{S_ON+1}, s{S_ON+1}, 0xffff")
    A(f"s_mov_b32 s{S_ON+2}, s43")
    o.append([S(f"s_add_u32 s{S_KN}, s34, s45"), S(f"s_addc_u32 s{S_KN+1}, s35, 0")])
    A(f"s_and_b32 s{S_KN+1}, s{S_KN+1}, 0xffff")
    o.append([S(f"s_add_u32 s{S_VN}, s36, s45"), S(f"s_addc_u32 s{S_VN+1}, s37, 0")])
    A(f"s_and_b32 s{S_VN+1}, s{S_VN+1}, 0xffff")
    return o


class Region:
    def __init__(self, n):
        self.n = n
        self.mf = [None] * n
        self.g = [[] for _ in range(n)]

    def add(self, gap, items):
        self.g[gap] += [x for x in items if x is not None]

    def load(self, gap):
        return sum(x.cost for x in self.g[gap])

    def place(self, seqs, name=""):
        base = [self.load(i) for i in range(self.n)]

        def attempt(level):
            ld = list(base)
            res = []
            cur = 0
            for grp, rel, dl in seqs:
                c = sum(x.cost for x in grp)
                g = max(cur, rel)
                while g <= dl and ld[g] + c > level and not (ld[g] == 0):
                    g += 1
                if g > dl:
                    return None
                ld[g] += c
                res.append(g)
                cur = g
            return res
        level = 8
        while True:
            r = attempt(level)
            if r is not None:
                break
            level += 2
            assert level < 400, "cannot place " + name
        for (grp, rel, dl), g in zip(seqs, r):
            self.g[g] += grp
        if name:
            print(f"  place {name}: level {level}")

    def flatten(self):
        out = []
        for i in range(self.n):
            if self.mf[i] is not None:
                out.append(self.mf[i])
            out += self.g[i]
        return out


def base_iteration(R_, b, role, G, name, extra59=()):
    par = G & 1
    np_ = par ^ 1
    first_of_tile = (role == 0)
    for ks in range(16):
        for qb in (0, 1):
            F = ("v", FB + 4 * (ks % 4))
            D = Sacc(np_, qb)
            R_.mf[b + 2 * ks + qb] = mfma32(D, F, Qfrag(qb, ks), None if ks == 0 else D)
    for f in range(16):
        t, s = f >> 1, f & 1
        for qb in (0, 1):
            F = ("v", FB + 4 * (f % 4))
            D = Oacc(qb, t)
            C = None if (first_of_tile and s == 0) else D
            R_.mf[b + 32 + 2 * f + qb] = mfma32(D, F, Pfrag(par, qb, s), C)
    extra59 = list(extra59)
    for f in range(4, 16):
        R_.add(b + 2 * f - 7, k_read(f, np_))
    A_ = ROLE == "A"
    R_.add(b + 27, ([wait_vm(("V", G))] if A_ else []) + [wait_lgkm0(), barrier()] + v_read(0, par) + v_read(1, par))
    R_.add(b + 29, v_read(2, par))
    R_.add(b + 31, v_read(3, par))
    for f in range(4, 16):
        R_.add(b + 32 + 2 * f - 7, v_read(f, par))
    R_.add(b + 59, ([wait_vm(("K", G + 2))] if A_ else extra59) + [wait_lgkm0(), barrier()] + k_read(0, par) + k_read(1, par))
    R_.add(b + 61, k_read(2, par))
    R_.add(b + 63, k_read(3, par))
    if A_:
        grp = dma_unit("K", G + 3)
        for q, g in enumerate(grp):
            R_.add(b + KD[q], g)
        grp = dma_unit("V", G + 2)
        for q in range(4):
            R_.add(b + VD[q], grp[q])
        grp = dma_unit("V", G + 1)
        for q in range(4):
            R_.add(b + VD2[q], grp[4 + q])
    else:
        for q in range(2):
            g = [S(f"s_mov_b32 m0, {QDUMMY}", wr=["m0"]),
                 S(f"s_add_u32 s41, s{S_PFOFF}, {8192 * q}"),
                 Ins(f"buffer_load_dword v{V_DMA}, s[{S_PF}:{S_PF+3}], s41 offen lds", rd=[("v", V_DMA), ("s", "m0")], kind="dma", cost=16, tag=("PF", G))]
            if q == 1:
                g.append(S(f"s_add_u32 s{S_PFOFF}, s{S_PFOFF}, 16384"))
                g.append(S(f"s_and_b32 s{S_PFOFF}, s{S_PFOFF}, 0x3ffff"))
            R_.add(b + PFD[q], g)


KD = [29, 32, 35, 38, 41, 44, 47, 50]
VD = [60, 61, 62, 63]
VD2 = [0, 2, 4, 6]
QD = [34, 38, 42, 46]
PFD = [12, 20]


def softmax_part(R_, b, role, G, name, head_prev, head_next, next_true_max=False):
    name = name + ROLE
    par = G & 1
    np_ = par ^ 1
    st = softmax_steps(par, par)
    R_.place([(s_, b + 0, b + 28) for s_ in st[head_prev:]], name + ".tail")
    if role == 0:
        R_.add(b + 30, [valu("v_mov_b32", V_L[0], V_LT[0]), valu("v_mov_b32", V_L[1], V_LT[1])])
    else:
        R_.add(b + 29, [valu("v_add_f32", V_TMP, V_LT[0], V_LT[1])])
        R_.add(b + 30, [valu("v_cmp_nge_f32", "vcc", f"s{S_THR}", V_TMP),
                        raw(f"s_cbranch_vccnz L_rare{name}", kind="branch"),
                        label(f"L_back{name}"),
                        valu("v_add_f32", V_L[0], V_L[0], V_LT[0]),
                        valu("v_add_f32", V_L[1], V_L[1], V_LT[1])])
    st = softmax_steps(np_, np_)
    seq = []
    lo = b + 35
    if next_true_max:
        seq.append((rinv_group(), b + 32, b + 34))
        for g in row_max2(np_):
            seq.append((g, b + 34, b + 63))
    for s_ in st[:head_next]:
        seq.append((s_, lo, b + 63))
    R_.place(seq, name + ".head")


def build_loop(G):
    R_ = Region(128)
    c = S_CNT
    x59 = []
    if ROLE == "B":
        x59 = [S(f"s_cmp_lg_u32 s{c}, 5"), raw("s_cbranch_scc1 L_skipq", kind="branch"), wait_vm(("Q", G - 1)), label("L_skipq")]
    base_iteration(R_, 0, 2, G, "l0")
    base_iteration(R_, 64, 3, G + 1, "l1", extra59=x59)
    if ROLE == "B":
        R_.add(1, [S(f"s_cmp_eq_u32 s{c}, 4"),
                   S(f"s_cselect_b32 s{S_PF}, s{S_PFN}, s{S_PF}"),
                   S(f"s_cselect_b32 s{S_PF+1}, s{S_PFN+1}, s{S_PF+1}"),
                   S(f"s_cselect_b32 s{S_PF+2}, s{S_KVN}, s{S_PF+2}"),
                   S(f"s_cselect_b32 s{S_PFOFF}, s{S_ROT}, s{S_PFOFF}")])
        pre = [S(f"s_and_b32 s42, s{c}, 1"), S("s_lshl_b32 s42, s42, 14"), S(f"s_lshr_b32 s43, s{c}, 1"),
               S("s_lshl_b32 s43, s43, 7"), S("s_or_b32 s44, s42, s43"),
               S(f"s_mul_i32 s45, s{c}, {QUNIT}"), S(f"s_add_u32 s45, s45, s{S_BQM}")]
        sel = [S(f"s_cmp_eq_u32 s{c}, 5"), S("s_cselect_b32 s44, 256, s44"),
               S(f"s_cselect_b32 s{S_QSTEP}, s{S_16K}, 0x1000"),
               S(f"s_cselect_b32 s46, 0, {5 * QUNIT}"),
               S(f"s_cselect_b32 s45, {QDUMMY}, s45"),
               S("s_cselect_b64 vcc, -1, 0"),
               valu("v_cndmask_b32", V_QCUR, V_QDMA, V_PF, "vcc")]
        for k, x in enumerate(pre):
            R_.add(3 + 2 * k, [x])
        R_.add(18, sel)
        for it in (0, 1):
            b = 64 * it
            if it == 0:
                R_.add(b + 22, [S(f"s_add_u32 s{S_QS}, s44, s{S_BQ}"), S(f"s_mov_b32 s{S_QM}, s45")])
            else:
                R_.add(b + 22, [S(f"s_add_u32 s{S_QS}, s44, s{S_BQ}"), S(f"s_add_u32 s{S_QS}, s{S_QS}, 32768"), S(f"s_add_u32 s{S_QM}, s45, s46")])
            for io in range(4):
                R_.add(b + QD[io], [S(f"s_add_u32 m0, s{S_QM}, {1056 * io}", rd=[S_QM], wr=["m0"]), nop(0),
                                    dma(V_QCUR, S_Q, f"s{S_QS}", 0, tag=("Q", G + it)),
                                    S(f"s_add_u32 s{S_QS}, s{S_QS}, s{S_QSTEP}")])
    else:
        R_.add(64 + 4, [S(f"s_cmp_eq_u32 s{c}, 5"),
                        S(f"s_cselect_b32 s{S_K}, s{S_KN}, s{S_K}"),
                        S(f"s_cselect_b32 s{S_K+1}, s{S_KN+1}, s{S_K+1}"),
                        S(f"s_cselect_b32 s{S_K+2}, s{S_KVN}, s{S_K+2}"),
                        S(f"s_cselect_b32 s{S_KOFF}, s{S_ROT}, s{S_KOFF}"),
                        S(f"s_cselect_b32 s{S_KOFF2}, s{S_ROT2}, s{S_KOFF2}")])
    softmax_part(R_, 0, 2, G, "l0", HEAD, HEAD)
    softmax_part(R_, 64, 3, G + 1, "l1", HEAD, HEAD)
    return R_


def build_special(G):
    R_ = Region(256)
    base_iteration(R_, 0, 14, G, "s14")
    base_iteration(R_, 64, 15, G + 1, "s15")
    base_iteration(R_, 128, 0, G + 2, "s0")
    base_iteration(R_, 192, 1, G + 3, "s1")
    if ROLE == "A":
        R_.add(50, [S(f"s_mov_b32 s{S_V}, s{S_VN}"), S(f"s_mov_b32 s{S_V+1}, s{S_VN+1}"),
                    S(f"s_mov_b32 s{S_V+2}, s{S_KVN}"), S(f"s_mov_b32 s{S_VOFF}, s{S_ROT}"), S(f"s_mov_b32 s{S_VOFF2}, s{S_ROT2}")])
    for u, (qb, lam) in enumerate(UNITS):
        for ksl in range(4):
            ks = 4 * lam + ksl
            R_.add(2 * ks + qb + 2, [q_read(qb, ks, u)])
    def unit_regs(qb, lam):
        r = []
        for ksl in range(4):
            k, lo = Qfrag(qb, 4 * lam + ksl)
            r += R(k, lo, 4)
        return r
    late_start = [11, 12, 19]
    for idx, ((qb, lam), space) in enumerate(LATE):
        oq, ol = UNITS[space]
        grp = q_dma_static(qb, lam, space, ("QL", G, idx))
        grp[0] = [touch(unit_regs(oq, ol))] + grp[0]
        g0 = late_start[idx]
        for io in range(4):
            R_.add(g0 + 2 * io, grp[io])
    rd_at = [64 + LR0, 64 + LR1, 64 + LR2]
    for idx, ((qb, lam), space) in enumerate(LATE):
        R_.add(rd_at[idx], [wait_vm(("QL", G, idx))] + [q_read(qb, 4 * lam + ksl, space) for ksl in range(4)])
    softmax_part(R_, 0, 14, G, "s14", HEAD, HEAD)
    softmax_part(R_, 64, 15, G + 1, "s15", HEAD, HEAD0, next_true_max=True)
    softmax_part(R_, 128, 0, G + 2, "s0", HEAD0, HEAD)
    softmax_part(R_, 192, 1, G + 3, "s1", HEAD, HEAD)
    seq = []
    for t in range(8):
        ga, gb = epi_items(t)
        rel_a = 64 + 32 + 4 * t + 2 + EREL
        rel_b = rel_a + 1
        dl = 128 + 32 + 4 * t - 1
        seq += [(g, rel_a, dl) for g in ga] + [(g, rel_b, dl) for g in gb]
    R_.place(seq, "epilogue")
    seq = [([S(f"s_mov_b32 s{S_O}, s{S_ON}"), S(f"s_mov_b32 s{S_O+1}, s{S_ON+1}"), S(f"s_mov_b32 s{S_O+2}, s{S_ON+2}")], 192 + 2, 250)]
    seq.append(([S(f"s_add_u32 s{S_T}, s{S_T}, 32")], 192 + 2, 250))
    seq += [(g, 192 + 2, 250) for g in tile_params()]
    seq.append(([S(f"s_mov_b32 s{S_CNT}, 0")], 192 + 2, 250))
    if ROLE == "B":
        seq.append(([S(f"s_cmp_eq_u32 s{S_W}, 2"), S(f"s_cselect_b32 s{S_PFN}, s{S_KN}, s{S_VN}"),
                     S(f"s_cselect_b32 s{S_PFN+1}, s{S_KN+1}, s{S_VN+1}")], 192 + 2, 250))
    R_.place(seq, "params")
    return R_


LR0 = opt("lr0", 10)
LR1 = opt("lr1", 16)
LR2 = opt("lr2", 18)
EREL = opt("erel", 4)


def prologue_head():
    o = []
    A = o.append
    T = lambda s: A(raw(s, kind="salu"))
    T("s_cmp_ge_u32 s2, 256")
    A(raw("s_cbranch_scc1 L_end", kind="branch"))
    T("s_load_dwordx4 s[32:35], s[0:1], 0")
    T("s_load_dwordx4 s[36:39], s[0:1], 16")
    T(f"s_and_b32 s{S_XH}, s2, 7")
    T(f"s_lshl_b32 s{S_XH}, s{S_XH}, 5")
    T(f"s_lshr_b32 s{S_T}, s2, 3")
    T(f"s_mov_b32 s{S_16K}, 16384")
    A(valu("v_lshrrev_b32", V_TMP, "6", 0))
    A(valu("v_and_b32", V_T2, "63", 0))
    A(valu("v_readfirstlane_b32", f"s{S_W}", V_TMP))
    A(raw("s_waitcnt lgkmcnt(0)", kind="wait"))
    return o


def prologue(it15_vm):
    o = []
    A = o.append
    T = lambda s: A(raw(s, kind="salu"))
    for g in tile_params():
        o += g
    T(f"s_mov_b32 s{S_Q+3}, 0x00020000")
    T(f"s_mov_b32 s{S_K}, s{S_KN}")
    T(f"s_mov_b32 s{S_K+1}, s{S_KN+1}")
    T(f"s_mov_b32 s{S_K+2}, 262144")
    T(f"s_mov_b32 s{S_K+3}, 0x00020000")
    T(f"s_mov_b32 s{S_V}, s{S_VN}")
    T(f"s_mov_b32 s{S_V+1}, s{S_VN+1}")
    T(f"s_mov_b32 s{S_V+2}, 262144")
    T(f"s_mov_b32 s{S_V+3}, 0x00020000")
    T(f"s_mov_b32 s{S_O}, s{S_ON}")
    T(f"s_mov_b32 s{S_O+1}, s{S_ON+1}")
    T(f"s_mov_b32 s{S_O+2}, 0")
    T(f"s_mov_b32 s{S_O+3}, 0x00020000")
    T(f"s_mov_b32 s{S_C}, {f32bits(SCALE):#x}")
    T(f"s_mov_b32 s{S_NC}, {f32bits(-SCALE):#x}")
    T(f"s_mov_b32 s{S_THR}, {f32bits(4096.0):#x}")
    T(f"s_mov_b32 s{S_KOFF}, s{S_ROT}")
    T(f"s_mov_b32 s{S_VOFF}, s{S_ROT}")
    T(f"s_mov_b32 s{S_RHO}, 0")
    T(f"s_mul_i32 s{S_KM0}, s{S_W}, {4*KBLK}")
    T(f"s_add_u32 s{S_KM0}, s{S_KM0}, {KSLOT[0]}")
    T(f"s_mul_i32 s{S_VM0}, s{S_W}, {4*VBLK}")
    T(f"s_add_u32 s{S_VM0}, s{S_VM0}, {VSLOT[0]}")
    T(f"s_mul_i32 s{S_QMB}, s{S_W}, {5*QUNIT}")
    T(f"s_add_u32 s{S_QMB}, s{S_QMB}, {QBASE}")
    T(f"s_lshl_b32 s{S_WQ}, s{S_W}, 15")
    L = V_T2
    A(valu("v_lshrrev_b32", V_TMP, "5", L))
    A(valu("v_lshlrev_b32", V_DMA, "11", V_TMP))
    A(valu("v_and_b32", V_T3, "31", L))
    A(valu("v_lshl_add_u32", V_DMA, V_T3, "4", V_DMA))
    T(f"s_lshl_b32 s46, s{S_W}, 12")
    A(valu("v_add_u32", V_DMA, "s46", V_DMA))
    A(valu("v_lshrrev_b32", TT, "3", L))
    A(valu("v_bfe_u32", TT + 1, L, "4", "1"))
    A(valu("v_and_b32", TT + 2, "7", L))
    A(valu("v_xor_b32", TT + 2, TT + 2, TT + 1))
    A(valu("v_lshlrev_b32", V_QDMA, "9", TT))
    A(valu("v_lshl_add_u32", V_QDMA, TT + 2, "4", V_QDMA))

    def issue(kind, j):
        r = []
        for g in dma_unit(kind, j, four=True):
            r += g
        return r
    o += issue("K", 0)
    for u, (qb, lam) in enumerate(UNITS):
        for g in q_dma_static(qb, lam, u, ("Q0", u)):
            o += g
    A(valu("v_lshlrev_b32", V_QO, "9", V_T3))
    A(valu("v_lshl_add_u32", V_PF, V_TMP, "7", V_QO))
    A(valu("v_add_u32", V_QO, f"s{S_WQ}", V_QO))
    A(valu("v_lshl_add_u32", V_QO, V_TMP, "4", V_QO))
    for (qb, lam), _ in LATE:
        for ksl in range(4):
            ks = 4 * lam + ksl
            k, lo = Qfrag(qb, ks)
            A(bload(k, lo, 4, V_QO, S_Q, f"s{S_16K}" if qb else "0", 32 * ks, tag="QD"))
    o += issue("K", 1)
    o += issue("V", 0)
    A(valu("v_and_b32", V_KA, "3", V_T3))
    A(valu("v_lshrrev_b32", TT, "3", V_T3))
    A(valu("v_lshl_add_u32", V_KA, TT, "2", V_KA))
    T(f"s_movk_i32 s46, {KBLK}")
    A(valu("v_mul_lo_u32", V_KA, V_KA, "s46"))
    A(valu("v_bfe_u32", TT, V_T3, "2", "1"))
    A(valu("v_lshl_add_u32", V_KA, TT, "9", V_KA))
    A(valu("v_lshl_add_u32", V_KA, V_TMP, "4", V_KA))
    A(valu("v_bfe_u32", V_VA, L, "2", "2"))
    T(f"s_movk_i32 s46, {VBLK}")
    A(valu("v_mul_lo_u32", V_VA, V_VA, "s46"))
    A(valu("v_lshl_add_u32", V_VA, V_TMP, "9", V_VA))
    A(valu("v_bfe_u32", TT, L, "4", "1"))
    A(valu("v_lshl_add_u32", V_VA, TT, "5", V_VA))
    A(valu("v_and_b32", TT, "1", L))
    A(valu("v_lshl_add_u32", V_VA, TT, "4", V_VA))
    A(valu("v_bfe_u32", TT, L, "1", "1"))
    A(valu("v_lshl_add_u32", V_VA, TT, "3", V_VA))
    A(valu("v_lshrrev_b32", TT, "3", V_T3))
    T("s_movk_i32 s46, 1056")
    A(valu("v_mul_lo_u32", V_QRD, TT, "s46"))
    A(valu("v_and_b32", TT, "7", V_T3))
    A(valu("v_lshl_add_u32", V_QRD, TT, "7", V_QRD))
    A(valu("v_bfe_u32", TT, V_T3, "1", "1"))
    A(valu("v_xor_b32", TT, TT, V_TMP))
    A(valu("v_lshl_add_u32", V_QRD, TT, "4", V_QRD))
    A(valu("v_add_u32", V_QRD, f"s{S_QMB}", V_QRD))
    A(valu("v_mov_b32", V_RINV[0], "0"))
    A(valu("v_mov_b32", V_RINV[1], "0"))
    if ROLE == "A":
        T(f"s_lshl_b32 s46, s{S_W}, 12")
        A(valu("v_add_u32", V_DMA, "s46", V_DMA))
        T(f"s_mul_i32 s{S_KM0}, s{S_W}, {8*KBLK}")
        T(f"s_add_u32 s{S_KM0}, s{S_KM0}, {KSLOT[0]}")
        T(f"s_mul_i32 s{S_VM0}, s{S_W}, {8*VBLK}")
        T(f"s_add_u32 s{S_VM0}, s{S_VM0}, {VSLOT[0]}")
        T(f"s_add_u32 s{S_KOFF2}, s{S_KOFF}, 4096")
        T(f"s_add_u32 s{S_VOFF2}, s{S_VOFF}, 4096")
    else:
        A(valu("v_lshlrev_b32", V_DMA, "7", L))
        T(f"s_cmp_eq_u32 s{S_W}, 2")
        T(f"s_cselect_b32 s{S_PF}, s{S_K}, s{S_V}")
        T(f"s_cselect_b32 s{S_PF+1}, s{S_K+1}, s{S_V+1}")
        T(f"s_mov_b32 s{S_PF+2}, 262144")
        T(f"s_mov_b32 s{S_PF+3}, 0x00020000")
        T(f"s_sub_u32 s46, s{S_W}, 2")
        T(f"s_lshl_b32 s{S_BQ}, s46, 16")
        T(f"s_mul_i32 s{S_BQM}, s46, {10 * QUNIT}")
        T(f"s_add_u32 s{S_BQM}, s{S_BQM}, {QBASE}")
        T(f"s_add_u32 s{S_PFOFF}, s{S_ROT}, {2 * 16384}")
        T(f"s_and_b32 s{S_PFOFF}, s{S_PFOFF}, 0x3ffff")
        T(f"s_mov_b32 m0, {QDUMMY}")
        for k in range(2 * (PD - 2)):
            A(Ins(f"buffer_load_dword v{V_DMA}, s[{S_PF}:{S_PF+3}], s{S_PFOFF} offen lds", rd=[("v", V_DMA), ("s", "m0")], kind="dma", cost=16, tag="PF0"))
            T(f"s_add_u32 s{S_PFOFF}, s{S_PFOFF}, 8192")
            T(f"s_and_b32 s{S_PFOFF}, s{S_PFOFF}, 0x3ffff")
    A(wait_vm(("K", 0)))
    A(barrier())
    for f in range(4):
        o += k_read(f, 0)
    for ks in range(16):
        lam = ks >> 2
        if (ks & 3) == 0:
            for u, (qb, l2) in enumerate(UNITS):
                if l2 == lam:
                    A(wait_vm(("Q0", u)))
                    for ksl in range(4):
                        A(q_read(qb, 4 * lam + ksl, u))
        for qb in (0, 1):
            F = ("v", FB + 4 * (ks % 4))
            D = Sacc(0, qb)
            A(mfma32(D, F, Qfrag(qb, ks), None if ks == 0 else D))
            g = 2 * ks + qb
            if g >= 1 and (g + 7) % 2 == 0 and 4 <= (g + 7) // 2 < 16:
                o += k_read((g + 7) // 2, 0)
            if g == 27:
                o += [wait_vm(("V", 0)), wait_lgkm0(), barrier()]
                o += k_read(0, 1) + k_read(1, 1)
            if g == 29:
                o += k_read(2, 1)
            if g == 31:
                o += k_read(3, 1)
    o += it15_vm
    A(nop(7))
    A(nop(7))
    for g in row_max2(0):
        o += g
    o += flat(softmax_steps(0, 0)[:HEAD0])
    A(wait_lgkm0())
    return o


def stamp(k=0):
    if not STAMP:
        return []
    return [raw("s_memtime s[60:61]", kind="salu"), raw("s_waitcnt lgkmcnt(0)", kind="wait"),
            raw("v_mov_b32 v255, s60"), raw("buffer_store_dword v255, off, s[64:67], s62"),
            raw("s_add_u32 s62, s62, 4", kind="salu")]


def stamp_init():
    if not STAMP:
        return []
    o = []
    T = lambda s: o.append(raw(s, kind="salu"))
    T("s_load_dwordx2 s[64:65], s[0:1], 32")
    T("v_lshrrev_b32 v255, 6, v0")
    T("s_nop 1")
    T("v_readfirstlane_b32 s62, v255")
    T("s_waitcnt lgkmcnt(0)")
    T("s_and_b32 s65, s65, 0xffff")
    T("s_mov_b32 s67, 0x00020000")
    T("s_lshl_b32 s62, s62, 8")
    T("s_add_u32 s62, s62, s2")
    T(f"s_cmp_eq_u32 s62, {opt('swg', 0)}")
    T("s_cselect_b32 s66, 256, 0")
    T("s_mov_b32 s62, 0")
    return o


def stamp_out(n):
    if not STAMP:
        return []
    return [raw("s_waitcnt vmcnt(0)", kind="wait")] + stamp()


def build_role():
    import io, contextlib
    RL = ROLE
    st = WaitState()
    G = 14
    rounds = []
    for r in range(3):
        buf = io.StringIO()
        with contextlib.redirect_stdout(buf):
            Sx = build_special(G)
            L1 = build_loop(G + 4)
            L2 = build_loop(G + 6)
        if r == 2:
            print(buf.getvalue(), end="")
            for nm, Rg in (("S", Sx), ("L", L1)):
                print(RL, nm, "loads:", " ".join(str(Rg.load(i)) for i in range(Rg.n)))
                print(RL, nm, "over24:", sum(max(0, Rg.load(i) - 24) for i in range(Rg.n)))
        sr = insert_waits(Sx.flatten(), st)
        l1 = insert_waits(L1.flatten(), st)
        l2 = insert_waits(L2.flatten(), st)
        rounds.append((sr, l1, l2))
        G += 8
    sr, l1, l2 = rounds[2]
    l1 = l2
    tx = lambda s: [x.text for x in s]
    if RL == "A":
        assert tx(rounds[2][1]) == tx(l2), "loop not steady"
    assert tx(rounds[1][0]) == tx(sr), "special not steady"
    assert tx(rounds[1][2]) == tx(l2)
    sp = {}
    mcount = 0
    for i, x in enumerate(sr):
        if x.kind == "mfma":
            if mcount in (64, 128, 192):
                j = i
                while sr[j - 1].kind == "wait":
                    j -= 1
                sp[mcount] = j
            mcount += 1
    s14, s15, s_b, s_c = sr[:sp[64]], sr[sp[64]:sp[128]], sr[sp[128]:sp[192]], sr[sp[192]:]
    vm = []
    if RL == "A":
        started = False
        last_m0 = None
        offs = [f"s_add_u32 s{r}," for r in (S_KOFF, S_KOFF2, S_VOFF, S_VOFF2)] + [f"s_and_b32 s{r}," for r in (S_KOFF, S_KOFF2, S_VOFF, S_VOFF2)]
        for x in s15:
            if x.kind == "salu" and x.text.startswith("s_add_u32 m0"):
                last_m0 = x
            if x.kind == "dma" and x.tag[0] == "K":
                started = True
            if started:
                if x.kind == "dma":
                    assert x.tag[0] in ("K", "V")
                    vm += [last_m0, nop(0), x]
                elif x.kind == "vmem_st":
                    vm.append(x)
                elif x.kind == "salu" and any(x.text.startswith(p) for p in offs):
                    vm.append(x)
    pro = prologue([uncountedcopy(x) for x in vm])
    pro_r = insert_waits(pro, WaitState())
    loop_ctl = [raw(f"s_add_u32 s{S_CNT}, s{S_CNT}, 1", kind="salu"),
                raw(f"s_cmp_lt_u32 s{S_CNT}, 6", kind="salu"),
                raw(f"s_cbranch_scc1 L_loop{RL}", kind="branch")]
    exit_ctl = [raw(f"s_add_u32 s{S_RHO}, s{S_RHO}, 1", kind="salu"),
                raw(f"s_cmp_eq_u32 s{S_RHO}, 4", kind="salu"),
                raw("s_cbranch_scc1 L_fin", kind="branch")]
    check_hazards(pro_r + s_b + exit_ctl + s_c + l1 + loop_ctl + l1 + loop_ctl + s14 + s15 + s_b + exit_ctl + s_c + l1, "main" + RL)
    names = [("l0" + RL, 0), ("l1" + RL, 1), ("s14" + RL, 0), ("s15" + RL, 1), ("s1" + RL, 1)]
    seq = [label(f"L_pro{RL}")] + pro_r + [raw(f"s_branch L_it0{RL}", kind="branch")]
    seq += [label(f"L_sa{RL}")] + stamp() + s14 + stamp() + s15 + [label(f"L_it0{RL}")] + stamp() + s_b + exit_ctl + stamp() + s_c + stamp() + [label(f"L_loop{RL}")] + l1 + loop_ctl
    seq += [raw(f"s_branch L_sa{RL}", kind="branch")]
    rare = []
    for nm, par in names:
        r = rare_path(par, nm)
        check_hazards(r, "rare")
        rare += r
    return seq, rare


def main():
    global ROLE
    head = prologue_head()
    ROLE = "A"
    sa, ra = build_role()
    ROLE = "B"
    sb, rb = build_role()
    seq = head[:2] + stamp_init() + stamp(0) + head[2:]
    seq += [raw(f"s_cmp_ge_u32 s{S_W}, 2", kind="salu"), raw("s_cbranch_scc1 L_proB", kind="branch")]
    seq += sa + [label("L_fin")] + stamp_out(2) + [label("L_end"), raw("s_endpgm")] + sb + ra + rb + [raw("s_endpgm")]
    hdr = open(f"cdna_kernels/{NAME}.s.ref").read().split("\n")
    head = [l for l in hdr if l.startswith(";") and "@launch" not in l and "Override" not in l and "grid=ceil" not in l]
    txt = "\n".join(head) + "\n"
    txt += f"; @launch grid=(256,1,1) block=(256,1,1) lds={LDS_BYTES}\n"
    txt += f'.amdgcn_target "amdgcn-amd-amdhsa--gfx950"\n.text\n.globl {NAME}_kernel\n.p2align 8\n.type {NAME}_kernel,@function\n{NAME}_kernel:\n'
    txt += render(seq) + "\n"
    txt += f""".section .rodata,"a"
.p2align 6
.amdhsa_kernel {NAME}_kernel
  .amdhsa_next_free_vgpr 512
  .amdhsa_next_free_sgpr 96
  .amdhsa_accum_offset 256
  .amdhsa_group_segment_fixed_size 0
  .amdhsa_kernarg_size 48
  .amdhsa_user_sgpr_count 2
  .amdhsa_user_sgpr_kernarg_segment_ptr 1
  .amdhsa_system_sgpr_workgroup_id_x 1
.end_amdhsa_kernel
"""
    out = sys.argv[1] if len(sys.argv) > 1 else f"cdna_kernels/{NAME}.s"
    open(out, "w").write(txt)
    print("wrote", out, len(seq), "instructions", len(txt), "bytes")


def uncountedcopy(x):
    y = Ins(x.text, rd=x.rd, wr=x.wr, kind=x.kind, cost=x.cost, tag=x.tag)
    return y


main()
```

```python
import sys, math, struct
sys.path.insert(0, "work")
from fw import *

NAME = "standalone__mha_softmax__near_ridge"
ARGS = sys.argv[2:]
STAMP = "stamp" in ARGS
PROF = "prof" in ARGS
PFS = 128


def opt(name, default):
    for a in ARGS:
        if a.startswith(name + "="):
            return int(a.split("=")[1])
    return default


OA = ("v", 0)
OB = ("a", 0)
QA = 128
QB = 192
SB = [128, 160]
P0 = 192
P1 = 208
FB = 216
TT = 232
V_KA, V_VA, V_DMA = 236, 237, 238
V_NMC = [239, 240]
V_L = [241, 242]
V_LT = [243, 244]
V_TMP = 245
V_QO = 246
V_T2 = 247
V_T3 = 248
V_QDMA = 249
V_QRD = 250
V_PF = 251
V_RINV = [252, 254]
V_QCUR = 253
V_TMP2 = 255

S_Q, S_K, S_V, S_O = 4, 8, 12, 16
S_XH = 3
S_W = 20
S_C = 21
S_THR = 22
S_KOFF = 23
S_VOFF = 24
S_KM0 = 25
S_VM0 = 26
S_CNT = 27
S_QS = 28
S_QSTEP = 29
S_NC = 30
S_QM = 31
S_KN = 48
S_VN = 50
S_KVN = 52
S_16K = 53
S_ON = 54
S_T = 57
S_QMB = 58
S_RHO = 59
S_KOFF2 = 68
S_VOFF2 = 69
S_PF = 72
S_PFOFF = 70
S_PFN = 76
S_WQ = 71
S_BQ = 78
S_BQM = 79
S_ROT = 80
S_ROT2 = 81
ROTM = opt('rot', 15)
ROLE = "A"
PD = opt("pd", 6)

KBLK, VBLK = 1040, 1088
KSLOT = [0, 16 * KBLK]
VSLOT = [32 * KBLK, 32 * KBLK + 16 * VBLK]
QBASE = 32 * KBLK + 32 * VBLK
QUNIT = 4224
QDUMMY = QBASE + 4 * 5 * QUNIT
LDS_BYTES = QDUMMY + 4224

SCALE = (256 ** -0.5) * math.log2(math.e)
HEAD = opt("head", 19)
HEAD0 = opt("head0", 12)
UNITS = [(0, 0), (1, 0), (0, 1), (1, 1), (0, 2)]
LATE = [((1, 2), 0), ((0, 3), 1), ((1, 3), 2)]


def f32bits(x):
    return struct.unpack("<I", struct.pack("<f", x))[0]


def Oacc(qb, t):
    k, lo = (OA, OB)[qb]
    return (k, lo + 16 * t)


def Qfrag(qb, ks):
    return ("a", (QA, QB)[qb] + 4 * ks)


def Sacc(buf, qb):
    return ("v", SB[buf] + 16 * qb)


def Pfrag(par, qb, s):
    if s == 0:
        return ("v", P0 + par * 8 + qb * 4)
    return ("v", P1 + qb * 4)


def S(text, rd=(), wr=()):
    return salu(text, rd=rd, wr=wr)


def k_read(f, slot):
    return [ds_read("ds_read_b128", "v", FB + 4 * (f % 4), 4, V_KA, KSLOT[slot] + 32 * f)]


def v_read(f, slot):
    t, s = f >> 1, f & 1
    b = FB + 4 * (f % 4)
    return [ds_read("ds_read_b64_tr_b16", "v", b + 2 * u, 2, V_VA, VSLOT[slot] + (2 * s + u) * 4 * VBLK + 64 * t) for u in (0, 1)]


def q_read(qb, ks, space):
    k, lo = Qfrag(qb, ks)
    return ds_read("ds_read_b128", k, lo, 4, V_QRD, space * QUNIT + 32 * (ks & 3))


def dma_unit(kind, j, four=False):
    slot = j & 1
    if kind == "K":
        base, blk, sl, srd, soff, soff2 = S_KM0, KBLK, KSLOT, S_K, S_KOFF, S_KOFF2
    else:
        base, blk, sl, srd, soff, soff2 = S_VM0, VBLK, VSLOT, S_V, S_VOFF, S_VOFF2
    rel = sl[slot] - sl[0]
    groups = []
    for half in ((0,) if four else (0, 1)):
        so = (soff, soff2)[half]
        for q in range(4):
            g = [S(f"s_add_u32 m0, s{base}, {rel + half * 4 * blk + (blk - 512) * q}", rd=[base], wr=["m0"]),
                 nop(0),
                 dma(V_DMA, srd, f"s{so}", 512 * q, tag=(kind, j))]
            if q == 3:
                g.append(S(f"s_add_u32 s{so}, s{so}, 16384", rd=[so], wr=[so]))
                g.append(S(f"s_and_b32 s{so}, s{so}, 0x3ffff", rd=[so], wr=[so]))
            groups.append(g)
    return groups


def q_dma_static(qb, lam, space, tag):
    groups = []
    for io in range(4):
        groups.append([S(f"s_add_u32 m0, s{S_QMB}, {space * QUNIT + 1056 * io}", rd=[S_QMB], wr=["m0"]),
                       S(f"s_add_u32 s40, s{S_WQ}, {qb * 16384 + lam * 128 + io * 4096}", wr=[40]),
                       dma(V_QDMA, S_Q, "s40", 0, tag=tag)])
    return groups


def softmax_steps(buf, par):
    def elem(e):
        s = e >> 4
        qb = (e >> 3) & 1
        r = 8 * s + (e & 7)
        return s, qb, r
    steps = []
    for k in range(34):
        st = []
        if k < 32:
            s, qb, r = elem(k)
            st.append(valu("v_fma_f32", TT + k % 4, SB[buf] + 16 * qb + r, f"s{S_C}", V_NMC[qb]))
        if 0 <= k - 1 < 32:
            e = k - 1
            st.append(trans("v_exp_f32", TT + e % 4, TT + e % 4))
        if 0 <= k - 2 < 32:
            e = k - 2
            s, qb, r = elem(e)
            if r == 1:
                st.append(valu("v_add_f32", V_LT[qb], TT + (e - 1) % 4, TT + e % 4))
            elif r > 1:
                st.append(valu("v_add_f32", V_LT[qb], V_LT[qb], TT + e % 4))
            if r & 1:
                pk, pl = Pfrag(par, qb, s)
                st.append(valu("v_cvt_pk_bf16_f32", pl + ((r & 7) >> 1), TT + (e - 1) % 4, TT + e % 4))
        steps.append(st)
    return steps


def swap32(a, b):
    return Ins(f"v_permlane32_swap_b32 v{a}, v{b}", rd=[("v", a), ("v", b)], wr=[("v", a), ("v", b)], kind="valu")


def row_max2(buf):
    dst = [V_T2, V_T3]
    tmp = [V_TMP, V_TMP2]
    groups = []
    b = [SB[buf], SB[buf] + 16]
    groups.append([valu("v_max3_f32", dst[q], b[q], b[q] + 1, b[q] + 2) for q in (0, 1)])
    for i in range(3, 15, 2):
        groups.append([valu("v_max3_f32", dst[q], dst[q], b[q] + i, b[q] + i + 1) for q in (0, 1)])
    groups.append([valu("v_max_f32", dst[q], dst[q], b[q] + 15) for q in (0, 1)])
    g = [valu("v_mov_b32", tmp[q], dst[q]) for q in (0, 1)]
    g += [nop(1)]
    g += [swap32(tmp[q], dst[q]) for q in (0, 1)]
    g += [nop(0)]
    g += [valu("v_max_f32", dst[q], dst[q], tmp[q]) for q in (0, 1)]
    g += [valu("v_mul_f32", V_NMC[q], f"s{S_NC}", dst[q]) for q in (0, 1)]
    groups.append(g)
    return groups


def rinv_group():
    tmp = [V_TMP, V_TMP2]
    g = [valu("v_mov_b32", tmp[q], V_L[q]) for q in (0, 1)]
    g += [nop(1)]
    g += [swap32(tmp[q], V_L[q]) for q in (0, 1)]
    g += [nop(0)]
    g += [valu("v_add_f32", V_L[q], V_L[q], tmp[q]) for q in (0, 1)]
    g += [trans("v_rcp_f32", V_RINV[q], V_L[q]) for q in (0, 1)]
    return g


def row_max(buf, qb, dst, tmp):
    b = SB[buf] + 16 * qb
    out = [valu("v_max3_f32", dst, b, b + 1, b + 2)]
    for i in range(3, 15, 2):
        out.append(valu("v_max3_f32", dst, dst, b + i, b + i + 1))
    out.append(valu("v_max_f32", dst, dst, b + 15))
    out.append(valu("v_mov_b32", tmp, dst))
    out.append(nop(1))
    out.append(swap32(tmp, dst))
    out.append(nop(0))
    out.append(valu("v_max_f32", dst, dst, tmp))
    return out


def flat(steps):
    out = []
    for st in steps:
        out += st
        out.append(nop(0))
    return out


def rare_path(par, name):
    out = [label(f"L_rare{name}")]
    out.append(nop(7))
    for qb in (0, 1):
        out += row_max(par, qb, V_T2, V_TMP)
        out.append(valu("v_mul_f32", V_T2, f"s{S_NC}", V_T2))
        out.append(valu("v_min_f32", V_T2, V_T2, V_NMC[qb]))
        out.append(valu("v_sub_f32", V_T3, V_T2, V_NMC[qb]))
        out.append(trans("v_exp_f32", V_T3, V_T3))
        out.append(valu("v_mov_b32", V_NMC[qb], V_T2))
        out.append(valu("v_mul_f32", V_L[qb], V_L[qb], V_T3))
        for r in range(128):
            if qb == 0:
                out.append(valu("v_mul_f32", r, r, V_T3))
            else:
                out.append(valu("v_accvgpr_read_b32", V_TMP, ("a", r)))
                out.append(valu("v_mul_f32", V_TMP, V_TMP, V_T3))
                out.append(valu("v_accvgpr_write_b32", ("a", r), V_TMP))
    out += flat(softmax_steps(par, par))
    out.append(nop(3))
    out.append(raw(f"s_branch L_back{name}", kind="branch"))
    return out


def pk_mul(r, qb):
    sel = "op_sel_hi:[1,0]"
    p = V_RINV[qb]
    return Ins(f"v_pk_mul_f32 v[{r}:{r+1}], v[{r}:{r+1}], v[{p}:{p+1}] {sel}",
               rd=[("v", r), ("v", r + 1), ("v", V_RINV[qb])], wr=[("v", r), ("v", r + 1)], kind="valu")


def epi_items(t):
    b = 16 * t
    ga = []
    for gp in (0, 1):
        o = b + 8 * gp
        ga.append([pk_mul(o + 2 * j, 0) for j in range(4)])
        ga.append([valu("v_cvt_pk_bf16_f32", o + e, o + 2 * e, o + 2 * e + 1) for e in range(4)])
        ga.append([bstore("v", o, 4, V_QO, S_O, "0", 64 * t + 32 * gp, tag="ST")])
    gb = []
    tmp = [b + 4, b + 5, b + 6, b + 7, b + 12, b + 13, b + 14, b + 15]
    gb.append([valu("v_accvgpr_read_b32", tmp[e], ("a", b + e)) for e in range(4)])
    gb.append([valu("v_accvgpr_read_b32", tmp[e], ("a", b + e)) for e in range(4, 8)])
    gb.append([pk_mul(tmp[2 * j], 1) for j in range(4)])
    gb.append([valu("v_cvt_pk_bf16_f32", b + 4 + e, tmp[2 * e], tmp[2 * e + 1]) for e in range(4)])
    gb.append([bstore("v", b + 4, 4, V_QO, S_O, f"s{S_16K}", 64 * t, tag="ST")])
    tmp = [b + 8 + e for e in range(8)]
    gb.append([valu("v_accvgpr_read_b32", tmp[e], ("a", b + 8 + e)) for e in range(4)])
    gb.append([valu("v_accvgpr_read_b32", tmp[e], ("a", b + 8 + e)) for e in range(4, 8)])
    gb.append([pk_mul(tmp[2 * j], 1) for j in range(4)])
    gb.append([valu("v_cvt_pk_bf16_f32", b + 8 + e, tmp[2 * e], tmp[2 * e + 1]) for e in range(4)])
    gb.append([bstore("v", b + 8, 4, V_QO, S_O, f"s{S_16K}", 64 * t + 32, tag="ST")])
    return ga, gb


def tile_params():
    o = []
    A = lambda t: o.append([S(t)])
    A(f"s_mul_hi_u32 s42, s{S_T}, 0x55555556")
    A("s_mul_i32 s43, s42, 3")
    A(f"s_sub_u32 s43, s{S_T}, s43")
    A(f"s_add_u32 s42, s42, s{S_XH}")
    A("s_mul_i32 s44, s42, 376832")
    A("s_lshl_b32 s43, s43, 17")
    A("s_add_u32 s44, s44, s43")
    A("s_lshl_b32 s45, s42, 18")
    A(f"s_lshr_b32 s{S_ROT}, s42, 4")
    A(f"s_xor_b32 s{S_ROT}, s{S_ROT}, s42")
    A(f"s_and_b32 s{S_ROT}, s{S_ROT}, {ROTM}")
    A(f"s_lshl_b32 s{S_ROT}, s{S_ROT}, 14")
    A(f"s_add_u32 s{S_ROT2}, s{S_ROT}, 0x1000")
    A("s_sub_u32 s43, 376832, s43")
    o.append([S(f"s_cmp_lt_u32 s{S_T}, 96"), S("s_cselect_b32 s43, s43, 0"), S(f"s_cselect_b32 s{S_KVN}, 262144, 0")])
    o.append([S(f"s_add_u32 s{S_Q}, s32, s44"), S(f"s_addc_u32 s{S_Q+1}, s33, 0")])
    A(f"s_and_b32 s{S_Q+1}, s{S_Q+1}, 0xffff")
    A(f"s_mov_b32 s{S_Q+2}, s43")
    o.append([S(f"s_add_u32 s{S_ON}, s38, s44"), S(f"s_addc_u32 s{S_ON+1}, s39, 0")])
    A(f"s_and_b32 s{S_ON+1}, s{S_ON+1}, 0xffff")
    A(f"s_mov_b32 s{S_ON+2}, s43")
    o.append([S(f"s_add_u32 s{S_KN}, s34, s45"), S(f"s_addc_u32 s{S_KN+1}, s35, 0")])
    A(f"s_and_b32 s{S_KN+1}, s{S_KN+1}, 0xffff")
    o.append([S(f"s_add_u32 s{S_VN}, s36, s45"), S(f"s_addc_u32 s{S_VN+1}, s37, 0")])
    A(f"s_and_b32 s{S_VN+1}, s{S_VN+1}, 0xffff")
    return o


class Region:
    def __init__(self, n):
        self.n = n
        self.mf = [None] * n
        self.g = [[] for _ in range(n)]

    def add(self, gap, items):
        self.g[gap] += [x for x in items if x is not None]

    def load(self, gap):
        return sum(x.cost for x in self.g[gap])

    def place(self, seqs, name=""):
        base = [self.load(i) for i in range(self.n)]

        def attempt(level):
            ld = list(base)
            res = []
            cur = 0
            for grp, rel, dl in seqs:
                c = sum(x.cost for x in grp)
                g = max(cur, rel)
                while g <= dl and ld[g] + c > level and not (ld[g] == 0):
                    g += 1
                if g > dl:
                    return None
                ld[g] += c
                res.append(g)
                cur = g
            return res
        level = 8
        while True:
            r = attempt(level)
            if r is not None:
                break
            level += 2
            assert level < 400, "cannot place " + name
        for (grp, rel, dl), g in zip(seqs, r):
            self.g[g] += grp
        if name:
            print(f"  place {name}: level {level}")

    def flatten(self):
        out = []
        for i in range(self.n):
            if self.mf[i] is not None:
                out.append(self.mf[i])
            out += self.g[i]
        return out


def base_iteration(R_, b, role, G, name, extra59=()):
    par = G & 1
    np_ = par ^ 1
    first_of_tile = (role == 0)
    for ks in range(16):
        for qb in (0, 1):
            F = ("v", FB + 4 * (ks % 4))
            D = Sacc(np_, qb)
            R_.mf[b + 2 * ks + qb] = mfma32(D, F, Qfrag(qb, ks), None if ks == 0 else D)
    for f in range(16):
        t, s = f >> 1, f & 1
        for qb in (0, 1):
            F = ("v", FB + 4 * (f % 4))
            D = Oacc(qb, t)
            C = None if (first_of_tile and s == 0) else D
            R_.mf[b + 32 + 2 * f + qb] = mfma32(D, F, Pfrag(par, qb, s), C)
    extra59 = list(extra59)
    for f in range(4, 16):
        R_.add(b + 2 * f - 7, k_read(f, np_))
    A_ = ROLE == "A"

    def prof(w, acc):
        if not PROF:
            return list(w) + [wait_lgkm0(), barrier()]
        T = lambda t: raw(t, kind="salu", cost=0)
        return [wait_lgkm0(), T("s_memtime s[82:83]"), wait_lgkm0()] + list(w) + [T("s_memtime s[84:85]"), raw("s_waitcnt lgkmcnt(0)", kind="wait", cost=0), barrier(),
                T("s_memtime s[86:87]"), raw("s_waitcnt lgkmcnt(0)", kind="wait", cost=0),
                T("s_sub_u32 s82, s84, s82"), T("s_sub_u32 s84, s86, s84"),
                T(f"s_add_u32 s{acc}, s{acc}, s82"), T(f"s_add_u32 s{acc+1}, s{acc+1}, s84")]
    R_.add(b + 27, prof([wait_vm(("V", G))] if A_ else [], 88) + v_read(0, par) + v_read(1, par))
    R_.add(b + 29, v_read(2, par))
    R_.add(b + 31, v_read(3, par))
    for f in range(4, 16):
        R_.add(b + 32 + 2 * f - 7, v_read(f, par))
    R_.add(b + 59, prof([wait_vm(("K", G + 2))] if A_ else extra59, 90) + k_read(0, par) + k_read(1, par))
    R_.add(b + 61, k_read(2, par))
    R_.add(b + 63, k_read(3, par))
    if A_:
        grp = dma_unit("K", G + 3)
        for q, g in enumerate(grp):
            R_.add(b + KD[q], g)
        grp = dma_unit("V", G + 2)
        for q in range(4):
            R_.add(b + VD[q], grp[q])
        grp = dma_unit("V", G + 1)
        for q in range(4):
            R_.add(b + VD2[q], grp[4 + q])
    else:
        for q in range(2):
            g = [S(f"s_mov_b32 m0, {QDUMMY}", wr=["m0"]),
                 S(f"s_add_u32 s41, s{S_PFOFF}, {8192 * q}"),
                 Ins(f"buffer_load_dword v{V_DMA}, s[{S_PF}:{S_PF+3}], s41 offen lds", rd=[("v", V_DMA), ("s", "m0")], kind="dma", cost=16, tag=("PF", G))]
            if q == 1:
                g.append(S(f"s_add_u32 s{S_PFOFF}, s{S_PFOFF}, 16384"))
                g.append(S(f"s_and_b32 s{S_PFOFF}, s{S_PFOFF}, 0x3ffff"))
            R_.add(b + PFD[q], g)


KD = [29, 32, 35, 38, 41, 44, 47, 50]
VD = [60, 61, 62, 63]
VD2 = [0, 2, 4, 6]
QD = [34, 38, 42, 46]
PFD = [12, 20]


def softmax_part(R_, b, role, G, name, head_prev, head_next, next_true_max=False):
    name = name + ROLE
    par = G & 1
    np_ = par ^ 1
    st = softmax_steps(par, par)
    R_.place([(s_, b + 0, b + 28) for s_ in st[head_prev:]], name + ".tail")
    if role == 0:
        R_.add(b + 30, [valu("v_mov_b32", V_L[0], V_LT[0]), valu("v_mov_b32", V_L[1], V_LT[1])])
    else:
        R_.add(b + 29, [valu("v_add_f32", V_TMP, V_LT[0], V_LT[1])])
        R_.add(b + 30, [valu("v_cmp_nge_f32", "vcc", f"s{S_THR}", V_TMP),
                        raw(f"s_cbranch_vccnz L_rare{name}", kind="branch"),
                        label(f"L_back{name}"),
                        valu("v_add_f32", V_L[0], V_L[0], V_LT[0]),
                        valu("v_add_f32", V_L[1], V_L[1], V_LT[1])])
    st = softmax_steps(np_, np_)
    seq = []
    lo = b + 35
    if next_true_max:
        seq.append((rinv_group(), b + 32, b + 34))
        for g in row_max2(np_):
            seq.append((g, b + 34, b + 63))
    for s_ in st[:head_next]:
        seq.append((s_, lo, b + 63))
    R_.place(seq, name + ".head")


def build_loop(G):
    R_ = Region(128)
    c = S_CNT
    x59 = []
    if ROLE == "B":
        x59 = [S(f"s_cmp_lg_u32 s{c}, 5"), raw("s_cbranch_scc1 L_skipq", kind="branch"), wait_vm(("Q", G - 1)), label("L_skipq")]
    base_iteration(R_, 0, 2, G, "l0")
    base_iteration(R_, 64, 3, G + 1, "l1", extra59=x59)
    if ROLE == "B":
        R_.add(1, [S(f"s_cmp_eq_u32 s{c}, 4"),
                   S(f"s_cselect_b32 s{S_PF}, s{S_PFN}, s{S_PF}"),
                   S(f"s_cselect_b32 s{S_PF+1}, s{S_PFN+1}, s{S_PF+1}"),
                   S(f"s_cselect_b32 s{S_PF+2}, s{S_KVN}, s{S_PF+2}"),
                   S(f"s_cselect_b32 s{S_PFOFF}, s{S_ROT}, s{S_PFOFF}")])
        pre = [S(f"s_and_b32 s42, s{c}, 1"), S("s_lshl_b32 s42, s42, 14"), S(f"s_lshr_b32 s43, s{c}, 1"),
               S("s_lshl_b32 s43, s43, 7"), S("s_or_b32 s44, s42, s43"),
               S(f"s_mul_i32 s45, s{c}, {QUNIT}"), S(f"s_add_u32 s45, s45, s{S_BQM}")]
        sel = [S(f"s_cmp_eq_u32 s{c}, 5"), S("s_cselect_b32 s44, 256, s44"),
               S(f"s_cselect_b32 s{S_QSTEP}, s{S_16K}, 0x1000"),
               S(f"s_cselect_b32 s46, 0, {5 * QUNIT}"),
               S(f"s_cselect_b32 s45, {QDUMMY}, s45"),
               S("s_cselect_b64 vcc, -1, 0"),
               valu("v_cndmask_b32", V_QCUR, V_QDMA, V_PF, "vcc")]
        for k, x in enumerate(pre):
            R_.add(3 + 2 * k, [x])
        R_.add(18, sel)
        for it in (0, 1):
            b = 64 * it
            if it == 0:
                R_.add(b + 22, [S(f"s_add_u32 s{S_QS}, s44, s{S_BQ}"), S(f"s_mov_b32 s{S_QM}, s45")])
            else:
                R_.add(b + 22, [S(f"s_add_u32 s{S_QS}, s44, s{S_BQ}"), S(f"s_add_u32 s{S_QS}, s{S_QS}, 32768"), S(f"s_add_u32 s{S_QM}, s45, s46")])
            for io in range(4):
                R_.add(b + QD[io], [S(f"s_add_u32 m0, s{S_QM}, {1056 * io}", rd=[S_QM], wr=["m0"]), nop(0),
                                    dma(V_QCUR, S_Q, f"s{S_QS}", 0, tag=("Q", G + it)),
                                    S(f"s_add_u32 s{S_QS}, s{S_QS}, s{S_QSTEP}")])
    else:
        R_.add(64 + 4, [S(f"s_cmp_eq_u32 s{c}, 5"),
                        S(f"s_cselect_b32 s{S_K}, s{S_KN}, s{S_K}"),
                        S(f"s_cselect_b32 s{S_K+1}, s{S_KN+1}, s{S_K+1}"),
                        S(f"s_cselect_b32 s{S_K+2}, s{S_KVN}, s{S_K+2}"),
                        S(f"s_cselect_b32 s{S_KOFF}, s{S_ROT}, s{S_KOFF}"),
                        S(f"s_cselect_b32 s{S_KOFF2}, s{S_ROT2}, s{S_KOFF2}")])
    softmax_part(R_, 0, 2, G, "l0", HEAD, HEAD)
    softmax_part(R_, 64, 3, G + 1, "l1", HEAD, HEAD)
    return R_


def build_special(G):
    R_ = Region(256)
    base_iteration(R_, 0, 14, G, "s14")
    base_iteration(R_, 64, 15, G + 1, "s15")
    base_iteration(R_, 128, 0, G + 2, "s0")
    base_iteration(R_, 192, 1, G + 3, "s1")
    if ROLE == "A":
        R_.add(50, [S(f"s_mov_b32 s{S_V}, s{S_VN}"), S(f"s_mov_b32 s{S_V+1}, s{S_VN+1}"),
                    S(f"s_mov_b32 s{S_V+2}, s{S_KVN}"), S(f"s_mov_b32 s{S_VOFF}, s{S_ROT}"), S(f"s_mov_b32 s{S_VOFF2}, s{S_ROT2}")])
    for u, (qb, lam) in enumerate(UNITS):
        for ksl in range(4):
            ks = 4 * lam + ksl
            R_.add(2 * ks + qb + 2, [q_read(qb, ks, u)])
    def unit_regs(qb, lam):
        r = []
        for ksl in range(4):
            k, lo = Qfrag(qb, 4 * lam + ksl)
            r += R(k, lo, 4)
        return r
    late_start = [11, 12, 19]
    for idx, ((qb, lam), space) in enumerate(LATE):
        oq, ol = UNITS[space]
        grp = q_dma_static(qb, lam, space, ("QL", G, idx))
        grp[0] = [touch(unit_regs(oq, ol))] + grp[0]
        g0 = late_start[idx]
        for io in range(4):
            R_.add(g0 + 2 * io, grp[io])
    rd_at = [64 + LR0, 64 + LR1, 64 + LR2]
    for idx, ((qb, lam), space) in enumerate(LATE):
        R_.add(rd_at[idx], [wait_vm(("QL", G, idx))] + [q_read(qb, 4 * lam + ksl, space) for ksl in range(4)])
    softmax_part(R_, 0, 14, G, "s14", HEAD, HEAD)
    softmax_part(R_, 64, 15, G + 1, "s15", HEAD, HEAD0, next_true_max=True)
    softmax_part(R_, 128, 0, G + 2, "s0", HEAD0, HEAD)
    softmax_part(R_, 192, 1, G + 3, "s1", HEAD, HEAD)
    seq = []
    for t in range(8):
        ga, gb = epi_items(t)
        rel_a = 64 + 32 + 4 * t + 2 + EREL
        rel_b = rel_a + 1
        dl = 128 + 32 + 4 * t - 1
        seq += [(g, rel_a, dl) for g in ga] + [(g, rel_b, dl) for g in gb]
    R_.place(seq, "epilogue")
    seq = [([S(f"s_mov_b32 s{S_O}, s{S_ON}"), S(f"s_mov_b32 s{S_O+1}, s{S_ON+1}"), S(f"s_mov_b32 s{S_O+2}, s{S_ON+2}")], 192 + 2, 250)]
    seq.append(([S(f"s_add_u32 s{S_T}, s{S_T}, 32")], 192 + 2, 250))
    seq += [(g, 192 + 2, 250) for g in tile_params()]
    seq.append(([S(f"s_mov_b32 s{S_CNT}, 0")], 192 + 2, 250))
    if ROLE == "B":
        seq.append(([S(f"s_cmp_eq_u32 s{S_W}, 2"), S(f"s_cselect_b32 s{S_PFN}, s{S_KN}, s{S_VN}"),
                     S(f"s_cselect_b32 s{S_PFN+1}, s{S_KN+1}, s{S_VN+1}")], 192 + 2, 250))
    R_.place(seq, "params")
    return R_


LR0 = opt("lr0", 10)
LR1 = opt("lr1", 16)
LR2 = opt("lr2", 18)
EREL = opt("erel", 4)


def prologue_head():
    o = []
    A = o.append
    T = lambda s: A(raw(s, kind="salu"))
    T("s_cmp_ge_u32 s2, 256")
    A(raw("s_cbranch_scc1 L_end", kind="branch"))
    T("s_load_dwordx4 s[32:35], s[0:1], 0")
    T("s_load_dwordx4 s[36:39], s[0:1], 16")
    T(f"s_and_b32 s{S_XH}, s2, 7")
    T(f"s_lshl_b32 s{S_XH}, s{S_XH}, 5")
    T(f"s_lshr_b32 s{S_T}, s2, 3")
    T(f"s_mov_b32 s{S_16K}, 16384")
    A(valu("v_lshrrev_b32", V_TMP, "6", 0))
    A(valu("v_and_b32", V_T2, "63", 0))
    A(valu("v_readfirstlane_b32", f"s{S_W}", V_TMP))
    A(raw("s_waitcnt lgkmcnt(0)", kind="wait"))
    return o


def prologue(it15_vm):
    o = []
    A = o.append
    T = lambda s: A(raw(s, kind="salu"))
    for g in tile_params():
        o += g
    T(f"s_mov_b32 s{S_Q+3}, 0x00020000")
    T(f"s_mov_b32 s{S_K}, s{S_KN}")
    T(f"s_mov_b32 s{S_K+1}, s{S_KN+1}")
    T(f"s_mov_b32 s{S_K+2}, 262144")
    T(f"s_mov_b32 s{S_K+3}, 0x00020000")
    T(f"s_mov_b32 s{S_V}, s{S_VN}")
    T(f"s_mov_b32 s{S_V+1}, s{S_VN+1}")
    T(f"s_mov_b32 s{S_V+2}, 262144")
    T(f"s_mov_b32 s{S_V+3}, 0x00020000")
    T(f"s_mov_b32 s{S_O}, s{S_ON}")
    T(f"s_mov_b32 s{S_O+1}, s{S_ON+1}")
    T(f"s_mov_b32 s{S_O+2}, 0")
    T(f"s_mov_b32 s{S_O+3}, 0x00020000")
    T(f"s_mov_b32 s{S_C}, {f32bits(SCALE):#x}")
    T(f"s_mov_b32 s{S_NC}, {f32bits(-SCALE):#x}")
    T(f"s_mov_b32 s{S_THR}, {f32bits(4096.0):#x}")
    T(f"s_mov_b32 s{S_KOFF}, s{S_ROT}")
    T(f"s_mov_b32 s{S_VOFF}, s{S_ROT}")
    T(f"s_mov_b32 s{S_RHO}, 0")
    T(f"s_mul_i32 s{S_KM0}, s{S_W}, {4*KBLK}")
    T(f"s_add_u32 s{S_KM0}, s{S_KM0}, {KSLOT[0]}")
    T(f"s_mul_i32 s{S_VM0}, s{S_W}, {4*VBLK}")
    T(f"s_add_u32 s{S_VM0}, s{S_VM0}, {VSLOT[0]}")
    T(f"s_mul_i32 s{S_QMB}, s{S_W}, {5*QUNIT}")
    T(f"s_add_u32 s{S_QMB}, s{S_QMB}, {QBASE}")
    T(f"s_lshl_b32 s{S_WQ}, s{S_W}, 15")
    L = V_T2
    A(valu("v_lshrrev_b32", V_TMP, "5", L))
    A(valu("v_lshlrev_b32", V_DMA, "11", V_TMP))
    A(valu("v_and_b32", V_T3, "31", L))
    A(valu("v_lshl_add_u32", V_DMA, V_T3, "4", V_DMA))
    T(f"s_lshl_b32 s46, s{S_W}, 12")
    A(valu("v_add_u32", V_DMA, "s46", V_DMA))
    A(valu("v_lshrrev_b32", TT, "3", L))
    A(valu("v_bfe_u32", TT + 1, L, "4", "1"))
    A(valu("v_and_b32", TT + 2, "7", L))
    A(valu("v_xor_b32", TT + 2, TT + 2, TT + 1))
    A(valu("v_lshlrev_b32", V_QDMA, "9", TT))
    A(valu("v_lshl_add_u32", V_QDMA, TT + 2, "4", V_QDMA))

    def issue(kind, j):
        r = []
        for g in dma_unit(kind, j, four=True):
            r += g
        return r
    o += issue("K", 0)
    for u, (qb, lam) in enumerate(UNITS):
        for g in q_dma_static(qb, lam, u, ("Q0", u)):
            o += g
    A(valu("v_lshlrev_b32", V_QO, "9", V_T3))
    A(valu("v_lshl_add_u32", V_PF, V_TMP, "7", V_QO))
    A(valu("v_add_u32", V_QO, f"s{S_WQ}", V_QO))
    A(valu("v_lshl_add_u32", V_QO, V_TMP, "4", V_QO))
    for (qb, lam), _ in LATE:
        for ksl in range(4):
            ks = 4 * lam + ksl
            k, lo = Qfrag(qb, ks)
            A(bload(k, lo, 4, V_QO, S_Q, f"s{S_16K}" if qb else "0", 32 * ks, tag="QD"))
    o += issue("K", 1)
    o += issue("V", 0)
    A(valu("v_and_b32", V_KA, "3", V_T3))
    A(valu("v_lshrrev_b32", TT, "3", V_T3))
    A(valu("v_lshl_add_u32", V_KA, TT, "2", V_KA))
    T(f"s_movk_i32 s46, {KBLK}")
    A(valu("v_mul_lo_u32", V_KA, V_KA, "s46"))
    A(valu("v_bfe_u32", TT, V_T3, "2", "1"))
    A(valu("v_lshl_add_u32", V_KA, TT, "9", V_KA))
    A(valu("v_lshl_add_u32", V_KA, V_TMP, "4", V_KA))
    A(valu("v_bfe_u32", V_VA, L, "2", "2"))
    T(f"s_movk_i32 s46, {VBLK}")
    A(valu("v_mul_lo_u32", V_VA, V_VA, "s46"))
    A(valu("v_lshl_add_u32", V_VA, V_TMP, "9", V_VA))
    A(valu("v_bfe_u32", TT, L, "4", "1"))
    A(valu("v_lshl_add_u32", V_VA, TT, "5", V_VA))
    A(valu("v_and_b32", TT, "1", L))
    A(valu("v_lshl_add_u32", V_VA, TT, "4", V_VA))
    A(valu("v_bfe_u32", TT, L, "1", "1"))
    A(valu("v_lshl_add_u32", V_VA, TT, "3", V_VA))
    A(valu("v_lshrrev_b32", TT, "3", V_T3))
    T("s_movk_i32 s46, 1056")
    A(valu("v_mul_lo_u32", V_QRD, TT, "s46"))
    A(valu("v_and_b32", TT, "7", V_T3))
    A(valu("v_lshl_add_u32", V_QRD, TT, "7", V_QRD))
    A(valu("v_bfe_u32", TT, V_T3, "1", "1"))
    A(valu("v_xor_b32", TT, TT, V_TMP))
    A(valu("v_lshl_add_u32", V_QRD, TT, "4", V_QRD))
    A(valu("v_add_u32", V_QRD, f"s{S_QMB}", V_QRD))
    A(valu("v_mov_b32", V_RINV[0], "0"))
    A(valu("v_mov_b32", V_RINV[1], "0"))
    if ROLE == "A":
        T(f"s_lshl_b32 s46, s{S_W}, 12")
        A(valu("v_add_u32", V_DMA, "s46", V_DMA))
        T(f"s_mul_i32 s{S_KM0}, s{S_W}, {8*KBLK}")
        T(f"s_add_u32 s{S_KM0}, s{S_KM0}, {KSLOT[0]}")
        T(f"s_mul_i32 s{S_VM0}, s{S_W}, {8*VBLK}")
        T(f"s_add_u32 s{S_VM0}, s{S_VM0}, {VSLOT[0]}")
        T(f"s_add_u32 s{S_KOFF2}, s{S_KOFF}, 4096")
        T(f"s_add_u32 s{S_VOFF2}, s{S_VOFF}, 4096")
    else:
        A(valu("v_lshlrev_b32", V_DMA, "7", L))
        T(f"s_cmp_eq_u32 s{S_W}, 2")
        T(f"s_cselect_b32 s{S_PF}, s{S_K}, s{S_V}")
        T(f"s_cselect_b32 s{S_PF+1}, s{S_K+1}, s{S_V+1}")
        T(f"s_mov_b32 s{S_PF+2}, 262144")
        T(f"s_mov_b32 s{S_PF+3}, 0x00020000")
        T(f"s_sub_u32 s46, s{S_W}, 2")
        T(f"s_lshl_b32 s{S_BQ}, s46, 16")
        T(f"s_mul_i32 s{S_BQM}, s46, {10 * QUNIT}")
        T(f"s_add_u32 s{S_BQM}, s{S_BQM}, {QBASE}")
        T(f"s_add_u32 s{S_PFOFF}, s{S_ROT}, {2 * 16384}")
        T(f"s_and_b32 s{S_PFOFF}, s{S_PFOFF}, 0x3ffff")
        T(f"s_mov_b32 m0, {QDUMMY}")
        for k in range(2 * (PD - 2)):
            A(Ins(f"buffer_load_dword v{V_DMA}, s[{S_PF}:{S_PF+3}], s{S_PFOFF} offen lds", rd=[("v", V_DMA), ("s", "m0")], kind="dma", cost=16, tag="PF0"))
            T(f"s_add_u32 s{S_PFOFF}, s{S_PFOFF}, 8192")
            T(f"s_and_b32 s{S_PFOFF}, s{S_PFOFF}, 0x3ffff")
    A(wait_vm(("K", 0)))
    A(barrier())
    for f in range(4):
        o += k_read(f, 0)
    for ks in range(16):
        lam = ks >> 2
        if (ks & 3) == 0:
            for u, (qb, l2) in enumerate(UNITS):
                if l2 == lam:
                    A(wait_vm(("Q0", u)))
                    for ksl in range(4):
                        A(q_read(qb, 4 * lam + ksl, u))
        for qb in (0, 1):
            F = ("v", FB + 4 * (ks % 4))
            D = Sacc(0, qb)
            A(mfma32(D, F, Qfrag(qb, ks), None if ks == 0 else D))
            g = 2 * ks + qb
            if g >= 1 and (g + 7) % 2 == 0 and 4 <= (g + 7) // 2 < 16:
                o += k_read((g + 7) // 2, 0)
            if g == 27:
                o += [wait_vm(("V", 0)), wait_lgkm0(), barrier()]
                o += k_read(0, 1) + k_read(1, 1)
            if g == 29:
                o += k_read(2, 1)
            if g == 31:
                o += k_read(3, 1)
    o += it15_vm
    A(nop(7))
    A(nop(7))
    for g in row_max2(0):
        o += g
    o += flat(softmax_steps(0, 0)[:HEAD0])
    A(wait_lgkm0())
    return o


def stamp(k=0, force=False):
    if not STAMP or (PROF and not force):
        return []
    return [raw("s_memtime s[60:61]", kind="salu"), raw("s_waitcnt lgkmcnt(0)", kind="wait"),
            raw("v_mov_b32 v255, s60"), raw("buffer_store_dword v255, off, s[64:67], s62"),
            raw("s_add_u32 s62, s62, 4", kind="salu")]


def stamp_init():
    if not STAMP:
        return []
    o = []
    T = lambda s: o.append(raw(s, kind="salu"))
    T("s_load_dwordx2 s[64:65], s[0:1], 32")
    T("v_lshrrev_b32 v255, 6, v0")
    T("s_nop 1")
    T("v_readfirstlane_b32 s62, v255")
    T("s_waitcnt lgkmcnt(0)")
    T("s_and_b32 s65, s65, 0xffff")
    T("s_mov_b32 s67, 0x00020000")
    T("s_lshl_b32 s62, s62, 8")
    T("s_add_u32 s62, s62, s2")
    T(f"s_cmp_eq_u32 s62, {opt('swg', 0)}")
    T("s_cselect_b32 s66, 256, 0")
    T("s_mov_b32 s62, 0")
    for k in range(4):
        T(f"s_mov_b32 s{88+k}, 0")
    return o


def stamp_out(n):
    if not STAMP:
        return []
    o = [raw("s_waitcnt vmcnt(0)", kind="wait")] + stamp(force=True)
    if PROF:
        for k in range(4):
            o += [raw(f"v_mov_b32 v255, s{88+k}"), raw("buffer_store_dword v255, off, s[64:67], s62"), raw("s_add_u32 s62, s62, 4", kind="salu")]
    return o


def build_role():
    import io, contextlib
    RL = ROLE
    st = WaitState()
    G = 14
    rounds = []
    for r in range(3):
        buf = io.StringIO()
        with contextlib.redirect_stdout(buf):
            Sx = build_special(G)
            L1 = build_loop(G + 4)
            L2 = build_loop(G + 6)
        if r == 2:
            print(buf.getvalue(), end="")
            for nm, Rg in (("S", Sx), ("L", L1)):
                print(RL, nm, "loads:", " ".join(str(Rg.load(i)) for i in range(Rg.n)))
                print(RL, nm, "over24:", sum(max(0, Rg.load(i) - 24) for i in range(Rg.n)))
        sr = insert_waits(Sx.flatten(), st)
        l1 = insert_waits(L1.flatten(), st)
        l2 = insert_waits(L2.flatten(), st)
        rounds.append((sr, l1, l2))
        G += 8
    sr, l1, l2 = rounds[2]
    l1 = l2
    tx = lambda s: [x.text for x in s]
    if RL == "A":
        assert tx(rounds[2][1]) == tx(l2), "loop not steady"
    assert tx(rounds[1][0]) == tx(sr), "special not steady"
    assert tx(rounds[1][2]) == tx(l2)
    sp = {}
    mcount = 0
    for i, x in enumerate(sr):
        if x.kind == "mfma":
            if mcount in (64, 128, 192):
                j = i
                while sr[j - 1].kind == "wait":
                    j -= 1
                sp[mcount] = j
            mcount += 1
    s14, s15, s_b, s_c = sr[:sp[64]], sr[sp[64]:sp[128]], sr[sp[128]:sp[192]], sr[sp[192]:]
    vm = []
    if RL == "A":
        started = False
        last_m0 = None
        offs = [f"s_add_u32 s{r}," for r in (S_KOFF, S_KOFF2, S_VOFF, S_VOFF2)] + [f"s_and_b32 s{r}," for r in (S_KOFF, S_KOFF2, S_VOFF, S_VOFF2)]
        for x in s15:
            if x.kind == "salu" and x.text.startswith("s_add_u32 m0"):
                last_m0 = x
            if x.kind == "dma" and x.tag[0] == "K":
                started = True
            if started:
                if x.kind == "dma":
                    assert x.tag[0] in ("K", "V")
                    vm += [last_m0, nop(0), x]
                elif x.kind == "vmem_st":
                    vm.append(x)
                elif x.kind == "salu" and any(x.text.startswith(p) for p in offs):
                    vm.append(x)
    pro = prologue([uncountedcopy(x) for x in vm])
    pro_r = insert_waits(pro, WaitState())
    loop_ctl = [raw(f"s_add_u32 s{S_CNT}, s{S_CNT}, 1", kind="salu"),
                raw(f"s_cmp_lt_u32 s{S_CNT}, 6", kind="salu"),
                raw(f"s_cbranch_scc1 L_loop{RL}", kind="branch")]
    exit_ctl = [raw(f"s_add_u32 s{S_RHO}, s{S_RHO}, 1", kind="salu"),
                raw(f"s_cmp_eq_u32 s{S_RHO}, 4", kind="salu"),
                raw("s_cbranch_scc1 L_fin", kind="branch")]
    check_hazards(pro_r + s_b + exit_ctl + s_c + l1 + loop_ctl + l1 + loop_ctl + s14 + s15 + s_b + exit_ctl + s_c + l1, "main" + RL)
    names = [("l0" + RL, 0), ("l1" + RL, 1), ("s14" + RL, 0), ("s15" + RL, 1), ("s1" + RL, 1)]
    seq = [label(f"L_pro{RL}")] + pro_r + [raw(f"s_branch L_it0{RL}", kind="branch")]
    seq += [label(f"L_sa{RL}")] + stamp() + s14 + stamp() + s15 + [label(f"L_it0{RL}")] + stamp() + s_b + exit_ctl + stamp() + s_c + stamp() + [label(f"L_loop{RL}")] + l1 + loop_ctl
    seq += [raw(f"s_branch L_sa{RL}", kind="branch")]
    rare = []
    for nm, par in names:
        r = rare_path(par, nm)
        check_hazards(r, "rare")
        rare += r
    return seq, rare


def main():
    global ROLE
    head = prologue_head()
    ROLE = "A"
    sa, ra = build_role()
    ROLE = "B"
    sb, rb = build_role()
    seq = head[:2] + stamp_init() + stamp(0, force=True) + head[2:]
    seq += [raw(f"s_cmp_ge_u32 s{S_W}, 2", kind="salu"), raw("s_cbranch_scc1 L_proB", kind="branch")]
    seq += sa + [label("L_fin")] + stamp_out(2) + [label("L_end"), raw("s_endpgm")] + sb + ra + rb + [raw("s_endpgm")]
    hdr = open(f"cdna_kernels/{NAME}.s.ref").read().split("\n")
    head = [l for l in hdr if l.startswith(";") and "@launch" not in l and "Override" not in l and "grid=ceil" not in l]
    txt = "\n".join(head) + "\n"
    txt += f"; @launch grid=(256,1,1) block=(256,1,1) lds={LDS_BYTES}\n"
    txt += f'.amdgcn_target "amdgcn-amd-amdhsa--gfx950"\n.text\n.globl {NAME}_kernel\n.p2align 8\n.type {NAME}_kernel,@function\n{NAME}_kernel:\n'
    txt += render(seq) + "\n"
    txt += f""".section .rodata,"a"
.p2align 6
.amdhsa_kernel {NAME}_kernel
  .amdhsa_next_free_vgpr 512
  .amdhsa_next_free_sgpr 96
  .amdhsa_accum_offset 256
  .amdhsa_group_segment_fixed_size 0
  .amdhsa_kernarg_size 48
  .amdhsa_user_sgpr_count 2
  .amdhsa_user_sgpr_kernarg_segment_ptr 1
  .amdhsa_system_sgpr_workgroup_id_x 1
.end_amdhsa_kernel
"""
    out = sys.argv[1] if len(sys.argv) > 1 else f"cdna_kernels/{NAME}.s"
    open(out, "w").write(txt)
    print("wrote", out, len(seq), "instructions", len(txt), "bytes")


def uncountedcopy(x):
    y = Ins(x.text, rd=x.rd, wr=x.wr, kind=x.kind, cost=x.cost, tag=x.tag)
    return y


main()
```

```python
import sys, math, struct
sys.path.insert(0, "work")
from fw import *

NAME = "standalone__mha_softmax__near_ridge"
ARGS = sys.argv[2:]
STAMP = "stamp" in ARGS
PROF = "prof" in ARGS
PROF2 = "prof2" in ARGS
PFS = 128


def opt(name, default):
    for a in ARGS:
        if a.startswith(name + "="):
            return int(a.split("=")[1])
    return default


OA = ("v", 0)
OB = ("a", 0)
QA = 128
QB = 192
SB = [128, 160]
P0 = 192
P1 = 208
FB = 216
TT = 232
V_KA, V_VA, V_DMA = 236, 237, 238
V_NMC = [239, 240]
V_L = [241, 242]
V_LT = [243, 244]
V_TMP = 245
V_QO = 246
V_T2 = 247
V_T3 = 248
V_QDMA = 249
V_QRD = 250
V_PF = 251
V_RINV = [252, 254]
V_QCUR = 253
V_TMP2 = 255

S_Q, S_K, S_V, S_O = 4, 8, 12, 16
S_XH = 3
S_W = 20
S_C = 21
S_THR = 22
S_KOFF = 23
S_VOFF = 24
S_KM0 = 25
S_VM0 = 26
S_CNT = 27
S_QS = 28
S_QSTEP = 29
S_NC = 30
S_QM = 31
S_KN = 48
S_VN = 50
S_KVN = 52
S_16K = 53
S_ON = 54
S_T = 57
S_QMB = 58
S_RHO = 59
S_KOFF2 = 68
S_VOFF2 = 69
S_PF = 72
S_PFOFF = 70
S_PFN = 76
S_WQ = 71
S_BQ = 78
S_BQM = 79
S_ROT = 80
S_ROT2 = 81
ROTM = opt('rot', 15)
ROLE = "A"
PD = opt("pd", 6)

KBLK, VBLK = 1040, 1088
KSLOT = [0, 16 * KBLK]
VSLOT = [32 * KBLK, 32 * KBLK + 16 * VBLK]
QBASE = 32 * KBLK + 32 * VBLK
QUNIT = 4224
QDUMMY = QBASE + 4 * 5 * QUNIT
LDS_BYTES = QDUMMY + 4224

SCALE = (256 ** -0.5) * math.log2(math.e)
HEAD = opt("head", 19)
HEAD0 = opt("head0", 12)
UNITS = [(0, 0), (1, 0), (0, 1), (1, 1), (0, 2)]
LATE = [((1, 2), 0), ((0, 3), 1), ((1, 3), 2)]


def f32bits(x):
    return struct.unpack("<I", struct.pack("<f", x))[0]


def Oacc(qb, t):
    k, lo = (OA, OB)[qb]
    return (k, lo + 16 * t)


def Qfrag(qb, ks):
    return ("a", (QA, QB)[qb] + 4 * ks)


def Sacc(buf, qb):
    return ("v", SB[buf] + 16 * qb)


def Pfrag(par, qb, s):
    if s == 0:
        return ("v", P0 + par * 8 + qb * 4)
    return ("v", P1 + qb * 4)


def S(text, rd=(), wr=()):
    return salu(text, rd=rd, wr=wr)


def k_read(f, slot):
    return [ds_read("ds_read_b128", "v", FB + 4 * (f % 4), 4, V_KA, KSLOT[slot] + 32 * f)]


def v_read(f, slot):
    t, s = f >> 1, f & 1
    b = FB + 4 * (f % 4)
    return [ds_read("ds_read_b64_tr_b16", "v", b + 2 * u, 2, V_VA, VSLOT[slot] + (2 * s + u) * 4 * VBLK + 64 * t) for u in (0, 1)]


def q_read(qb, ks, space):
    k, lo = Qfrag(qb, ks)
    return ds_read("ds_read_b128", k, lo, 4, V_QRD, space * QUNIT + 32 * (ks & 3))


def dma_unit(kind, j, four=False):
    slot = j & 1
    if kind == "K":
        base, blk, sl, srd, soff, soff2 = S_KM0, KBLK, KSLOT, S_K, S_KOFF, S_KOFF2
    else:
        base, blk, sl, srd, soff, soff2 = S_VM0, VBLK, VSLOT, S_V, S_VOFF, S_VOFF2
    rel = sl[slot] - sl[0]
    groups = []
    for half in ((0,) if four else (0, 1)):
        so = (soff, soff2)[half]
        for q in range(4):
            g = [S(f"s_add_u32 m0, s{base}, {rel + half * 4 * blk + (blk - 512) * q}", rd=[base], wr=["m0"]),
                 nop(0),
                 dma(V_DMA, srd, f"s{so}", 512 * q, tag=(kind, j))]
            if q == 3:
                g.append(S(f"s_add_u32 s{so}, s{so}, 16384", rd=[so], wr=[so]))
                g.append(S(f"s_and_b32 s{so}, s{so}, 0x3ffff", rd=[so], wr=[so]))
            groups.append(g)
    return groups


def q_dma_static(qb, lam, space, tag):
    groups = []
    for io in range(4):
        groups.append([S(f"s_add_u32 m0, s{S_QMB}, {space * QUNIT + 1056 * io}", rd=[S_QMB], wr=["m0"]),
                       S(f"s_add_u32 s40, s{S_WQ}, {qb * 16384 + lam * 128 + io * 4096}", wr=[40]),
                       dma(V_QDMA, S_Q, "s40", 0, tag=tag)])
    return groups


def softmax_steps(buf, par):
    def elem(e):
        s = e >> 4
        qb = (e >> 3) & 1
        r = 8 * s + (e & 7)
        return s, qb, r
    steps = []
    for k in range(34):
        st = []
        if k < 32:
            s, qb, r = elem(k)
            st.append(valu("v_fma_f32", TT + k % 4, SB[buf] + 16 * qb + r, f"s{S_C}", V_NMC[qb]))
        if 0 <= k - 1 < 32:
            e = k - 1
            st.append(trans("v_exp_f32", TT + e % 4, TT + e % 4))
        if 0 <= k - 2 < 32:
            e = k - 2
            s, qb, r = elem(e)
            if r == 1:
                st.append(valu("v_add_f32", V_LT[qb], TT + (e - 1) % 4, TT + e % 4))
            elif r > 1:
                st.append(valu("v_add_f32", V_LT[qb], V_LT[qb], TT + e % 4))
            if r & 1:
                pk, pl = Pfrag(par, qb, s)
                st.append(valu("v_cvt_pk_bf16_f32", pl + ((r & 7) >> 1), TT + (e - 1) % 4, TT + e % 4))
        steps.append(st)
    return steps


def swap32(a, b):
    return Ins(f"v_permlane32_swap_b32 v{a}, v{b}", rd=[("v", a), ("v", b)], wr=[("v", a), ("v", b)], kind="valu")


def row_max2(buf):
    dst = [V_T2, V_T3]
    tmp = [V_TMP, V_TMP2]
    groups = []
    b = [SB[buf], SB[buf] + 16]
    groups.append([valu("v_max3_f32", dst[q], b[q], b[q] + 1, b[q] + 2) for q in (0, 1)])
    for i in range(3, 15, 2):
        groups.append([valu("v_max3_f32", dst[q], dst[q], b[q] + i, b[q] + i + 1) for q in (0, 1)])
    groups.append([valu("v_max_f32", dst[q], dst[q], b[q] + 15) for q in (0, 1)])
    g = [valu("v_mov_b32", tmp[q], dst[q]) for q in (0, 1)]
    g += [nop(1)]
    g += [swap32(tmp[q], dst[q]) for q in (0, 1)]
    g += [nop(0)]
    g += [valu("v_max_f32", dst[q], dst[q], tmp[q]) for q in (0, 1)]
    g += [valu("v_mul_f32", V_NMC[q], f"s{S_NC}", dst[q]) for q in (0, 1)]
    groups.append(g)
    return groups


def rinv_group():
    tmp = [V_TMP, V_TMP2]
    g = [valu("v_mov_b32", tmp[q], V_L[q]) for q in (0, 1)]
    g += [nop(1)]
    g += [swap32(tmp[q], V_L[q]) for q in (0, 1)]
    g += [nop(0)]
    g += [valu("v_add_f32", V_L[q], V_L[q], tmp[q]) for q in (0, 1)]
    g += [trans("v_rcp_f32", V_RINV[q], V_L[q]) for q in (0, 1)]
    return g


def row_max(buf, qb, dst, tmp):
    b = SB[buf] + 16 * qb
    out = [valu("v_max3_f32", dst, b, b + 1, b + 2)]
    for i in range(3, 15, 2):
        out.append(valu("v_max3_f32", dst, dst, b + i, b + i + 1))
    out.append(valu("v_max_f32", dst, dst, b + 15))
    out.append(valu("v_mov_b32", tmp, dst))
    out.append(nop(1))
    out.append(swap32(tmp, dst))
    out.append(nop(0))
    out.append(valu("v_max_f32", dst, dst, tmp))
    return out


def flat(steps):
    out = []
    for st in steps:
        out += st
        out.append(nop(0))
    return out


def rare_path(par, name):
    out = [label(f"L_rare{name}")]
    out.append(nop(7))
    for qb in (0, 1):
        out += row_max(par, qb, V_T2, V_TMP)
        out.append(valu("v_mul_f32", V_T2, f"s{S_NC}", V_T2))
        out.append(valu("v_min_f32", V_T2, V_T2, V_NMC[qb]))
        out.append(valu("v_sub_f32", V_T3, V_T2, V_NMC[qb]))
        out.append(trans("v_exp_f32", V_T3, V_T3))
        out.append(valu("v_mov_b32", V_NMC[qb], V_T2))
        out.append(valu("v_mul_f32", V_L[qb], V_L[qb], V_T3))
        for r in range(128):
            if qb == 0:
                out.append(valu("v_mul_f32", r, r, V_T3))
            else:
                out.append(valu("v_accvgpr_read_b32", V_TMP, ("a", r)))
                out.append(valu("v_mul_f32", V_TMP, V_TMP, V_T3))
                out.append(valu("v_accvgpr_write_b32", ("a", r), V_TMP))
    out += flat(softmax_steps(par, par))
    out.append(nop(3))
    out.append(raw(f"s_branch L_back{name}", kind="branch"))
    return out


def pk_mul(r, qb):
    sel = "op_sel_hi:[1,0]"
    p = V_RINV[qb]
    return Ins(f"v_pk_mul_f32 v[{r}:{r+1}], v[{r}:{r+1}], v[{p}:{p+1}] {sel}",
               rd=[("v", r), ("v", r + 1), ("v", V_RINV[qb])], wr=[("v", r), ("v", r + 1)], kind="valu")


def epi_items(t):
    b = 16 * t
    ga = []
    for gp in (0, 1):
        o = b + 8 * gp
        ga.append([pk_mul(o + 2 * j, 0) for j in range(4)])
        ga.append([valu("v_cvt_pk_bf16_f32", o + e, o + 2 * e, o + 2 * e + 1) for e in range(4)])
        ga.append([bstore("v", o, 4, V_QO, S_O, "0", 64 * t + 32 * gp, tag="ST")])
    gb = []
    tmp = [b + 4, b + 5, b + 6, b + 7, b + 12, b + 13, b + 14, b + 15]
    gb.append([valu("v_accvgpr_read_b32", tmp[e], ("a", b + e)) for e in range(4)])
    gb.append([valu("v_accvgpr_read_b32", tmp[e], ("a", b + e)) for e in range(4, 8)])
    gb.append([pk_mul(tmp[2 * j], 1) for j in range(4)])
    gb.append([valu("v_cvt_pk_bf16_f32", b + 4 + e, tmp[2 * e], tmp[2 * e + 1]) for e in range(4)])
    gb.append([bstore("v", b + 4, 4, V_QO, S_O, f"s{S_16K}", 64 * t, tag="ST")])
    tmp = [b + 8 + e for e in range(8)]
    gb.append([valu("v_accvgpr_read_b32", tmp[e], ("a", b + 8 + e)) for e in range(4)])
    gb.append([valu("v_accvgpr_read_b32", tmp[e], ("a", b + 8 + e)) for e in range(4, 8)])
    gb.append([pk_mul(tmp[2 * j], 1) for j in range(4)])
    gb.append([valu("v_cvt_pk_bf16_f32", b + 8 + e, tmp[2 * e], tmp[2 * e + 1]) for e in range(4)])
    gb.append([bstore("v", b + 8, 4, V_QO, S_O, f"s{S_16K}", 64 * t + 32, tag="ST")])
    return ga, gb


def tile_params():
    o = []
    A = lambda t: o.append([S(t)])
    A(f"s_mul_hi_u32 s42, s{S_T}, 0x55555556")
    A("s_mul_i32 s43, s42, 3")
    A(f"s_sub_u32 s43, s{S_T}, s43")
    A(f"s_add_u32 s42, s42, s{S_XH}")
    A("s_mul_i32 s44, s42, 376832")
    A("s_lshl_b32 s43, s43, 17")
    A("s_add_u32 s44, s44, s43")
    A("s_lshl_b32 s45, s42, 18")
    A(f"s_lshr_b32 s{S_ROT}, s42, 4")
    A(f"s_xor_b32 s{S_ROT}, s{S_ROT}, s42")
    A(f"s_and_b32 s{S_ROT}, s{S_ROT}, {ROTM}")
    A(f"s_lshl_b32 s{S_ROT}, s{S_ROT}, 14")
    A(f"s_add_u32 s{S_ROT2}, s{S_ROT}, 0x1000")
    A("s_sub_u32 s43, 376832, s43")
    o.append([S(f"s_cmp_lt_u32 s{S_T}, 96"), S("s_cselect_b32 s43, s43, 0"), S(f"s_cselect_b32 s{S_KVN}, 262144, 0")])
    o.append([S(f"s_add_u32 s{S_Q}, s32, s44"), S(f"s_addc_u32 s{S_Q+1}, s33, 0")])
    A(f"s_and_b32 s{S_Q+1}, s{S_Q+1}, 0xffff")
    A(f"s_mov_b32 s{S_Q+2}, s43")
    o.append([S(f"s_add_u32 s{S_ON}, s38, s44"), S(f"s_addc_u32 s{S_ON+1}, s39, 0")])
    A(f"s_and_b32 s{S_ON+1}, s{S_ON+1}, 0xffff")
    A(f"s_mov_b32 s{S_ON+2}, s43")
    o.append([S(f"s_add_u32 s{S_KN}, s34, s45"), S(f"s_addc_u32 s{S_KN+1}, s35, 0")])
    A(f"s_and_b32 s{S_KN+1}, s{S_KN+1}, 0xffff")
    o.append([S(f"s_add_u32 s{S_VN}, s36, s45"), S(f"s_addc_u32 s{S_VN+1}, s37, 0")])
    A(f"s_and_b32 s{S_VN+1}, s{S_VN+1}, 0xffff")
    return o


def wrap2(g, acc):
    if not PROF2:
        return g
    T = lambda t: raw(t, kind="salu", cost=0)
    out = []
    for x in g:
        if x.kind == "dma":
            out += [T("s_memtime s[82:83]"), raw("s_waitcnt lgkmcnt(0)", kind="wait", cost=0), x,
                    T("s_memtime s[84:85]"), raw("s_waitcnt lgkmcnt(0)", kind="wait", cost=0),
                    T("s_sub_u32 s82, s84, s82"), T(f"s_add_u32 s{acc}, s{acc}, s82")]
        else:
            out.append(x)
    return out


class Region:
    def __init__(self, n):
        self.n = n
        self.mf = [None] * n
        self.g = [[] for _ in range(n)]

    def add(self, gap, items):
        self.g[gap] += [x for x in items if x is not None]

    def load(self, gap):
        return sum(x.cost for x in self.g[gap])

    def place(self, seqs, name=""):
        base = [self.load(i) for i in range(self.n)]

        def attempt(level):
            ld = list(base)
            res = []
            cur = 0
            for grp, rel, dl in seqs:
                c = sum(x.cost for x in grp)
                g = max(cur, rel)
                while g <= dl and ld[g] + c > level and not (ld[g] == 0):
                    g += 1
                if g > dl:
                    return None
                ld[g] += c
                res.append(g)
                cur = g
            return res
        level = 8
        while True:
            r = attempt(level)
            if r is not None:
                break
            level += 2
            assert level < 400, "cannot place " + name
        for (grp, rel, dl), g in zip(seqs, r):
            self.g[g] += grp
        if name:
            print(f"  place {name}: level {level}")

    def flatten(self):
        out = []
        for i in range(self.n):
            if self.mf[i] is not None:
                out.append(self.mf[i])
            out += self.g[i]
        return out


def base_iteration(R_, b, role, G, name, extra59=()):
    par = G & 1
    np_ = par ^ 1
    first_of_tile = (role == 0)
    for ks in range(16):
        for qb in (0, 1):
            F = ("v", FB + 4 * (ks % 4))
            D = Sacc(np_, qb)
            R_.mf[b + 2 * ks + qb] = mfma32(D, F, Qfrag(qb, ks), None if ks == 0 else D)
    for f in range(16):
        t, s = f >> 1, f & 1
        for qb in (0, 1):
            F = ("v", FB + 4 * (f % 4))
            D = Oacc(qb, t)
            C = None if (first_of_tile and s == 0) else D
            R_.mf[b + 32 + 2 * f + qb] = mfma32(D, F, Pfrag(par, qb, s), C)
    extra59 = list(extra59)
    for f in range(4, 16):
        R_.add(b + 2 * f - 7, k_read(f, np_))
    A_ = ROLE == "A"

    def prof(w, acc):
        if not PROF:
            return list(w) + [wait_lgkm0(), barrier()]
        T = lambda t: raw(t, kind="salu", cost=0)
        return [wait_lgkm0(), T("s_memtime s[82:83]"), wait_lgkm0()] + list(w) + [T("s_memtime s[84:85]"), raw("s_waitcnt lgkmcnt(0)", kind="wait", cost=0), barrier(),
                T("s_memtime s[86:87]"), raw("s_waitcnt lgkmcnt(0)", kind="wait", cost=0),
                T("s_sub_u32 s82, s84, s82"), T("s_sub_u32 s84, s86, s84"),
                T(f"s_add_u32 s{acc}, s{acc}, s82"), T(f"s_add_u32 s{acc+1}, s{acc+1}, s84")]
    R_.add(b + 27, prof([wait_vm(("V", G))] if A_ else [], 88) + v_read(0, par) + v_read(1, par))
    R_.add(b + 29, v_read(2, par))
    R_.add(b + 31, v_read(3, par))
    for f in range(4, 16):
        R_.add(b + 32 + 2 * f - 7, v_read(f, par))
    R_.add(b + 59, prof([wait_vm(("K", G + 2))] if A_ else extra59, 90) + k_read(0, par) + k_read(1, par))
    R_.add(b + 61, k_read(2, par))
    R_.add(b + 63, k_read(3, par))
    if A_:
        grp = dma_unit("K", G + 3)
        for q, g in enumerate(grp):
            R_.add(b + KD[q], wrap2(g, 88))
        grp = dma_unit("V", G + 2)
        for q in range(4):
            R_.add(b + VD[q], wrap2(grp[q], 89))
        grp = dma_unit("V", G + 1)
        for q in range(4):
            R_.add(b + VD2[q], wrap2(grp[4 + q], 89))
    else:
        for q in range(2):
            g = [S(f"s_mov_b32 m0, {QDUMMY}", wr=["m0"]),
                 S(f"s_add_u32 s41, s{S_PFOFF}, {8192 * q}"),
                 Ins(f"buffer_load_dword v{V_DMA}, s[{S_PF}:{S_PF+3}], s41 offen lds", rd=[("v", V_DMA), ("s", "m0")], kind="dma", cost=16, tag=("PF", G))]
            if q == 1:
                g.append(S(f"s_add_u32 s{S_PFOFF}, s{S_PFOFF}, 16384"))
                g.append(S(f"s_and_b32 s{S_PFOFF}, s{S_PFOFF}, 0x3ffff"))
            R_.add(b + PFD[q], wrap2(g, 89))


KD = [29, 32, 35, 38, 41, 44, 47, 50]
VD = [60, 61, 62, 63]
VD2 = [0, 2, 4, 6]
QD = [34, 38, 42, 46]
PFD = [12, 20]


def softmax_part(R_, b, role, G, name, head_prev, head_next, next_true_max=False):
    name = name + ROLE
    par = G & 1
    np_ = par ^ 1
    st = softmax_steps(par, par)
    R_.place([(s_, b + 0, b + 28) for s_ in st[head_prev:]], name + ".tail")
    if role == 0:
        R_.add(b + 30, [valu("v_mov_b32", V_L[0], V_LT[0]), valu("v_mov_b32", V_L[1], V_LT[1])])
    else:
        R_.add(b + 29, [valu("v_add_f32", V_TMP, V_LT[0], V_LT[1])])
        R_.add(b + 30, [valu("v_cmp_nge_f32", "vcc", f"s{S_THR}", V_TMP),
                        raw(f"s_cbranch_vccnz L_rare{name}", kind="branch"),
                        label(f"L_back{name}"),
                        valu("v_add_f32", V_L[0], V_L[0], V_LT[0]),
                        valu("v_add_f32", V_L[1], V_L[1], V_LT[1])])
    st = softmax_steps(np_, np_)
    seq = []
    lo = b + 35
    if next_true_max:
        seq.append((rinv_group(), b + 32, b + 34))
        for g in row_max2(np_):
            seq.append((g, b + 34, b + 63))
    for s_ in st[:head_next]:
        seq.append((s_, lo, b + 63))
    R_.place(seq, name + ".head")


def build_loop(G):
    R_ = Region(128)
    c = S_CNT
    x59 = []
    if ROLE == "B":
        x59 = [S(f"s_cmp_lg_u32 s{c}, 5"), raw("s_cbranch_scc1 L_skipq", kind="branch"), wait_vm(("Q", G - 1)), label("L_skipq")]
    base_iteration(R_, 0, 2, G, "l0")
    base_iteration(R_, 64, 3, G + 1, "l1", extra59=x59)
    if ROLE == "B":
        R_.add(1, [S(f"s_cmp_eq_u32 s{c}, 4"),
                   S(f"s_cselect_b32 s{S_PF}, s{S_PFN}, s{S_PF}"),
                   S(f"s_cselect_b32 s{S_PF+1}, s{S_PFN+1}, s{S_PF+1}"),
                   S(f"s_cselect_b32 s{S_PF+2}, s{S_KVN}, s{S_PF+2}"),
                   S(f"s_cselect_b32 s{S_PFOFF}, s{S_ROT}, s{S_PFOFF}")])
        pre = [S(f"s_and_b32 s42, s{c}, 1"), S("s_lshl_b32 s42, s42, 14"), S(f"s_lshr_b32 s43, s{c}, 1"),
               S("s_lshl_b32 s43, s43, 7"), S("s_or_b32 s44, s42, s43"),
               S(f"s_mul_i32 s45, s{c}, {QUNIT}"), S(f"s_add_u32 s45, s45, s{S_BQM}")]
        sel = [S(f"s_cmp_eq_u32 s{c}, 5"), S("s_cselect_b32 s44, 256, s44"),
               S(f"s_cselect_b32 s{S_QSTEP}, s{S_16K}, 0x1000"),
               S(f"s_cselect_b32 s46, 0, {5 * QUNIT}"),
               S(f"s_cselect_b32 s45, {QDUMMY}, s45"),
               S("s_cselect_b64 vcc, -1, 0"),
               valu("v_cndmask_b32", V_QCUR, V_QDMA, V_PF, "vcc")]
        for k, x in enumerate(pre):
            R_.add(3 + 2 * k, [x])
        R_.add(18, sel)
        for it in (0, 1):
            b = 64 * it
            if it == 0:
                R_.add(b + 22, [S(f"s_add_u32 s{S_QS}, s44, s{S_BQ}"), S(f"s_mov_b32 s{S_QM}, s45")])
            else:
                R_.add(b + 22, [S(f"s_add_u32 s{S_QS}, s44, s{S_BQ}"), S(f"s_add_u32 s{S_QS}, s{S_QS}, 32768"), S(f"s_add_u32 s{S_QM}, s45, s46")])
            for io in range(4):
                R_.add(b + QD[io], wrap2([S(f"s_add_u32 m0, s{S_QM}, {1056 * io}", rd=[S_QM], wr=["m0"]), nop(0),
                                    dma(V_QCUR, S_Q, f"s{S_QS}", 0, tag=("Q", G + it)),
                                    S(f"s_add_u32 s{S_QS}, s{S_QS}, s{S_QSTEP}")], 88))
    else:
        R_.add(64 + 4, [S(f"s_cmp_eq_u32 s{c}, 5"),
                        S(f"s_cselect_b32 s{S_K}, s{S_KN}, s{S_K}"),
                        S(f"s_cselect_b32 s{S_K+1}, s{S_KN+1}, s{S_K+1}"),
                        S(f"s_cselect_b32 s{S_K+2}, s{S_KVN}, s{S_K+2}"),
                        S(f"s_cselect_b32 s{S_KOFF}, s{S_ROT}, s{S_KOFF}"),
                        S(f"s_cselect_b32 s{S_KOFF2}, s{S_ROT2}, s{S_KOFF2}")])
    softmax_part(R_, 0, 2, G, "l0", HEAD, HEAD)
    softmax_part(R_, 64, 3, G + 1, "l1", HEAD, HEAD)
    return R_


def build_special(G):
    R_ = Region(256)
    base_iteration(R_, 0, 14, G, "s14")
    base_iteration(R_, 64, 15, G + 1, "s15")
    base_iteration(R_, 128, 0, G + 2, "s0")
    base_iteration(R_, 192, 1, G + 3, "s1")
    if ROLE == "A":
        R_.add(50, [S(f"s_mov_b32 s{S_V}, s{S_VN}"), S(f"s_mov_b32 s{S_V+1}, s{S_VN+1}"),
                    S(f"s_mov_b32 s{S_V+2}, s{S_KVN}"), S(f"s_mov_b32 s{S_VOFF}, s{S_ROT}"), S(f"s_mov_b32 s{S_VOFF2}, s{S_ROT2}")])
    for u, (qb, lam) in enumerate(UNITS):
        for ksl in range(4):
            ks = 4 * lam + ksl
            R_.add(2 * ks + qb + 2, [q_read(qb, ks, u)])
    def unit_regs(qb, lam):
        r = []
        for ksl in range(4):
            k, lo = Qfrag(qb, 4 * lam + ksl)
            r += R(k, lo, 4)
        return r
    late_start = [11, 12, 19]
    for idx, ((qb, lam), space) in enumerate(LATE):
        oq, ol = UNITS[space]
        grp = q_dma_static(qb, lam, space, ("QL", G, idx))
        grp[0] = [touch(unit_regs(oq, ol))] + grp[0]
        g0 = late_start[idx]
        for io in range(4):
            R_.add(g0 + 2 * io, grp[io])
    rd_at = [64 + LR0, 64 + LR1, 64 + LR2]
    for idx, ((qb, lam), space) in enumerate(LATE):
        R_.add(rd_at[idx], [wait_vm(("QL", G, idx))] + [q_read(qb, 4 * lam + ksl, space) for ksl in range(4)])
    softmax_part(R_, 0, 14, G, "s14", HEAD, HEAD)
    softmax_part(R_, 64, 15, G + 1, "s15", HEAD, HEAD0, next_true_max=True)
    softmax_part(R_, 128, 0, G + 2, "s0", HEAD0, HEAD)
    softmax_part(R_, 192, 1, G + 3, "s1", HEAD, HEAD)
    seq = []
    for t in range(8):
        ga, gb = epi_items(t)
        rel_a = 64 + 32 + 4 * t + 2 + EREL
        rel_b = rel_a + 1
        dl = 128 + 32 + 4 * t - 1
        seq += [(g, rel_a, dl) for g in ga] + [(g, rel_b, dl) for g in gb]
    R_.place(seq, "epilogue")
    seq = [([S(f"s_mov_b32 s{S_O}, s{S_ON}"), S(f"s_mov_b32 s{S_O+1}, s{S_ON+1}"), S(f"s_mov_b32 s{S_O+2}, s{S_ON+2}")], 192 + 2, 250)]
    seq.append(([S(f"s_add_u32 s{S_T}, s{S_T}, 32")], 192 + 2, 250))
    seq += [(g, 192 + 2, 250) for g in tile_params()]
    seq.append(([S(f"s_mov_b32 s{S_CNT}, 0")], 192 + 2, 250))
    if ROLE == "B":
        seq.append(([S(f"s_cmp_eq_u32 s{S_W}, 2"), S(f"s_cselect_b32 s{S_PFN}, s{S_KN}, s{S_VN}"),
                     S(f"s_cselect_b32 s{S_PFN+1}, s{S_KN+1}, s{S_VN+1}")], 192 + 2, 250))
    R_.place(seq, "params")
    return R_


LR0 = opt("lr0", 10)
LR1 = opt("lr1", 16)
LR2 = opt("lr2", 18)
EREL = opt("erel", 4)


def prologue_head():
    o = []
    A = o.append
    T = lambda s: A(raw(s, kind="salu"))
    T("s_cmp_ge_u32 s2, 256")
    A(raw("s_cbranch_scc1 L_end", kind="branch"))
    T("s_load_dwordx4 s[32:35], s[0:1], 0")
    T("s_load_dwordx4 s[36:39], s[0:1], 16")
    T(f"s_and_b32 s{S_XH}, s2, 7")
    T(f"s_lshl_b32 s{S_XH}, s{S_XH}, 5")
    T(f"s_lshr_b32 s{S_T}, s2, 3")
    T(f"s_mov_b32 s{S_16K}, 16384")
    A(valu("v_lshrrev_b32", V_TMP, "6", 0))
    A(valu("v_and_b32", V_T2, "63", 0))
    A(valu("v_readfirstlane_b32", f"s{S_W}", V_TMP))
    A(raw("s_waitcnt lgkmcnt(0)", kind="wait"))
    return o


def prologue(it15_vm):
    o = []
    A = o.append
    T = lambda s: A(raw(s, kind="salu"))
    for g in tile_params():
        o += g
    T(f"s_mov_b32 s{S_Q+3}, 0x00020000")
    T(f"s_mov_b32 s{S_K}, s{S_KN}")
    T(f"s_mov_b32 s{S_K+1}, s{S_KN+1}")
    T(f"s_mov_b32 s{S_K+2}, 262144")
    T(f"s_mov_b32 s{S_K+3}, 0x00020000")
    T(f"s_mov_b32 s{S_V}, s{S_VN}")
    T(f"s_mov_b32 s{S_V+1}, s{S_VN+1}")
    T(f"s_mov_b32 s{S_V+2}, 262144")
    T(f"s_mov_b32 s{S_V+3}, 0x00020000")
    T(f"s_mov_b32 s{S_O}, s{S_ON}")
    T(f"s_mov_b32 s{S_O+1}, s{S_ON+1}")
    T(f"s_mov_b32 s{S_O+2}, 0")
    T(f"s_mov_b32 s{S_O+3}, 0x00020000")
    T(f"s_mov_b32 s{S_C}, {f32bits(SCALE):#x}")
    T(f"s_mov_b32 s{S_NC}, {f32bits(-SCALE):#x}")
    T(f"s_mov_b32 s{S_THR}, {f32bits(4096.0):#x}")
    T(f"s_mov_b32 s{S_KOFF}, s{S_ROT}")
    T(f"s_mov_b32 s{S_VOFF}, s{S_ROT}")
    T(f"s_mov_b32 s{S_RHO}, 0")
    T(f"s_mul_i32 s{S_KM0}, s{S_W}, {4*KBLK}")
    T(f"s_add_u32 s{S_KM0}, s{S_KM0}, {KSLOT[0]}")
    T(f"s_mul_i32 s{S_VM0}, s{S_W}, {4*VBLK}")
    T(f"s_add_u32 s{S_VM0}, s{S_VM0}, {VSLOT[0]}")
    T(f"s_mul_i32 s{S_QMB}, s{S_W}, {5*QUNIT}")
    T(f"s_add_u32 s{S_QMB}, s{S_QMB}, {QBASE}")
    T(f"s_lshl_b32 s{S_WQ}, s{S_W}, 15")
    L = V_T2
    A(valu("v_lshrrev_b32", V_TMP, "5", L))
    A(valu("v_lshlrev_b32", V_DMA, "11", V_TMP))
    A(valu("v_and_b32", V_T3, "31", L))
    A(valu("v_lshl_add_u32", V_DMA, V_T3, "4", V_DMA))
    T(f"s_lshl_b32 s46, s{S_W}, 12")
    A(valu("v_add_u32", V_DMA, "s46", V_DMA))
    A(valu("v_lshrrev_b32", TT, "3", L))
    A(valu("v_bfe_u32", TT + 1, L, "4", "1"))
    A(valu("v_and_b32", TT + 2, "7", L))
    A(valu("v_xor_b32", TT + 2, TT + 2, TT + 1))
    A(valu("v_lshlrev_b32", V_QDMA, "9", TT))
    A(valu("v_lshl_add_u32", V_QDMA, TT + 2, "4", V_QDMA))

    def issue(kind, j):
        r = []
        for g in dma_unit(kind, j, four=True):
            r += g
        return r
    o += issue("K", 0)
    for u, (qb, lam) in enumerate(UNITS):
        for g in q_dma_static(qb, lam, u, ("Q0", u)):
            o += g
    A(valu("v_lshlrev_b32", V_QO, "9", V_T3))
    A(valu("v_lshl_add_u32", V_PF, V_TMP, "7", V_QO))
    A(valu("v_add_u32", V_QO, f"s{S_WQ}", V_QO))
    A(valu("v_lshl_add_u32", V_QO, V_TMP, "4", V_QO))
    for (qb, lam), _ in LATE:
        for ksl in range(4):
            ks = 4 * lam + ksl
            k, lo = Qfrag(qb, ks)
            A(bload(k, lo, 4, V_QO, S_Q, f"s{S_16K}" if qb else "0", 32 * ks, tag="QD"))
    o += issue("K", 1)
    o += issue("V", 0)
    A(valu("v_and_b32", V_KA, "3", V_T3))
    A(valu("v_lshrrev_b32", TT, "3", V_T3))
    A(valu("v_lshl_add_u32", V_KA, TT, "2", V_KA))
    T(f"s_movk_i32 s46, {KBLK}")
    A(valu("v_mul_lo_u32", V_KA, V_KA, "s46"))
    A(valu("v_bfe_u32", TT, V_T3, "2", "1"))
    A(valu("v_lshl_add_u32", V_KA, TT, "9", V_KA))
    A(valu("v_lshl_add_u32", V_KA, V_TMP, "4", V_KA))
    A(valu("v_bfe_u32", V_VA, L, "2", "2"))
    T(f"s_movk_i32 s46, {VBLK}")
    A(valu("v_mul_lo_u32", V_VA, V_VA, "s46"))
    A(valu("v_lshl_add_u32", V_VA, V_TMP, "9", V_VA))
    A(valu("v_bfe_u32", TT, L, "4", "1"))
    A(valu("v_lshl_add_u32", V_VA, TT, "5", V_VA))
    A(valu("v_and_b32", TT, "1", L))
    A(valu("v_lshl_add_u32", V_VA, TT, "4", V_VA))
    A(valu("v_bfe_u32", TT, L, "1", "1"))
    A(valu("v_lshl_add_u32", V_VA, TT, "3", V_VA))
    A(valu("v_lshrrev_b32", TT, "3", V_T3))
    T("s_movk_i32 s46, 1056")
    A(valu("v_mul_lo_u32", V_QRD, TT, "s46"))
    A(valu("v_and_b32", TT, "7", V_T3))
    A(valu("v_lshl_add_u32", V_QRD, TT, "7", V_QRD))
    A(valu("v_bfe_u32", TT, V_T3, "1", "1"))
    A(valu("v_xor_b32", TT, TT, V_TMP))
    A(valu("v_lshl_add_u32", V_QRD, TT, "4", V_QRD))
    A(valu("v_add_u32", V_QRD, f"s{S_QMB}", V_QRD))
    A(valu("v_mov_b32", V_RINV[0], "0"))
    A(valu("v_mov_b32", V_RINV[1], "0"))
    if ROLE == "A":
        T(f"s_lshl_b32 s46, s{S_W}, 12")
        A(valu("v_add_u32", V_DMA, "s46", V_DMA))
        T(f"s_mul_i32 s{S_KM0}, s{S_W}, {8*KBLK}")
        T(f"s_add_u32 s{S_KM0}, s{S_KM0}, {KSLOT[0]}")
        T(f"s_mul_i32 s{S_VM0}, s{S_W}, {8*VBLK}")
        T(f"s_add_u32 s{S_VM0}, s{S_VM0}, {VSLOT[0]}")
        T(f"s_add_u32 s{S_KOFF2}, s{S_KOFF}, 4096")
        T(f"s_add_u32 s{S_VOFF2}, s{S_VOFF}, 4096")
    else:
        A(valu("v_lshlrev_b32", V_DMA, "7", L))
        T(f"s_cmp_eq_u32 s{S_W}, 2")
        T(f"s_cselect_b32 s{S_PF}, s{S_K}, s{S_V}")
        T(f"s_cselect_b32 s{S_PF+1}, s{S_K+1}, s{S_V+1}")
        T(f"s_mov_b32 s{S_PF+2}, 262144")
        T(f"s_mov_b32 s{S_PF+3}, 0x00020000")
        T(f"s_sub_u32 s46, s{S_W}, 2")
        T(f"s_lshl_b32 s{S_BQ}, s46, 16")
        T(f"s_mul_i32 s{S_BQM}, s46, {10 * QUNIT}")
        T(f"s_add_u32 s{S_BQM}, s{S_BQM}, {QBASE}")
        T(f"s_add_u32 s{S_PFOFF}, s{S_ROT}, {2 * 16384}")
        T(f"s_and_b32 s{S_PFOFF}, s{S_PFOFF}, 0x3ffff")
        T(f"s_mov_b32 m0, {QDUMMY}")
        for k in range(2 * (PD - 2)):
            A(Ins(f"buffer_load_dword v{V_DMA}, s[{S_PF}:{S_PF+3}], s{S_PFOFF} offen lds", rd=[("v", V_DMA), ("s", "m0")], kind="dma", cost=16, tag="PF0"))
            T(f"s_add_u32 s{S_PFOFF}, s{S_PFOFF}, 8192")
            T(f"s_and_b32 s{S_PFOFF}, s{S_PFOFF}, 0x3ffff")
    A(wait_vm(("K", 0)))
    A(barrier())
    for f in range(4):
        o += k_read(f, 0)
    for ks in range(16):
        lam = ks >> 2
        if (ks & 3) == 0:
            for u, (qb, l2) in enumerate(UNITS):
                if l2 == lam:
                    A(wait_vm(("Q0", u)))
                    for ksl in range(4):
                        A(q_read(qb, 4 * lam + ksl, u))
        for qb in (0, 1):
            F = ("v", FB + 4 * (ks % 4))
            D = Sacc(0, qb)
            A(mfma32(D, F, Qfrag(qb, ks), None if ks == 0 else D))
            g = 2 * ks + qb
            if g >= 1 and (g + 7) % 2 == 0 and 4 <= (g + 7) // 2 < 16:
                o += k_read((g + 7) // 2, 0)
            if g == 27:
                o += [wait_vm(("V", 0)), wait_lgkm0(), barrier()]
                o += k_read(0, 1) + k_read(1, 1)
            if g == 29:
                o += k_read(2, 1)
            if g == 31:
                o += k_read(3, 1)
    o += it15_vm
    A(nop(7))
    A(nop(7))
    for g in row_max2(0):
        o += g
    o += flat(softmax_steps(0, 0)[:HEAD0])
    A(wait_lgkm0())
    return o


def stamp(k=0, force=False):
    if not STAMP or ((PROF or PROF2) and not force):
        return []
    return [raw("s_memtime s[60:61]", kind="salu"), raw("s_waitcnt lgkmcnt(0)", kind="wait"),
            raw("v_mov_b32 v255, s60"), raw("buffer_store_dword v255, off, s[64:67], s62"),
            raw("s_add_u32 s62, s62, 4", kind="salu")]


def dump2():
    if not PROF2:
        return []
    o = stamp(force=True)
    for k in range(2):
        o += [raw(f"v_mov_b32 v255, s{88+k}"), raw("buffer_store_dword v255, off, s[64:67], s62"), raw("s_add_u32 s62, s62, 4", kind="salu"),
              raw(f"s_mov_b32 s{88+k}, 0", kind="salu")]
    return o


def stamp_init():
    if not STAMP:
        return []
    o = []
    T = lambda s: o.append(raw(s, kind="salu"))
    T("s_load_dwordx2 s[64:65], s[0:1], 32")
    T("v_lshrrev_b32 v255, 6, v0")
    T("s_nop 1")
    T("v_readfirstlane_b32 s62, v255")
    T("s_waitcnt lgkmcnt(0)")
    T("s_and_b32 s65, s65, 0xffff")
    T("s_mov_b32 s67, 0x00020000")
    T("s_lshl_b32 s62, s62, 8")
    T("s_add_u32 s62, s62, s2")
    T(f"s_cmp_eq_u32 s62, {opt('swg', 0)}")
    T("s_cselect_b32 s66, 256, 0")
    T("s_mov_b32 s62, 0")
    for k in range(4):
        T(f"s_mov_b32 s{88+k}, 0")
    return o


def stamp_out(n):
    if not STAMP:
        return []
    o = [raw("s_waitcnt vmcnt(0)", kind="wait")] + stamp(force=True)
    if PROF:
        for k in range(4):
            o += [raw(f"v_mov_b32 v255, s{88+k}"), raw("buffer_store_dword v255, off, s[64:67], s62"), raw("s_add_u32 s62, s62, 4", kind="salu")]
    return o


def build_role():
    import io, contextlib
    RL = ROLE
    st = WaitState()
    G = 14
    rounds = []
    for r in range(3):
        buf = io.StringIO()
        with contextlib.redirect_stdout(buf):
            Sx = build_special(G)
            L1 = build_loop(G + 4)
            L2 = build_loop(G + 6)
        if r == 2:
            print(buf.getvalue(), end="")
            for nm, Rg in (("S", Sx), ("L", L1)):
                print(RL, nm, "loads:", " ".join(str(Rg.load(i)) for i in range(Rg.n)))
                print(RL, nm, "over24:", sum(max(0, Rg.load(i) - 24) for i in range(Rg.n)))
        sr = insert_waits(Sx.flatten(), st)
        l1 = insert_waits(L1.flatten(), st)
        l2 = insert_waits(L2.flatten(), st)
        rounds.append((sr, l1, l2))
        G += 8
    sr, l1, l2 = rounds[2]
    l1 = l2
    tx = lambda s: [x.text for x in s]
    if RL == "A":
        assert tx(rounds[2][1]) == tx(l2), "loop not steady"
    assert tx(rounds[1][0]) == tx(sr), "special not steady"
    assert tx(rounds[1][2]) == tx(l2)
    sp = {}
    mcount = 0
    for i, x in enumerate(sr):
        if x.kind == "mfma":
            if mcount in (64, 128, 192):
                j = i
                while sr[j - 1].kind == "wait":
                    j -= 1
                sp[mcount] = j
            mcount += 1
    s14, s15, s_b, s_c = sr[:sp[64]], sr[sp[64]:sp[128]], sr[sp[128]:sp[192]], sr[sp[192]:]
    vm = []
    if RL == "A":
        started = False
        last_m0 = None
        offs = [f"s_add_u32 s{r}," for r in (S_KOFF, S_KOFF2, S_VOFF, S_VOFF2)] + [f"s_and_b32 s{r}," for r in (S_KOFF, S_KOFF2, S_VOFF, S_VOFF2)]
        for x in s15:
            if x.kind == "salu" and x.text.startswith("s_add_u32 m0"):
                last_m0 = x
            if x.kind == "dma" and x.tag[0] == "K":
                started = True
            if started:
                if x.kind == "dma":
                    assert x.tag[0] in ("K", "V")
                    vm += [last_m0, nop(0), x]
                elif x.kind == "vmem_st":
                    vm.append(x)
                elif x.kind == "salu" and any(x.text.startswith(p) for p in offs):
                    vm.append(x)
    pro = prologue([uncountedcopy(x) for x in vm])
    pro_r = insert_waits(pro, WaitState())
    loop_ctl = [raw(f"s_add_u32 s{S_CNT}, s{S_CNT}, 1", kind="salu"),
                raw(f"s_cmp_lt_u32 s{S_CNT}, 6", kind="salu"),
                raw(f"s_cbranch_scc1 L_loop{RL}", kind="branch")]
    exit_ctl = [raw(f"s_add_u32 s{S_RHO}, s{S_RHO}, 1", kind="salu"),
                raw(f"s_cmp_eq_u32 s{S_RHO}, 4", kind="salu"),
                raw("s_cbranch_scc1 L_fin", kind="branch")]
    check_hazards(pro_r + s_b + exit_ctl + s_c + l1 + loop_ctl + l1 + loop_ctl + s14 + s15 + s_b + exit_ctl + s_c + l1, "main" + RL)
    names = [("l0" + RL, 0), ("l1" + RL, 1), ("s14" + RL, 0), ("s15" + RL, 1), ("s1" + RL, 1)]
    seq = [label(f"L_pro{RL}")] + pro_r + [raw(f"s_branch L_it0{RL}", kind="branch")]
    seq += [label(f"L_sa{RL}")] + dump2() + stamp() + s14 + stamp() + s15 + [label(f"L_it0{RL}")] + stamp() + s_b + exit_ctl + stamp() + s_c + stamp() + [label(f"L_loop{RL}")] + l1 + loop_ctl
    seq += [raw(f"s_branch L_sa{RL}", kind="branch")]
    rare = []
    for nm, par in names:
        r = rare_path(par, nm)
        check_hazards(r, "rare")
        rare += r
    return seq, rare


def main():
    global ROLE
    head = prologue_head()
    ROLE = "A"
    sa, ra = build_role()
    ROLE = "B"
    sb, rb = build_role()
    seq = head[:2] + stamp_init() + stamp(0, force=True) + head[2:]
    seq += [raw(f"s_cmp_ge_u32 s{S_W}, 2", kind="salu"), raw("s_cbranch_scc1 L_proB", kind="branch")]
    seq += sa + [label("L_fin")] + stamp_out(2) + [label("L_end"), raw("s_endpgm")] + sb + ra + rb + [raw("s_endpgm")]
    hdr = open(f"cdna_kernels/{NAME}.s.ref").read().split("\n")
    head = [l for l in hdr if l.startswith(";") and "@launch" not in l and "Override" not in l and "grid=ceil" not in l]
    txt = "\n".join(head) + "\n"
    txt += f"; @launch grid=(256,1,1) block=(256,1,1) lds={LDS_BYTES}\n"
    txt += f'.amdgcn_target "amdgcn-amd-amdhsa--gfx950"\n.text\n.globl {NAME}_kernel\n.p2align 8\n.type {NAME}_kernel,@function\n{NAME}_kernel:\n'
    txt += render(seq) + "\n"
    txt += f""".section .rodata,"a"
.p2align 6
.amdhsa_kernel {NAME}_kernel
  .amdhsa_next_free_vgpr 512
  .amdhsa_next_free_sgpr 96
  .amdhsa_accum_offset 256
  .amdhsa_group_segment_fixed_size 0
  .amdhsa_kernarg_size 48
  .amdhsa_user_sgpr_count 2
  .amdhsa_user_sgpr_kernarg_segment_ptr 1
  .amdhsa_system_sgpr_workgroup_id_x 1
.end_amdhsa_kernel
"""
    out = sys.argv[1] if len(sys.argv) > 1 else f"cdna_kernels/{NAME}.s"
    open(out, "w").write(txt)
    print("wrote", out, len(seq), "instructions", len(txt), "bytes")


def uncountedcopy(x):
    y = Ins(x.text, rd=x.rd, wr=x.wr, kind=x.kind, cost=x.cost, tag=x.tag)
    return y


main()
```

```python
import sys, math, struct
sys.path.insert(0, "work")
from fw import *

NAME = "standalone__mha_softmax__near_ridge"
ARGS = sys.argv[2:]
STAMP = "stamp" in ARGS
PROF = "prof" in ARGS
PROF2 = "prof2" in ARGS
PFS = 128


def opt(name, default):
    for a in ARGS:
        if a.startswith(name + "="):
            return int(a.split("=")[1])
    return default


OA = ("v", 0)
OB = ("a", 0)
QA = 128
QB = 192
SB = [128, 160]
P0 = 192
P1 = 208
FB = 216
TT = 232
V_KA, V_VA, V_DMA = 236, 237, 238
V_NMC = [239, 240]
V_L = [241, 242]
V_LT = [243, 244]
V_TMP = 245
V_QO = 246
V_T2 = 247
V_T3 = 248
V_QDMA = 249
V_QRD = 250
V_PF = 251
V_RINV = [252, 254]
V_QCUR = 253
V_TMP2 = 255

S_Q, S_K, S_V, S_O = 4, 8, 12, 16
S_XH = 3
S_W = 20
S_C = 21
S_THR = 22
S_KOFF = 23
S_VOFF = 24
S_KM0 = 25
S_VM0 = 26
S_CNT = 27
S_QS = 28
S_QSTEP = 29
S_NC = 30
S_QM = 31
S_KN = 48
S_VN = 50
S_KVN = 52
S_16K = 53
S_ON = 54
S_T = 57
S_QMB = 58
S_RHO = 59
S_KOFF2 = 68
S_VOFF2 = 69
S_PF = 72
S_PFOFF = 70
S_PFN = 76
S_WQ = 71
S_BQ = 78
S_BQM = 79
S_ROT = 80
S_ROT2 = 81
ROTM = opt('rot', 15)
ROLE = "A"
PD = opt("pd", 6)

KBLK, VBLK = 1040, 1088
KSLOT = [0, 16 * KBLK]
VSLOT = [32 * KBLK, 32 * KBLK + 16 * VBLK]
QBASE = 32 * KBLK + 32 * VBLK
QUNIT = 4224
QDUMMY = QBASE + 4 * 5 * QUNIT
LDS_BYTES = QDUMMY + 4224

SCALE = (256 ** -0.5) * math.log2(math.e)
HEAD = opt("head", 19)
HEAD0 = opt("head0", 12)
UNITS = [(0, 0), (1, 0), (0, 1), (1, 1), (0, 2)]
LATE = [((1, 2), 0), ((0, 3), 1), ((1, 3), 2)]


def f32bits(x):
    return struct.unpack("<I", struct.pack("<f", x))[0]


def Oacc(qb, t):
    k, lo = (OA, OB)[qb]
    return (k, lo + 16 * t)


def Qfrag(qb, ks):
    return ("a", (QA, QB)[qb] + 4 * ks)


def Sacc(buf, qb):
    return ("v", SB[buf] + 16 * qb)


def Pfrag(par, qb, s):
    if s == 0:
        return ("v", P0 + par * 8 + qb * 4)
    return ("v", P1 + qb * 4)


def S(text, rd=(), wr=()):
    return salu(text, rd=rd, wr=wr)


def k_read(f, slot):
    return [ds_read("ds_read_b128", "v", FB + 4 * (f % 4), 4, V_KA, KSLOT[slot] + 32 * f)]


def v_read(f, slot):
    t, s = f >> 1, f & 1
    b = FB + 4 * (f % 4)
    return [ds_read("ds_read_b64_tr_b16", "v", b + 2 * u, 2, V_VA, VSLOT[slot] + (2 * s + u) * 4 * VBLK + 64 * t) for u in (0, 1)]


def q_read(qb, ks, space):
    k, lo = Qfrag(qb, ks)
    return ds_read("ds_read_b128", k, lo, 4, V_QRD, space * QUNIT + 32 * (ks & 3))


def dma_unit(kind, j, four=False):
    slot = j & 1
    if kind == "K":
        base, blk, sl, srd, soff, soff2 = S_KM0, KBLK, KSLOT, S_K, S_KOFF, S_KOFF2
    else:
        base, blk, sl, srd, soff, soff2 = S_VM0, VBLK, VSLOT, S_V, S_VOFF, S_VOFF2
    rel = sl[slot] - sl[0]
    groups = []
    for half in ((0,) if four else (0, 1)):
        so = (soff, soff2)[half]
        for q in range(4):
            g = [S(f"s_add_u32 m0, s{base}, {rel + half * 4 * blk + (blk - 512) * q}", rd=[base], wr=["m0"]),
                 nop(0),
                 dma(V_DMA, srd, f"s{so}", 512 * q, tag=(kind, j))]
            if q == 3:
                g.append(S(f"s_add_u32 s{so}, s{so}, 16384", rd=[so], wr=[so]))
                g.append(S(f"s_and_b32 s{so}, s{so}, 0x3ffff", rd=[so], wr=[so]))
            groups.append(g)
    return groups


def q_dma_static(qb, lam, space, tag):
    groups = []
    for io in range(4):
        groups.append([S(f"s_add_u32 m0, s{S_QMB}, {space * QUNIT + 1056 * io}", rd=[S_QMB], wr=["m0"]),
                       S(f"s_add_u32 s40, s{S_WQ}, {qb * 16384 + lam * 128 + io * 4096}", wr=[40]),
                       dma(V_QDMA, S_Q, "s40", 0, tag=tag)])
    return groups


def softmax_steps(buf, par):
    def elem(e):
        s = e >> 4
        qb = (e >> 3) & 1
        r = 8 * s + (e & 7)
        return s, qb, r
    steps = []
    for k in range(34):
        st = []
        if k < 32:
            s, qb, r = elem(k)
            st.append(valu("v_fma_f32", TT + k % 4, SB[buf] + 16 * qb + r, f"s{S_C}", V_NMC[qb]))
        if 0 <= k - 1 < 32:
            e = k - 1
            st.append(trans("v_exp_f32", TT + e % 4, TT + e % 4))
        if 0 <= k - 2 < 32:
            e = k - 2
            s, qb, r = elem(e)
            if r == 1:
                st.append(valu("v_add_f32", V_LT[qb], TT + (e - 1) % 4, TT + e % 4))
            elif r > 1:
                st.append(valu("v_add_f32", V_LT[qb], V_LT[qb], TT + e % 4))
            if r & 1:
                pk, pl = Pfrag(par, qb, s)
                st.append(valu("v_cvt_pk_bf16_f32", pl + ((r & 7) >> 1), TT + (e - 1) % 4, TT + e % 4))
        steps.append(st)
    return steps


def swap32(a, b):
    return Ins(f"v_permlane32_swap_b32 v{a}, v{b}", rd=[("v", a), ("v", b)], wr=[("v", a), ("v", b)], kind="valu")


def row_max2(buf):
    dst = [V_T2, V_T3]
    tmp = [V_TMP, V_TMP2]
    groups = []
    b = [SB[buf], SB[buf] + 16]
    groups.append([valu("v_max3_f32", dst[q], b[q], b[q] + 1, b[q] + 2) for q in (0, 1)])
    for i in range(3, 15, 2):
        groups.append([valu("v_max3_f32", dst[q], dst[q], b[q] + i, b[q] + i + 1) for q in (0, 1)])
    groups.append([valu("v_max_f32", dst[q], dst[q], b[q] + 15) for q in (0, 1)])
    g = [valu("v_mov_b32", tmp[q], dst[q]) for q in (0, 1)]
    g += [nop(1)]
    g += [swap32(tmp[q], dst[q]) for q in (0, 1)]
    g += [nop(0)]
    g += [valu("v_max_f32", dst[q], dst[q], tmp[q]) for q in (0, 1)]
    g += [valu("v_mul_f32", V_NMC[q], f"s{S_NC}", dst[q]) for q in (0, 1)]
    groups.append(g)
    return groups


def rinv_group():
    tmp = [V_TMP, V_TMP2]
    g = [valu("v_mov_b32", tmp[q], V_L[q]) for q in (0, 1)]
    g += [nop(1)]
    g += [swap32(tmp[q], V_L[q]) for q in (0, 1)]
    g += [nop(0)]
    g += [valu("v_add_f32", V_L[q], V_L[q], tmp[q]) for q in (0, 1)]
    g += [trans("v_rcp_f32", V_RINV[q], V_L[q]) for q in (0, 1)]
    return g


def row_max(buf, qb, dst, tmp):
    b = SB[buf] + 16 * qb
    out = [valu("v_max3_f32", dst, b, b + 1, b + 2)]
    for i in range(3, 15, 2):
        out.append(valu("v_max3_f32", dst, dst, b + i, b + i + 1))
    out.append(valu("v_max_f32", dst, dst, b + 15))
    out.append(valu("v_mov_b32", tmp, dst))
    out.append(nop(1))
    out.append(swap32(tmp, dst))
    out.append(nop(0))
    out.append(valu("v_max_f32", dst, dst, tmp))
    return out


def flat(steps):
    out = []
    for st in steps:
        out += st
        out.append(nop(0))
    return out


def rare_path(par, name):
    out = [label(f"L_rare{name}")]
    out.append(nop(7))
    for qb in (0, 1):
        out += row_max(par, qb, V_T2, V_TMP)
        out.append(valu("v_mul_f32", V_T2, f"s{S_NC}", V_T2))
        out.append(valu("v_min_f32", V_T2, V_T2, V_NMC[qb]))
        out.append(valu("v_sub_f32", V_T3, V_T2, V_NMC[qb]))
        out.append(trans("v_exp_f32", V_T3, V_T3))
        out.append(valu("v_mov_b32", V_NMC[qb], V_T2))
        out.append(valu("v_mul_f32", V_L[qb], V_L[qb], V_T3))
        for r in range(128):
            if qb == 0:
                out.append(valu("v_mul_f32", r, r, V_T3))
            else:
                out.append(valu("v_accvgpr_read_b32", V_TMP, ("a", r)))
                out.append(valu("v_mul_f32", V_TMP, V_TMP, V_T3))
                out.append(valu("v_accvgpr_write_b32", ("a", r), V_TMP))
    out += flat(softmax_steps(par, par))
    out.append(nop(3))
    out.append(raw(f"s_branch L_back{name}", kind="branch"))
    return out


def pk_mul(r, qb):
    sel = "op_sel_hi:[1,0]"
    p = V_RINV[qb]
    return Ins(f"v_pk_mul_f32 v[{r}:{r+1}], v[{r}:{r+1}], v[{p}:{p+1}] {sel}",
               rd=[("v", r), ("v", r + 1), ("v", V_RINV[qb])], wr=[("v", r), ("v", r + 1)], kind="valu")


def epi_items(t):
    b = 16 * t
    ga = []
    for gp in (0, 1):
        o = b + 8 * gp
        ga.append([pk_mul(o + 2 * j, 0) for j in range(4)])
        ga.append([valu("v_cvt_pk_bf16_f32", o + e, o + 2 * e, o + 2 * e + 1) for e in range(4)])
        ga.append([bstore("v", o, 4, V_QO, S_O, "0", 64 * t + 32 * gp, tag="ST")])
    gb = []
    tmp = [b + 4, b + 5, b + 6, b + 7, b + 12, b + 13, b + 14, b + 15]
    gb.append([valu("v_accvgpr_read_b32", tmp[e], ("a", b + e)) for e in range(4)])
    gb.append([valu("v_accvgpr_read_b32", tmp[e], ("a", b + e)) for e in range(4, 8)])
    gb.append([pk_mul(tmp[2 * j], 1) for j in range(4)])
    gb.append([valu("v_cvt_pk_bf16_f32", b + 4 + e, tmp[2 * e], tmp[2 * e + 1]) for e in range(4)])
    gb.append([bstore("v", b + 4, 4, V_QO, S_O, f"s{S_16K}", 64 * t, tag="ST")])
    tmp = [b + 8 + e for e in range(8)]
    gb.append([valu("v_accvgpr_read_b32", tmp[e], ("a", b + 8 + e)) for e in range(4)])
    gb.append([valu("v_accvgpr_read_b32", tmp[e], ("a", b + 8 + e)) for e in range(4, 8)])
    gb.append([pk_mul(tmp[2 * j], 1) for j in range(4)])
    gb.append([valu("v_cvt_pk_bf16_f32", b + 8 + e, tmp[2 * e], tmp[2 * e + 1]) for e in range(4)])
    gb.append([bstore("v", b + 8, 4, V_QO, S_O, f"s{S_16K}", 64 * t + 32, tag="ST")])
    return ga, gb


def tile_params():
    o = []
    A = lambda t: o.append([S(t)])
    A(f"s_mul_hi_u32 s42, s{S_T}, 0x55555556")
    A("s_mul_i32 s43, s42, 3")
    A(f"s_sub_u32 s43, s{S_T}, s43")
    A(f"s_add_u32 s42, s42, s{S_XH}")
    A("s_mul_i32 s44, s42, 376832")
    A("s_lshl_b32 s43, s43, 17")
    A("s_add_u32 s44, s44, s43")
    A("s_lshl_b32 s45, s42, 18")
    A(f"s_lshr_b32 s{S_ROT}, s42, 4")
    A(f"s_xor_b32 s{S_ROT}, s{S_ROT}, s42")
    A(f"s_and_b32 s{S_ROT}, s{S_ROT}, {ROTM}")
    A(f"s_lshl_b32 s{S_ROT}, s{S_ROT}, 14")
    A(f"s_add_u32 s{S_ROT2}, s{S_ROT}, 0x1000")
    A("s_sub_u32 s43, 376832, s43")
    o.append([S(f"s_cmp_lt_u32 s{S_T}, 96"), S("s_cselect_b32 s43, s43, 0"), S(f"s_cselect_b32 s{S_KVN}, 262144, 0")])
    o.append([S(f"s_add_u32 s{S_Q}, s32, s44"), S(f"s_addc_u32 s{S_Q+1}, s33, 0")])
    A(f"s_and_b32 s{S_Q+1}, s{S_Q+1}, 0xffff")
    A(f"s_mov_b32 s{S_Q+2}, s43")
    o.append([S(f"s_add_u32 s{S_ON}, s38, s44"), S(f"s_addc_u32 s{S_ON+1}, s39, 0")])
    A(f"s_and_b32 s{S_ON+1}, s{S_ON+1}, 0xffff")
    A(f"s_mov_b32 s{S_ON+2}, s43")
    o.append([S(f"s_add_u32 s{S_KN}, s34, s45"), S(f"s_addc_u32 s{S_KN+1}, s35, 0")])
    A(f"s_and_b32 s{S_KN+1}, s{S_KN+1}, 0xffff")
    o.append([S(f"s_add_u32 s{S_VN}, s36, s45"), S(f"s_addc_u32 s{S_VN+1}, s37, 0")])
    A(f"s_and_b32 s{S_VN+1}, s{S_VN+1}, 0xffff")
    return o


def wrap2(g, acc):
    if not PROF2:
        return g
    T = lambda t: raw(t, kind="salu", cost=0)
    out = []
    for x in g:
        if x.kind == "dma":
            out += [T("s_memtime s[82:83]"), raw("s_waitcnt lgkmcnt(0)", kind="wait", cost=0), x,
                    T("s_memtime s[84:85]"), raw("s_waitcnt lgkmcnt(0)", kind="wait", cost=0),
                    T("s_sub_u32 s82, s84, s82"), T(f"s_add_u32 s{acc}, s{acc}, s82")]
        else:
            out.append(x)
    return out


class Region:
    def __init__(self, n):
        self.n = n
        self.mf = [None] * n
        self.g = [[] for _ in range(n)]

    def add(self, gap, items):
        self.g[gap] += [x for x in items if x is not None]

    def load(self, gap):
        return sum(x.cost for x in self.g[gap])

    def place(self, seqs, name=""):
        base = [self.load(i) for i in range(self.n)]

        def attempt(level):
            ld = list(base)
            res = []
            cur = 0
            for grp, rel, dl in seqs:
                c = sum(x.cost for x in grp)
                g = max(cur, rel)
                while g <= dl and ld[g] + c > level and not (ld[g] == 0):
                    g += 1
                if g > dl:
                    return None
                ld[g] += c
                res.append(g)
                cur = g
            return res
        level = 8
        while True:
            r = attempt(level)
            if r is not None:
                break
            level += 2
            assert level < 400, "cannot place " + name
        for (grp, rel, dl), g in zip(seqs, r):
            self.g[g] += grp
        if name:
            print(f"  place {name}: level {level}")

    def flatten(self):
        out = []
        for i in range(self.n):
            if self.mf[i] is not None:
                out.append(self.mf[i])
            out += self.g[i]
        return out


def base_iteration(R_, b, role, G, name, extra59=()):
    par = G & 1
    np_ = par ^ 1
    first_of_tile = (role == 0)
    for ks in range(16):
        for qb in (0, 1):
            F = ("v", FB + 4 * (ks % 4))
            D = Sacc(np_, qb)
            R_.mf[b + 2 * ks + qb] = mfma32(D, F, Qfrag(qb, ks), None if ks == 0 else D)
    for f in range(16):
        t, s = f >> 1, f & 1
        for qb in (0, 1):
            F = ("v", FB + 4 * (f % 4))
            D = Oacc(qb, t)
            C = None if (first_of_tile and s == 0) else D
            R_.mf[b + 32 + 2 * f + qb] = mfma32(D, F, Pfrag(par, qb, s), C)
    extra59 = list(extra59)
    for f in range(4, 16):
        R_.add(b + 2 * f - 7, k_read(f, np_))
    A_ = ROLE == "A"

    def prof(w, acc):
        if not PROF:
            return list(w) + [wait_lgkm0(), barrier()]
        T = lambda t: raw(t, kind="salu", cost=0)
        return [wait_lgkm0(), T("s_memtime s[82:83]"), wait_lgkm0()] + list(w) + [T("s_memtime s[84:85]"), raw("s_waitcnt lgkmcnt(0)", kind="wait", cost=0), barrier(),
                T("s_memtime s[86:87]"), raw("s_waitcnt lgkmcnt(0)", kind="wait", cost=0),
                T("s_sub_u32 s82, s82, s92"), T("s_mov_b32 s92, s86"),
                T(f"s_add_u32 s{88 if acc == 88 else 89}, s{88 if acc == 88 else 89}, s82")]
    R_.add(b + 27, prof([wait_vm(("V", G))] if A_ else [], 88) + v_read(0, par) + v_read(1, par))
    R_.add(b + 29, v_read(2, par))
    R_.add(b + 31, v_read(3, par))
    for f in range(4, 16):
        R_.add(b + 32 + 2 * f - 7, v_read(f, par))
    R_.add(b + 59, prof([wait_vm(("K", G + 2))] if A_ else extra59, 90) + k_read(0, par) + k_read(1, par))
    R_.add(b + 61, k_read(2, par))
    R_.add(b + 63, k_read(3, par))
    if A_:
        grp = dma_unit("K", G + 3)
        for q, g in enumerate(grp):
            R_.add(b + KD[q], wrap2(g, 88))
        grp = dma_unit("V", G + 2)
        for q in range(4):
            R_.add(b + VD[q], wrap2(grp[q], 89))
        grp = dma_unit("V", G + 1)
        for q in range(4):
            R_.add(b + VD2[q], wrap2(grp[4 + q], 89))
    else:
        for q in range(2):
            g = [S(f"s_mov_b32 m0, {QDUMMY}", wr=["m0"]),
                 S(f"s_add_u32 s41, s{S_PFOFF}, {8192 * q}"),
                 Ins(f"buffer_load_dword v{V_DMA}, s[{S_PF}:{S_PF+3}], s41 offen lds", rd=[("v", V_DMA), ("s", "m0")], kind="dma", cost=16, tag=("PF", G))]
            if q == 1:
                g.append(S(f"s_add_u32 s{S_PFOFF}, s{S_PFOFF}, 16384"))
                g.append(S(f"s_and_b32 s{S_PFOFF}, s{S_PFOFF}, 0x3ffff"))
            R_.add(b + PFD[q], wrap2(g, 89))


KD = [29, 32, 35, 38, 41, 44, 47, 50]
VD = [60, 61, 62, 63]
VD2 = [0, 2, 4, 6]
QD = [34, 38, 42, 46]
PFD = [12, 20]


def softmax_part(R_, b, role, G, name, head_prev, head_next, next_true_max=False):
    name = name + ROLE
    par = G & 1
    np_ = par ^ 1
    st = softmax_steps(par, par)
    R_.place([(s_, b + 0, b + 28) for s_ in st[head_prev:]], name + ".tail")
    if role == 0:
        R_.add(b + 30, [valu("v_mov_b32", V_L[0], V_LT[0]), valu("v_mov_b32", V_L[1], V_LT[1])])
    else:
        R_.add(b + 29, [valu("v_add_f32", V_TMP, V_LT[0], V_LT[1])])
        R_.add(b + 30, [valu("v_cmp_nge_f32", "vcc", f"s{S_THR}", V_TMP),
                        raw(f"s_cbranch_vccnz L_rare{name}", kind="branch"),
                        label(f"L_back{name}"),
                        valu("v_add_f32", V_L[0], V_L[0], V_LT[0]),
                        valu("v_add_f32", V_L[1], V_L[1], V_LT[1])])
    st = softmax_steps(np_, np_)
    seq = []
    lo = b + 35
    if next_true_max:
        seq.append((rinv_group(), b + 32, b + 34))
        for g in row_max2(np_):
            seq.append((g, b + 34, b + 63))
    for s_ in st[:head_next]:
        seq.append((s_, lo, b + 63))
    R_.place(seq, name + ".head")


def build_loop(G):
    R_ = Region(128)
    c = S_CNT
    x59 = []
    if ROLE == "B":
        x59 = [S(f"s_cmp_lg_u32 s{c}, 5"), raw("s_cbranch_scc1 L_skipq", kind="branch"), wait_vm(("Q", G - 1)), label("L_skipq")]
    base_iteration(R_, 0, 2, G, "l0")
    base_iteration(R_, 64, 3, G + 1, "l1", extra59=x59)
    if ROLE == "B":
        R_.add(1, [S(f"s_cmp_eq_u32 s{c}, 4"),
                   S(f"s_cselect_b32 s{S_PF}, s{S_PFN}, s{S_PF}"),
                   S(f"s_cselect_b32 s{S_PF+1}, s{S_PFN+1}, s{S_PF+1}"),
                   S(f"s_cselect_b32 s{S_PF+2}, s{S_KVN}, s{S_PF+2}"),
                   S(f"s_cselect_b32 s{S_PFOFF}, s{S_ROT}, s{S_PFOFF}")])
        pre = [S(f"s_and_b32 s42, s{c}, 1"), S("s_lshl_b32 s42, s42, 14"), S(f"s_lshr_b32 s43, s{c}, 1"),
               S("s_lshl_b32 s43, s43, 7"), S("s_or_b32 s44, s42, s43"),
               S(f"s_mul_i32 s45, s{c}, {QUNIT}"), S(f"s_add_u32 s45, s45, s{S_BQM}")]
        sel = [S(f"s_cmp_eq_u32 s{c}, 5"), S("s_cselect_b32 s44, 256, s44"),
               S(f"s_cselect_b32 s{S_QSTEP}, s{S_16K}, 0x1000"),
               S(f"s_cselect_b32 s46, 0, {5 * QUNIT}"),
               S(f"s_cselect_b32 s45, {QDUMMY}, s45"),
               S("s_cselect_b64 vcc, -1, 0"),
               valu("v_cndmask_b32", V_QCUR, V_QDMA, V_PF, "vcc")]
        for k, x in enumerate(pre):
            R_.add(3 + 2 * k, [x])
        R_.add(18, sel)
        for it in (0, 1):
            b = 64 * it
            if it == 0:
                R_.add(b + 22, [S(f"s_add_u32 s{S_QS}, s44, s{S_BQ}"), S(f"s_mov_b32 s{S_QM}, s45")])
            else:
                R_.add(b + 22, [S(f"s_add_u32 s{S_QS}, s44, s{S_BQ}"), S(f"s_add_u32 s{S_QS}, s{S_QS}, 32768"), S(f"s_add_u32 s{S_QM}, s45, s46")])
            for io in range(4):
                R_.add(b + QD[io], wrap2([S(f"s_add_u32 m0, s{S_QM}, {1056 * io}", rd=[S_QM], wr=["m0"]), nop(0),
                                    dma(V_QCUR, S_Q, f"s{S_QS}", 0, tag=("Q", G + it)),
                                    S(f"s_add_u32 s{S_QS}, s{S_QS}, s{S_QSTEP}")], 88))
    else:
        R_.add(64 + 4, [S(f"s_cmp_eq_u32 s{c}, 5"),
                        S(f"s_cselect_b32 s{S_K}, s{S_KN}, s{S_K}"),
                        S(f"s_cselect_b32 s{S_K+1}, s{S_KN+1}, s{S_K+1}"),
                        S(f"s_cselect_b32 s{S_K+2}, s{S_KVN}, s{S_K+2}"),
                        S(f"s_cselect_b32 s{S_KOFF}, s{S_ROT}, s{S_KOFF}"),
                        S(f"s_cselect_b32 s{S_KOFF2}, s{S_ROT2}, s{S_KOFF2}")])
    softmax_part(R_, 0, 2, G, "l0", HEAD, HEAD)
    softmax_part(R_, 64, 3, G + 1, "l1", HEAD, HEAD)
    return R_


def build_special(G):
    R_ = Region(256)
    base_iteration(R_, 0, 14, G, "s14")
    base_iteration(R_, 64, 15, G + 1, "s15")
    base_iteration(R_, 128, 0, G + 2, "s0")
    base_iteration(R_, 192, 1, G + 3, "s1")
    if ROLE == "A":
        R_.add(50, [S(f"s_mov_b32 s{S_V}, s{S_VN}"), S(f"s_mov_b32 s{S_V+1}, s{S_VN+1}"),
                    S(f"s_mov_b32 s{S_V+2}, s{S_KVN}"), S(f"s_mov_b32 s{S_VOFF}, s{S_ROT}"), S(f"s_mov_b32 s{S_VOFF2}, s{S_ROT2}")])
    for u, (qb, lam) in enumerate(UNITS):
        for ksl in range(4):
            ks = 4 * lam + ksl
            R_.add(2 * ks + qb + 2, [q_read(qb, ks, u)])
    def unit_regs(qb, lam):
        r = []
        for ksl in range(4):
            k, lo = Qfrag(qb, 4 * lam + ksl)
            r += R(k, lo, 4)
        return r
    late_start = [11, 12, 19]
    for idx, ((qb, lam), space) in enumerate(LATE):
        oq, ol = UNITS[space]
        grp = q_dma_static(qb, lam, space, ("QL", G, idx))
        grp[0] = [touch(unit_regs(oq, ol))] + grp[0]
        g0 = late_start[idx]
        for io in range(4):
            R_.add(g0 + 2 * io, grp[io])
    rd_at = [64 + LR0, 64 + LR1, 64 + LR2]
    for idx, ((qb, lam), space) in enumerate(LATE):
        R_.add(rd_at[idx], [wait_vm(("QL", G, idx))] + [q_read(qb, 4 * lam + ksl, space) for ksl in range(4)])
    softmax_part(R_, 0, 14, G, "s14", HEAD, HEAD)
    softmax_part(R_, 64, 15, G + 1, "s15", HEAD, HEAD0, next_true_max=True)
    softmax_part(R_, 128, 0, G + 2, "s0", HEAD0, HEAD)
    softmax_part(R_, 192, 1, G + 3, "s1", HEAD, HEAD)
    seq = []
    for t in range(8):
        ga, gb = epi_items(t)
        rel_a = 64 + 32 + 4 * t + 2 + EREL
        rel_b = rel_a + 1
        dl = 128 + 32 + 4 * t - 1
        seq += [(g, rel_a, dl) for g in ga] + [(g, rel_b, dl) for g in gb]
    R_.place(seq, "epilogue")
    seq = [([S(f"s_mov_b32 s{S_O}, s{S_ON}"), S(f"s_mov_b32 s{S_O+1}, s{S_ON+1}"), S(f"s_mov_b32 s{S_O+2}, s{S_ON+2}")], 192 + 2, 250)]
    seq.append(([S(f"s_add_u32 s{S_T}, s{S_T}, 32")], 192 + 2, 250))
    seq += [(g, 192 + 2, 250) for g in tile_params()]
    seq.append(([S(f"s_mov_b32 s{S_CNT}, 0")], 192 + 2, 250))
    if ROLE == "B":
        seq.append(([S(f"s_cmp_eq_u32 s{S_W}, 2"), S(f"s_cselect_b32 s{S_PFN}, s{S_KN}, s{S_VN}"),
                     S(f"s_cselect_b32 s{S_PFN+1}, s{S_KN+1}, s{S_VN+1}")], 192 + 2, 250))
    R_.place(seq, "params")
    return R_


LR0 = opt("lr0", 10)
LR1 = opt("lr1", 16)
LR2 = opt("lr2", 18)
EREL = opt("erel", 4)


def prologue_head():
    o = []
    A = o.append
    T = lambda s: A(raw(s, kind="salu"))
    T("s_cmp_ge_u32 s2, 256")
    A(raw("s_cbranch_scc1 L_end", kind="branch"))
    T("s_load_dwordx4 s[32:35], s[0:1], 0")
    T("s_load_dwordx4 s[36:39], s[0:1], 16")
    T(f"s_and_b32 s{S_XH}, s2, 7")
    T(f"s_lshl_b32 s{S_XH}, s{S_XH}, 5")
    T(f"s_lshr_b32 s{S_T}, s2, 3")
    T(f"s_mov_b32 s{S_16K}, 16384")
    A(valu("v_lshrrev_b32", V_TMP, "6", 0))
    A(valu("v_and_b32", V_T2, "63", 0))
    A(valu("v_readfirstlane_b32", f"s{S_W}", V_TMP))
    A(raw("s_waitcnt lgkmcnt(0)", kind="wait"))
    return o


def prologue(it15_vm):
    o = []
    A = o.append
    T = lambda s: A(raw(s, kind="salu"))
    for g in tile_params():
        o += g
    T(f"s_mov_b32 s{S_Q+3}, 0x00020000")
    T(f"s_mov_b32 s{S_K}, s{S_KN}")
    T(f"s_mov_b32 s{S_K+1}, s{S_KN+1}")
    T(f"s_mov_b32 s{S_K+2}, 262144")
    T(f"s_mov_b32 s{S_K+3}, 0x00020000")
    T(f"s_mov_b32 s{S_V}, s{S_VN}")
    T(f"s_mov_b32 s{S_V+1}, s{S_VN+1}")
    T(f"s_mov_b32 s{S_V+2}, 262144")
    T(f"s_mov_b32 s{S_V+3}, 0x00020000")
    T(f"s_mov_b32 s{S_O}, s{S_ON}")
    T(f"s_mov_b32 s{S_O+1}, s{S_ON+1}")
    T(f"s_mov_b32 s{S_O+2}, 0")
    T(f"s_mov_b32 s{S_O+3}, 0x00020000")
    T(f"s_mov_b32 s{S_C}, {f32bits(SCALE):#x}")
    T(f"s_mov_b32 s{S_NC}, {f32bits(-SCALE):#x}")
    T(f"s_mov_b32 s{S_THR}, {f32bits(4096.0):#x}")
    T(f"s_mov_b32 s{S_KOFF}, s{S_ROT}")
    T(f"s_mov_b32 s{S_VOFF}, s{S_ROT}")
    T(f"s_mov_b32 s{S_RHO}, 0")
    T(f"s_mul_i32 s{S_KM0}, s{S_W}, {4*KBLK}")
    T(f"s_add_u32 s{S_KM0}, s{S_KM0}, {KSLOT[0]}")
    T(f"s_mul_i32 s{S_VM0}, s{S_W}, {4*VBLK}")
    T(f"s_add_u32 s{S_VM0}, s{S_VM0}, {VSLOT[0]}")
    T(f"s_mul_i32 s{S_QMB}, s{S_W}, {5*QUNIT}")
    T(f"s_add_u32 s{S_QMB}, s{S_QMB}, {QBASE}")
    T(f"s_lshl_b32 s{S_WQ}, s{S_W}, 15")
    L = V_T2
    A(valu("v_lshrrev_b32", V_TMP, "5", L))
    A(valu("v_lshlrev_b32", V_DMA, "11", V_TMP))
    A(valu("v_and_b32", V_T3, "31", L))
    A(valu("v_lshl_add_u32", V_DMA, V_T3, "4", V_DMA))
    T(f"s_lshl_b32 s46, s{S_W}, 12")
    A(valu("v_add_u32", V_DMA, "s46", V_DMA))
    A(valu("v_lshrrev_b32", TT, "3", L))
    A(valu("v_bfe_u32", TT + 1, L, "4", "1"))
    A(valu("v_and_b32", TT + 2, "7", L))
    A(valu("v_xor_b32", TT + 2, TT + 2, TT + 1))
    A(valu("v_lshlrev_b32", V_QDMA, "9", TT))
    A(valu("v_lshl_add_u32", V_QDMA, TT + 2, "4", V_QDMA))

    def issue(kind, j):
        r = []
        for g in dma_unit(kind, j, four=True):
            r += g
        return r
    o += issue("K", 0)
    for u, (qb, lam) in enumerate(UNITS):
        for g in q_dma_static(qb, lam, u, ("Q0", u)):
            o += g
    A(valu("v_lshlrev_b32", V_QO, "9", V_T3))
    A(valu("v_lshl_add_u32", V_PF, V_TMP, "7", V_QO))
    A(valu("v_add_u32", V_QO, f"s{S_WQ}", V_QO))
    A(valu("v_lshl_add_u32", V_QO, V_TMP, "4", V_QO))
    for (qb, lam), _ in LATE:
        for ksl in range(4):
            ks = 4 * lam + ksl
            k, lo = Qfrag(qb, ks)
            A(bload(k, lo, 4, V_QO, S_Q, f"s{S_16K}" if qb else "0", 32 * ks, tag="QD"))
    o += issue("K", 1)
    o += issue("V", 0)
    A(valu("v_and_b32", V_KA, "3", V_T3))
    A(valu("v_lshrrev_b32", TT, "3", V_T3))
    A(valu("v_lshl_add_u32", V_KA, TT, "2", V_KA))
    T(f"s_movk_i32 s46, {KBLK}")
    A(valu("v_mul_lo_u32", V_KA, V_KA, "s46"))
    A(valu("v_bfe_u32", TT, V_T3, "2", "1"))
    A(valu("v_lshl_add_u32", V_KA, TT, "9", V_KA))
    A(valu("v_lshl_add_u32", V_KA, V_TMP, "4", V_KA))
    A(valu("v_bfe_u32", V_VA, L, "2", "2"))
    T(f"s_movk_i32 s46, {VBLK}")
    A(valu("v_mul_lo_u32", V_VA, V_VA, "s46"))
    A(valu("v_lshl_add_u32", V_VA, V_TMP, "9", V_VA))
    A(valu("v_bfe_u32", TT, L, "4", "1"))
    A(valu("v_lshl_add_u32", V_VA, TT, "5", V_VA))
    A(valu("v_and_b32", TT, "1", L))
    A(valu("v_lshl_add_u32", V_VA, TT, "4", V_VA))
    A(valu("v_bfe_u32", TT, L, "1", "1"))
    A(valu("v_lshl_add_u32", V_VA, TT, "3", V_VA))
    A(valu("v_lshrrev_b32", TT, "3", V_T3))
    T("s_movk_i32 s46, 1056")
    A(valu("v_mul_lo_u32", V_QRD, TT, "s46"))
    A(valu("v_and_b32", TT, "7", V_T3))
    A(valu("v_lshl_add_u32", V_QRD, TT, "7", V_QRD))
    A(valu("v_bfe_u32", TT, V_T3, "1", "1"))
    A(valu("v_xor_b32", TT, TT, V_TMP))
    A(valu("v_lshl_add_u32", V_QRD, TT, "4", V_QRD))
    A(valu("v_add_u32", V_QRD, f"s{S_QMB}", V_QRD))
    A(valu("v_mov_b32", V_RINV[0], "0"))
    A(valu("v_mov_b32", V_RINV[1], "0"))
    if ROLE == "A":
        T(f"s_lshl_b32 s46, s{S_W}, 12")
        A(valu("v_add_u32", V_DMA, "s46", V_DMA))
        T(f"s_mul_i32 s{S_KM0}, s{S_W}, {8*KBLK}")
        T(f"s_add_u32 s{S_KM0}, s{S_KM0}, {KSLOT[0]}")
        T(f"s_mul_i32 s{S_VM0}, s{S_W}, {8*VBLK}")
        T(f"s_add_u32 s{S_VM0}, s{S_VM0}, {VSLOT[0]}")
        T(f"s_add_u32 s{S_KOFF2}, s{S_KOFF}, 4096")
        T(f"s_add_u32 s{S_VOFF2}, s{S_VOFF}, 4096")
    else:
        A(valu("v_lshlrev_b32", V_DMA, "7", L))
        T(f"s_cmp_eq_u32 s{S_W}, 2")
        T(f"s_cselect_b32 s{S_PF}, s{S_K}, s{S_V}")
        T(f"s_cselect_b32 s{S_PF+1}, s{S_K+1}, s{S_V+1}")
        T(f"s_mov_b32 s{S_PF+2}, 262144")
        T(f"s_mov_b32 s{S_PF+3}, 0x00020000")
        T(f"s_sub_u32 s46, s{S_W}, 2")
        T(f"s_lshl_b32 s{S_BQ}, s46, 16")
        T(f"s_mul_i32 s{S_BQM}, s46, {10 * QUNIT}")
        T(f"s_add_u32 s{S_BQM}, s{S_BQM}, {QBASE}")
        T(f"s_add_u32 s{S_PFOFF}, s{S_ROT}, {2 * 16384}")
        T(f"s_and_b32 s{S_PFOFF}, s{S_PFOFF}, 0x3ffff")
        T(f"s_mov_b32 m0, {QDUMMY}")
        for k in range(2 * (PD - 2)):
            A(Ins(f"buffer_load_dword v{V_DMA}, s[{S_PF}:{S_PF+3}], s{S_PFOFF} offen lds", rd=[("v", V_DMA), ("s", "m0")], kind="dma", cost=16, tag="PF0"))
            T(f"s_add_u32 s{S_PFOFF}, s{S_PFOFF}, 8192")
            T(f"s_and_b32 s{S_PFOFF}, s{S_PFOFF}, 0x3ffff")
    A(wait_vm(("K", 0)))
    A(barrier())
    for f in range(4):
        o += k_read(f, 0)
    for ks in range(16):
        lam = ks >> 2
        if (ks & 3) == 0:
            for u, (qb, l2) in enumerate(UNITS):
                if l2 == lam:
                    A(wait_vm(("Q0", u)))
                    for ksl in range(4):
                        A(q_read(qb, 4 * lam + ksl, u))
        for qb in (0, 1):
            F = ("v", FB + 4 * (ks % 4))
            D = Sacc(0, qb)
            A(mfma32(D, F, Qfrag(qb, ks), None if ks == 0 else D))
            g = 2 * ks + qb
            if g >= 1 and (g + 7) % 2 == 0 and 4 <= (g + 7) // 2 < 16:
                o += k_read((g + 7) // 2, 0)
            if g == 27:
                o += [wait_vm(("V", 0)), wait_lgkm0(), barrier()]
                o += k_read(0, 1) + k_read(1, 1)
            if g == 29:
                o += k_read(2, 1)
            if g == 31:
                o += k_read(3, 1)
    o += it15_vm
    A(nop(7))
    A(nop(7))
    for g in row_max2(0):
        o += g
    o += flat(softmax_steps(0, 0)[:HEAD0])
    A(wait_lgkm0())
    return o


def stamp(k=0, force=False):
    if not STAMP or ((PROF or PROF2) and not force):
        return []
    return [raw("s_memtime s[60:61]", kind="salu"), raw("s_waitcnt lgkmcnt(0)", kind="wait"),
            raw("v_mov_b32 v255, s60"), raw("buffer_store_dword v255, off, s[64:67], s62"),
            raw("s_add_u32 s62, s62, 4", kind="salu")]


def dump2():
    if not (PROF2 or PROF):
        return []
    o = stamp(force=True)
    for k in range(2):
        o += [raw(f"v_mov_b32 v255, s{88+k}"), raw("buffer_store_dword v255, off, s[64:67], s62"), raw("s_add_u32 s62, s62, 4", kind="salu"),
              raw(f"s_mov_b32 s{88+k}, 0", kind="salu")]
    return o


def stamp_init():
    if not STAMP:
        return []
    o = []
    T = lambda s: o.append(raw(s, kind="salu"))
    T("s_load_dwordx2 s[64:65], s[0:1], 32")
    T("v_lshrrev_b32 v255, 6, v0")
    T("s_nop 1")
    T("v_readfirstlane_b32 s62, v255")
    T("s_waitcnt lgkmcnt(0)")
    T("s_and_b32 s65, s65, 0xffff")
    T("s_mov_b32 s67, 0x00020000")
    T("s_lshl_b32 s62, s62, 8")
    T("s_add_u32 s62, s62, s2")
    T(f"s_cmp_eq_u32 s62, {opt('swg', 0)}")
    T("s_cselect_b32 s66, 256, 0")
    T("s_mov_b32 s62, 0")
    for k in range(4):
        T(f"s_mov_b32 s{88+k}, 0")
    return o


def stamp_out(n):
    if not STAMP:
        return []
    o = [raw("s_waitcnt vmcnt(0)", kind="wait")] + stamp(force=True)
    if PROF:
        for k in range(2):
            o += [raw(f"v_mov_b32 v255, s{88+k}"), raw("buffer_store_dword v255, off, s[64:67], s62"), raw("s_add_u32 s62, s62, 4", kind="salu")]
    return o


def build_role():
    import io, contextlib
    RL = ROLE
    st = WaitState()
    G = 14
    rounds = []
    for r in range(3):
        buf = io.StringIO()
        with contextlib.redirect_stdout(buf):
            Sx = build_special(G)
            L1 = build_loop(G + 4)
            L2 = build_loop(G + 6)
        if r == 2:
            print(buf.getvalue(), end="")
            for nm, Rg in (("S", Sx), ("L", L1)):
                print(RL, nm, "loads:", " ".join(str(Rg.load(i)) for i in range(Rg.n)))
                print(RL, nm, "over24:", sum(max(0, Rg.load(i) - 24) for i in range(Rg.n)))
        sr = insert_waits(Sx.flatten(), st)
        l1 = insert_waits(L1.flatten(), st)
        l2 = insert_waits(L2.flatten(), st)
        rounds.append((sr, l1, l2))
        G += 8
    sr, l1, l2 = rounds[2]
    l1 = l2
    tx = lambda s: [x.text for x in s]
    if RL == "A":
        assert tx(rounds[2][1]) == tx(l2), "loop not steady"
    assert tx(rounds[1][0]) == tx(sr), "special not steady"
    assert tx(rounds[1][2]) == tx(l2)
    sp = {}
    mcount = 0
    for i, x in enumerate(sr):
        if x.kind == "mfma":
            if mcount in (64, 128, 192):
                j = i
                while sr[j - 1].kind == "wait":
                    j -= 1
                sp[mcount] = j
            mcount += 1
    s14, s15, s_b, s_c = sr[:sp[64]], sr[sp[64]:sp[128]], sr[sp[128]:sp[192]], sr[sp[192]:]
    vm = []
    if RL == "A":
        started = False
        last_m0 = None
        offs = [f"s_add_u32 s{r}," for r in (S_KOFF, S_KOFF2, S_VOFF, S_VOFF2)] + [f"s_and_b32 s{r}," for r in (S_KOFF, S_KOFF2, S_VOFF, S_VOFF2)]
        for x in s15:
            if x.kind == "salu" and x.text.startswith("s_add_u32 m0"):
                last_m0 = x
            if x.kind == "dma" and x.tag[0] == "K":
                started = True
            if started:
                if x.kind == "dma":
                    assert x.tag[0] in ("K", "V")
                    vm += [last_m0, nop(0), x]
                elif x.kind == "vmem_st":
                    vm.append(x)
                elif x.kind == "salu" and any(x.text.startswith(p) for p in offs):
                    vm.append(x)
    pro = prologue([uncountedcopy(x) for x in vm])
    pro_r = insert_waits(pro, WaitState())
    loop_ctl = [raw(f"s_add_u32 s{S_CNT}, s{S_CNT}, 1", kind="salu"),
                raw(f"s_cmp_lt_u32 s{S_CNT}, 6", kind="salu"),
                raw(f"s_cbranch_scc1 L_loop{RL}", kind="branch")]
    exit_ctl = [raw(f"s_add_u32 s{S_RHO}, s{S_RHO}, 1", kind="salu"),
                raw(f"s_cmp_eq_u32 s{S_RHO}, 4", kind="salu"),
                raw("s_cbranch_scc1 L_fin", kind="branch")]
    check_hazards(pro_r + s_b + exit_ctl + s_c + l1 + loop_ctl + l1 + loop_ctl + s14 + s15 + s_b + exit_ctl + s_c + l1, "main" + RL)
    names = [("l0" + RL, 0), ("l1" + RL, 1), ("s14" + RL, 0), ("s15" + RL, 1), ("s1" + RL, 1)]
    seq = [label(f"L_pro{RL}")] + pro_r + [raw(f"s_branch L_it0{RL}", kind="branch")]
    seq += [label(f"L_sa{RL}")] + dump2() + stamp() + s14 + stamp() + s15 + [label(f"L_it0{RL}")] + stamp() + s_b + exit_ctl + stamp() + s_c + stamp() + [label(f"L_loop{RL}")] + l1 + loop_ctl
    seq += [raw(f"s_branch L_sa{RL}", kind="branch")]
    rare = []
    for nm, par in names:
        r = rare_path(par, nm)
        check_hazards(r, "rare")
        rare += r
    return seq, rare


def main():
    global ROLE
    head = prologue_head()
    ROLE = "A"
    sa, ra = build_role()
    ROLE = "B"
    sb, rb = build_role()
    seq = head[:2] + stamp_init() + stamp(0, force=True) + head[2:]
    seq += [raw(f"s_cmp_ge_u32 s{S_W}, 2", kind="salu"), raw("s_cbranch_scc1 L_proB", kind="branch")]
    seq += sa + [label("L_fin")] + stamp_out(2) + [label("L_end"), raw("s_endpgm")] + sb + ra + rb + [raw("s_endpgm")]
    hdr = open(f"cdna_kernels/{NAME}.s.ref").read().split("\n")
    head = [l for l in hdr if l.startswith(";") and "@launch" not in l and "Override" not in l and "grid=ceil" not in l]
    txt = "\n".join(head) + "\n"
    txt += f"; @launch grid=(256,1,1) block=(256,1,1) lds={LDS_BYTES}\n"
    txt += f'.amdgcn_target "amdgcn-amd-amdhsa--gfx950"\n.text\n.globl {NAME}_kernel\n.p2align 8\n.type {NAME}_kernel,@function\n{NAME}_kernel:\n'
    txt += render(seq) + "\n"
    txt += f""".section .rodata,"a"
.p2align 6
.amdhsa_kernel {NAME}_kernel
  .amdhsa_next_free_vgpr 512
  .amdhsa_next_free_sgpr 96
  .amdhsa_accum_offset 256
  .amdhsa_group_segment_fixed_size 0
  .amdhsa_kernarg_size 48
  .amdhsa_user_sgpr_count 2
  .amdhsa_user_sgpr_kernarg_segment_ptr 1
  .amdhsa_system_sgpr_workgroup_id_x 1
.end_amdhsa_kernel
"""
    out = sys.argv[1] if len(sys.argv) > 1 else f"cdna_kernels/{NAME}.s"
    open(out, "w").write(txt)
    print("wrote", out, len(seq), "instructions", len(txt), "bytes")


def uncountedcopy(x):
    y = Ins(x.text, rd=x.rd, wr=x.wr, kind=x.kind, cost=x.cost, tag=x.tag)
    return y


main()
```

```python
import sys, math, struct
sys.path.insert(0, "work")
from fw import *

NAME = "standalone__mha_softmax__near_ridge"
ARGS = sys.argv[2:]
STAMP = "stamp" in ARGS
PROF = "prof" in ARGS
PROF2 = "prof2" in ARGS
PFS = 128


def opt(name, default):
    for a in ARGS:
        if a.startswith(name + "="):
            return int(a.split("=")[1])
    return default


OA = ("v", 0)
OB = ("a", 0)
QA = 128
QB = 192
SB = [128, 160]
P0 = 192
P1 = 208
FB = 216
TT = 232
V_KA, V_VA, V_DMA = 236, 237, 238
V_NMC = [239, 240]
V_L = [241, 242]
V_LT = [243, 244]
V_TMP = 245
V_QO = 246
V_T2 = 247
V_T3 = 248
V_QDMA = 249
V_QRD = 250
V_PF = 251
V_RINV = [252, 254]
V_QCUR = 253
V_TMP2 = 255

S_Q, S_K, S_V, S_O = 4, 8, 12, 16
S_XH = 3
S_W = 20
S_C = 21
S_THR = 22
S_KOFF = 23
S_VOFF = 24
S_KM0 = 25
S_VM0 = 26
S_CNT = 27
S_QS = 28
S_QSTEP = 29
S_NC = 30
S_QM = 31
S_KN = 48
S_VN = 50
S_KVN = 52
S_16K = 53
S_ON = 54
S_T = 57
S_QMB = 58
S_RHO = 59
S_KOFF2 = 68
S_VOFF2 = 69
S_PF = 72
S_PFOFF = 70
S_PFN = 76
S_WQ = 71
S_BQ = 78
S_BQM = 79
S_ROT = 80
S_ROT2 = 81
ROTM = opt('rot', 15)
PFMODE = opt('pf', 1)
QNT = ' nt' if opt('qnt', 0) else ''
STNT = ' nt' if opt('stnt', 0) else ''
KVNT = ' nt' if opt('kvnt', 0) else ''
ROLE = "A"
PD = opt("pd", 6)

KBLK, VBLK = 1040, 1088
KSLOT = [0, 16 * KBLK]
VSLOT = [32 * KBLK, 32 * KBLK + 16 * VBLK]
QBASE = 32 * KBLK + 32 * VBLK
QUNIT = 4224
QDUMMY = QBASE + 4 * 5 * QUNIT
LDS_BYTES = QDUMMY + 4224

SCALE = (256 ** -0.5) * math.log2(math.e)
HEAD = opt("head", 19)
HEAD0 = opt("head0", 12)
UNITS = [(0, 0), (1, 0), (0, 1), (1, 1), (0, 2)]
LATE = [((1, 2), 0), ((0, 3), 1), ((1, 3), 2)]


def f32bits(x):
    return struct.unpack("<I", struct.pack("<f", x))[0]


def Oacc(qb, t):
    k, lo = (OA, OB)[qb]
    return (k, lo + 16 * t)


def Qfrag(qb, ks):
    return ("a", (QA, QB)[qb] + 4 * ks)


def Sacc(buf, qb):
    return ("v", SB[buf] + 16 * qb)


def Pfrag(par, qb, s):
    if s == 0:
        return ("v", P0 + par * 8 + qb * 4)
    return ("v", P1 + qb * 4)


def S(text, rd=(), wr=()):
    return salu(text, rd=rd, wr=wr)


def k_read(f, slot):
    return [ds_read("ds_read_b128", "v", FB + 4 * (f % 4), 4, V_KA, KSLOT[slot] + 32 * f)]


def v_read(f, slot):
    t, s = f >> 1, f & 1
    b = FB + 4 * (f % 4)
    return [ds_read("ds_read_b64_tr_b16", "v", b + 2 * u, 2, V_VA, VSLOT[slot] + (2 * s + u) * 4 * VBLK + 64 * t) for u in (0, 1)]


def q_read(qb, ks, space):
    k, lo = Qfrag(qb, ks)
    return ds_read("ds_read_b128", k, lo, 4, V_QRD, space * QUNIT + 32 * (ks & 3))


def dma_unit(kind, j, four=False):
    slot = j & 1
    if kind == "K":
        base, blk, sl, srd, soff, soff2 = S_KM0, KBLK, KSLOT, S_K, S_KOFF, S_KOFF2
    else:
        base, blk, sl, srd, soff, soff2 = S_VM0, VBLK, VSLOT, S_V, S_VOFF, S_VOFF2
    rel = sl[slot] - sl[0]
    groups = []
    for half in ((0,) if four else (0, 1)):
        so = (soff, soff2)[half]
        for q in range(4):
            g = [S(f"s_add_u32 m0, s{base}, {rel + half * 4 * blk + (blk - 512) * q}", rd=[base], wr=["m0"]),
                 nop(0),
                 dma(V_DMA, srd, f"s{so}", 512 * q, tag=(kind, j), flags=KVNT)]
            if q == 3:
                g.append(S(f"s_add_u32 s{so}, s{so}, 16384", rd=[so], wr=[so]))
                g.append(S(f"s_and_b32 s{so}, s{so}, 0x3ffff", rd=[so], wr=[so]))
            groups.append(g)
    return groups


def q_dma_static(qb, lam, space, tag):
    groups = []
    for io in range(4):
        groups.append([S(f"s_add_u32 m0, s{S_QMB}, {space * QUNIT + 1056 * io}", rd=[S_QMB], wr=["m0"]),
                       S(f"s_add_u32 s40, s{S_WQ}, {qb * 16384 + lam * 128 + io * 4096}", wr=[40]),
                       dma(V_QDMA, S_Q, "s40", 0, tag=tag, flags=QNT)])
    return groups


def softmax_steps(buf, par):
    def elem(e):
        s = e >> 4
        qb = (e >> 3) & 1
        r = 8 * s + (e & 7)
        return s, qb, r
    steps = []
    for k in range(34):
        st = []
        if k < 32:
            s, qb, r = elem(k)
            st.append(valu("v_fma_f32", TT + k % 4, SB[buf] + 16 * qb + r, f"s{S_C}", V_NMC[qb]))
        if 0 <= k - 1 < 32:
            e = k - 1
            st.append(trans("v_exp_f32", TT + e % 4, TT + e % 4))
        if 0 <= k - 2 < 32:
            e = k - 2
            s, qb, r = elem(e)
            if r == 1:
                st.append(valu("v_add_f32", V_LT[qb], TT + (e - 1) % 4, TT + e % 4))
            elif r > 1:
                st.append(valu("v_add_f32", V_LT[qb], V_LT[qb], TT + e % 4))
            if r & 1:
                pk, pl = Pfrag(par, qb, s)
                st.append(valu("v_cvt_pk_bf16_f32", pl + ((r & 7) >> 1), TT + (e - 1) % 4, TT + e % 4))
        steps.append(st)
    return steps


def swap32(a, b):
    return Ins(f"v_permlane32_swap_b32 v{a}, v{b}", rd=[("v", a), ("v", b)], wr=[("v", a), ("v", b)], kind="valu")


def row_max2(buf):
    dst = [V_T2, V_T3]
    tmp = [V_TMP, V_TMP2]
    groups = []
    b = [SB[buf], SB[buf] + 16]
    groups.append([valu("v_max3_f32", dst[q], b[q], b[q] + 1, b[q] + 2) for q in (0, 1)])
    for i in range(3, 15, 2):
        groups.append([valu("v_max3_f32", dst[q], dst[q], b[q] + i, b[q] + i + 1) for q in (0, 1)])
    groups.append([valu("v_max_f32", dst[q], dst[q], b[q] + 15) for q in (0, 1)])
    g = [valu("v_mov_b32", tmp[q], dst[q]) for q in (0, 1)]
    g += [nop(1)]
    g += [swap32(tmp[q], dst[q]) for q in (0, 1)]
    g += [nop(0)]
    g += [valu("v_max_f32", dst[q], dst[q], tmp[q]) for q in (0, 1)]
    g += [valu("v_mul_f32", V_NMC[q], f"s{S_NC}", dst[q]) for q in (0, 1)]
    groups.append(g)
    return groups


def rinv_group():
    tmp = [V_TMP, V_TMP2]
    g = [valu("v_mov_b32", tmp[q], V_L[q]) for q in (0, 1)]
    g += [nop(1)]
    g += [swap32(tmp[q], V_L[q]) for q in (0, 1)]
    g += [nop(0)]
    g += [valu("v_add_f32", V_L[q], V_L[q], tmp[q]) for q in (0, 1)]
    g += [trans("v_rcp_f32", V_RINV[q], V_L[q]) for q in (0, 1)]
    return g


def row_max(buf, qb, dst, tmp):
    b = SB[buf] + 16 * qb
    out = [valu("v_max3_f32", dst, b, b + 1, b + 2)]
    for i in range(3, 15, 2):
        out.append(valu("v_max3_f32", dst, dst, b + i, b + i + 1))
    out.append(valu("v_max_f32", dst, dst, b + 15))
    out.append(valu("v_mov_b32", tmp, dst))
    out.append(nop(1))
    out.append(swap32(tmp, dst))
    out.append(nop(0))
    out.append(valu("v_max_f32", dst, dst, tmp))
    return out


def flat(steps):
    out = []
    for st in steps:
        out += st
        out.append(nop(0))
    return out


def rare_path(par, name):
    out = [label(f"L_rare{name}")]
    out.append(nop(7))
    for qb in (0, 1):
        out += row_max(par, qb, V_T2, V_TMP)
        out.append(valu("v_mul_f32", V_T2, f"s{S_NC}", V_T2))
        out.append(valu("v_min_f32", V_T2, V_T2, V_NMC[qb]))
        out.append(valu("v_sub_f32", V_T3, V_T2, V_NMC[qb]))
        out.append(trans("v_exp_f32", V_T3, V_T3))
        out.append(valu("v_mov_b32", V_NMC[qb], V_T2))
        out.append(valu("v_mul_f32", V_L[qb], V_L[qb], V_T3))
        for r in range(128):
            if qb == 0:
                out.append(valu("v_mul_f32", r, r, V_T3))
            else:
                out.append(valu("v_accvgpr_read_b32", V_TMP, ("a", r)))
                out.append(valu("v_mul_f32", V_TMP, V_TMP, V_T3))
                out.append(valu("v_accvgpr_write_b32", ("a", r), V_TMP))
    out += flat(softmax_steps(par, par))
    out.append(nop(3))
    out.append(raw(f"s_branch L_back{name}", kind="branch"))
    return out


def pk_mul(r, qb):
    sel = "op_sel_hi:[1,0]"
    p = V_RINV[qb]
    return Ins(f"v_pk_mul_f32 v[{r}:{r+1}], v[{r}:{r+1}], v[{p}:{p+1}] {sel}",
               rd=[("v", r), ("v", r + 1), ("v", V_RINV[qb])], wr=[("v", r), ("v", r + 1)], kind="valu")


def epi_items(t):
    b = 16 * t
    ga = []
    for gp in (0, 1):
        o = b + 8 * gp
        ga.append([pk_mul(o + 2 * j, 0) for j in range(4)])
        ga.append([valu("v_cvt_pk_bf16_f32", o + e, o + 2 * e, o + 2 * e + 1) for e in range(4)])
        ga.append([bstore("v", o, 4, V_QO, S_O, "0", 64 * t + 32 * gp, tag="ST", flags=STNT)])
    gb = []
    tmp = [b + 4, b + 5, b + 6, b + 7, b + 12, b + 13, b + 14, b + 15]
    gb.append([valu("v_accvgpr_read_b32", tmp[e], ("a", b + e)) for e in range(4)])
    gb.append([valu("v_accvgpr_read_b32", tmp[e], ("a", b + e)) for e in range(4, 8)])
    gb.append([pk_mul(tmp[2 * j], 1) for j in range(4)])
    gb.append([valu("v_cvt_pk_bf16_f32", b + 4 + e, tmp[2 * e], tmp[2 * e + 1]) for e in range(4)])
    gb.append([bstore("v", b + 4, 4, V_QO, S_O, f"s{S_16K}", 64 * t, tag="ST", flags=STNT)])
    tmp = [b + 8 + e for e in range(8)]
    gb.append([valu("v_accvgpr_read_b32", tmp[e], ("a", b + 8 + e)) for e in range(4)])
    gb.append([valu("v_accvgpr_read_b32", tmp[e], ("a", b + 8 + e)) for e in range(4, 8)])
    gb.append([pk_mul(tmp[2 * j], 1) for j in range(4)])
    gb.append([valu("v_cvt_pk_bf16_f32", b + 8 + e, tmp[2 * e], tmp[2 * e + 1]) for e in range(4)])
    gb.append([bstore("v", b + 8, 4, V_QO, S_O, f"s{S_16K}", 64 * t + 32, tag="ST", flags=STNT)])
    return ga, gb


def tile_params():
    o = []
    A = lambda t: o.append([S(t)])
    A(f"s_mul_hi_u32 s42, s{S_T}, 0x55555556")
    A("s_mul_i32 s43, s42, 3")
    A(f"s_sub_u32 s43, s{S_T}, s43")
    A(f"s_add_u32 s42, s42, s{S_XH}")
    A("s_mul_i32 s44, s42, 376832")
    A("s_lshl_b32 s43, s43, 17")
    A("s_add_u32 s44, s44, s43")
    A("s_lshl_b32 s45, s42, 18")
    A(f"s_lshr_b32 s{S_ROT}, s42, 4")
    A(f"s_xor_b32 s{S_ROT}, s{S_ROT}, s42")
    A(f"s_and_b32 s{S_ROT}, s{S_ROT}, {ROTM}")
    A(f"s_lshl_b32 s{S_ROT}, s{S_ROT}, 14")
    A(f"s_add_u32 s{S_ROT2}, s{S_ROT}, 0x1000")
    A("s_sub_u32 s43, 376832, s43")
    o.append([S(f"s_cmp_lt_u32 s{S_T}, 96"), S("s_cselect_b32 s43, s43, 0"), S(f"s_cselect_b32 s{S_KVN}, 262144, 0")])
    o.append([S(f"s_add_u32 s{S_Q}, s32, s44"), S(f"s_addc_u32 s{S_Q+1}, s33, 0")])
    A(f"s_and_b32 s{S_Q+1}, s{S_Q+1}, 0xffff")
    A(f"s_mov_b32 s{S_Q+2}, s43" if not opt('noq', 0) else f"s_mov_b32 s{S_Q+2}, 0")
    o.append([S(f"s_add_u32 s{S_ON}, s38, s44"), S(f"s_addc_u32 s{S_ON+1}, s39, 0")])
    A(f"s_and_b32 s{S_ON+1}, s{S_ON+1}, 0xffff")
    A(f"s_mov_b32 s{S_ON+2}, s43" if not opt('nost', 0) else f"s_mov_b32 s{S_ON+2}, 0")
    o.append([S(f"s_add_u32 s{S_KN}, s34, s45"), S(f"s_addc_u32 s{S_KN+1}, s35, 0")])
    A(f"s_and_b32 s{S_KN+1}, s{S_KN+1}, 0xffff")
    o.append([S(f"s_add_u32 s{S_VN}, s36, s45"), S(f"s_addc_u32 s{S_VN+1}, s37, 0")])
    A(f"s_and_b32 s{S_VN+1}, s{S_VN+1}, 0xffff")
    return o


def wrap2(g, acc):
    if not PROF2:
        return g
    T = lambda t: raw(t, kind="salu", cost=0)
    out = []
    for x in g:
        if x.kind == "dma":
            out += [T("s_memtime s[82:83]"), raw("s_waitcnt lgkmcnt(0)", kind="wait", cost=0), x,
                    T("s_memtime s[84:85]"), raw("s_waitcnt lgkmcnt(0)", kind="wait", cost=0),
                    T("s_sub_u32 s82, s84, s82"), T(f"s_add_u32 s{acc}, s{acc}, s82")]
        else:
            out.append(x)
    return out


class Region:
    def __init__(self, n):
        self.n = n
        self.mf = [None] * n
        self.g = [[] for _ in range(n)]

    def add(self, gap, items):
        self.g[gap] += [x for x in items if x is not None]

    def load(self, gap):
        return sum(x.cost for x in self.g[gap])

    def place(self, seqs, name=""):
        base = [self.load(i) for i in range(self.n)]

        def attempt(level):
            ld = list(base)
            res = []
            cur = 0
            for grp, rel, dl in seqs:
                c = sum(x.cost for x in grp)
                g = max(cur, rel)
                while g <= dl and ld[g] + c > level and not (ld[g] == 0):
                    g += 1
                if g > dl:
                    return None
                ld[g] += c
                res.append(g)
                cur = g
            return res
        level = 8
        while True:
            r = attempt(level)
            if r is not None:
                break
            level += 2
            assert level < 400, "cannot place " + name
        for (grp, rel, dl), g in zip(seqs, r):
            self.g[g] += grp
        if name:
            print(f"  place {name}: level {level}")

    def flatten(self):
        out = []
        for i in range(self.n):
            if self.mf[i] is not None:
                out.append(self.mf[i])
            out += self.g[i]
        return out


def base_iteration(R_, b, role, G, name, extra59=()):
    par = G & 1
    np_ = par ^ 1
    first_of_tile = (role == 0)
    for ks in range(16):
        for qb in (0, 1):
            F = ("v", FB + 4 * (ks % 4))
            D = Sacc(np_, qb)
            R_.mf[b + 2 * ks + qb] = mfma32(D, F, Qfrag(qb, ks), None if ks == 0 else D)
    for f in range(16):
        t, s = f >> 1, f & 1
        for qb in (0, 1):
            F = ("v", FB + 4 * (f % 4))
            D = Oacc(qb, t)
            C = None if (first_of_tile and s == 0) else D
            R_.mf[b + 32 + 2 * f + qb] = mfma32(D, F, Pfrag(par, qb, s), C)
    extra59 = list(extra59)
    for f in range(4, 16):
        R_.add(b + 2 * f - 7, k_read(f, np_))
    A_ = ROLE == "A"

    def prof(w, acc):
        if not PROF:
            return list(w) + [wait_lgkm0(), barrier()]
        T = lambda t: raw(t, kind="salu", cost=0)
        return [wait_lgkm0(), T("s_memtime s[82:83]"), wait_lgkm0()] + list(w) + [T("s_memtime s[84:85]"), raw("s_waitcnt lgkmcnt(0)", kind="wait", cost=0), barrier(),
                T("s_memtime s[86:87]"), raw("s_waitcnt lgkmcnt(0)", kind="wait", cost=0),
                T("s_sub_u32 s82, s82, s92"), T("s_mov_b32 s92, s86"),
                T(f"s_add_u32 s{88 if acc == 88 else 89}, s{88 if acc == 88 else 89}, s82")]
    R_.add(b + 27, prof([wait_vm(("V", G))] if A_ else [], 88) + v_read(0, par) + v_read(1, par))
    R_.add(b + 29, v_read(2, par))
    R_.add(b + 31, v_read(3, par))
    for f in range(4, 16):
        R_.add(b + 32 + 2 * f - 7, v_read(f, par))
    R_.add(b + 59, prof([wait_vm(("K", G + 2))] if A_ else extra59, 90) + k_read(0, par) + k_read(1, par))
    R_.add(b + 61, k_read(2, par))
    R_.add(b + 63, k_read(3, par))
    if A_:
        grp = dma_unit("K", G + 3)
        for q, g in enumerate(grp):
            R_.add(b + KD[q], wrap2(g, 88))
        grp = dma_unit("V", G + 2)
        for q in range(4):
            R_.add(b + VD[q], wrap2(grp[q], 89))
        grp = dma_unit("V", G + 1)
        for q in range(4):
            R_.add(b + VD2[q], wrap2(grp[4 + q], 89))
    elif PFMODE:
        for q in range(2):
            g = [S(f"s_mov_b32 m0, {QDUMMY}", wr=["m0"]),
                 S(f"s_add_u32 s41, s{S_PFOFF}, {8192 * q}"),
                 Ins(f"buffer_load_dword v{V_DMA}, s[{S_PF}:{S_PF+3}], s41 offen lds", rd=[("v", V_DMA), ("s", "m0")], kind="dma", cost=16, tag=("PF", G))]
            if q == 1:
                g.append(S(f"s_add_u32 s{S_PFOFF}, s{S_PFOFF}, 16384"))
                g.append(S(f"s_and_b32 s{S_PFOFF}, s{S_PFOFF}, 0x3ffff"))
            R_.add(b + PFD[q], wrap2(g, 89))


KD = [29, 32, 35, 38, 41, 44, 47, 50]
VD = [60, 61, 62, 63]
VD2 = [0, 2, 4, 6]
QD = [34, 38, 42, 46]
PFD = [12, 20]


def softmax_part(R_, b, role, G, name, head_prev, head_next, next_true_max=False):
    name = name + ROLE
    par = G & 1
    np_ = par ^ 1
    st = softmax_steps(par, par)
    R_.place([(s_, b + 0, b + 28) for s_ in st[head_prev:]], name + ".tail")
    if role == 0:
        R_.add(b + 30, [valu("v_mov_b32", V_L[0], V_LT[0]), valu("v_mov_b32", V_L[1], V_LT[1])])
    else:
        R_.add(b + 29, [valu("v_add_f32", V_TMP, V_LT[0], V_LT[1])])
        R_.add(b + 30, [valu("v_cmp_nge_f32", "vcc", f"s{S_THR}", V_TMP),
                        raw(f"s_cbranch_vccnz L_rare{name}", kind="branch"),
                        label(f"L_back{name}"),
                        valu("v_add_f32", V_L[0], V_L[0], V_LT[0]),
                        valu("v_add_f32", V_L[1], V_L[1], V_LT[1])])
    st = softmax_steps(np_, np_)
    seq = []
    lo = b + 35
    if next_true_max:
        seq.append((rinv_group(), b + 32, b + 34))
        for g in row_max2(np_):
            seq.append((g, b + 34, b + 63))
    for s_ in st[:head_next]:
        seq.append((s_, lo, b + 63))
    R_.place(seq, name + ".head")


def build_loop(G):
    R_ = Region(128)
    c = S_CNT
    x59 = []
    if ROLE == "B":
        x59 = [S(f"s_cmp_lg_u32 s{c}, 5"), raw("s_cbranch_scc1 L_skipq", kind="branch"), wait_vm(("Q", G - 1)), label("L_skipq")]
    base_iteration(R_, 0, 2, G, "l0")
    base_iteration(R_, 64, 3, G + 1, "l1", extra59=x59)
    if ROLE == "B":
        R_.add(1, [S(f"s_cmp_eq_u32 s{c}, 4"),
                   S(f"s_cselect_b32 s{S_PF}, s{S_PFN}, s{S_PF}"),
                   S(f"s_cselect_b32 s{S_PF+1}, s{S_PFN+1}, s{S_PF+1}"),
                   S(f"s_cselect_b32 s{S_PF+2}, s{S_KVN}, s{S_PF+2}"),
                   S(f"s_cselect_b32 s{S_PFOFF}, s{S_ROT}, s{S_PFOFF}")])
        pre = [S(f"s_and_b32 s42, s{c}, 1"), S("s_lshl_b32 s42, s42, 14"), S(f"s_lshr_b32 s43, s{c}, 1"),
               S("s_lshl_b32 s43, s43, 7"), S("s_or_b32 s44, s42, s43"),
               S(f"s_mul_i32 s45, s{c}, {QUNIT}"), S(f"s_add_u32 s45, s45, s{S_BQM}")]
        sel = [S(f"s_cmp_eq_u32 s{c}, 5"), S("s_cselect_b32 s44, 256, s44"),
               S(f"s_cselect_b32 s{S_QSTEP}, s{S_16K}, 0x1000"),
               S(f"s_cselect_b32 s46, 0, {5 * QUNIT}"),
               S(f"s_cselect_b32 s45, {QDUMMY}, s45"),
               S("s_cselect_b64 vcc, -1, 0"),
               valu("v_cndmask_b32", V_QCUR, V_QDMA, V_PF, "vcc")]
        for k, x in enumerate(pre):
            R_.add(3 + 2 * k, [x])
        R_.add(18, sel)
        for it in (0, 1):
            b = 64 * it
            if it == 0:
                R_.add(b + 22, [S(f"s_add_u32 s{S_QS}, s44, s{S_BQ}"), S(f"s_mov_b32 s{S_QM}, s45")])
            else:
                R_.add(b + 22, [S(f"s_add_u32 s{S_QS}, s44, s{S_BQ}"), S(f"s_add_u32 s{S_QS}, s{S_QS}, 32768"), S(f"s_add_u32 s{S_QM}, s45, s46")])
            for io in range(4):
                R_.add(b + QD[io], wrap2([S(f"s_add_u32 m0, s{S_QM}, {1056 * io}", rd=[S_QM], wr=["m0"]), nop(0),
                                    dma(V_QCUR, S_Q, f"s{S_QS}", 0, tag=("Q", G + it), flags=QNT),
                                    S(f"s_add_u32 s{S_QS}, s{S_QS}, s{S_QSTEP}")], 88))
    else:
        R_.add(64 + 4, [S(f"s_cmp_eq_u32 s{c}, 5"),
                        S(f"s_cselect_b32 s{S_K}, s{S_KN}, s{S_K}"),
                        S(f"s_cselect_b32 s{S_K+1}, s{S_KN+1}, s{S_K+1}"),
                        S(f"s_cselect_b32 s{S_K+2}, s{S_KVN}, s{S_K+2}"),
                        S(f"s_cselect_b32 s{S_KOFF}, s{S_ROT}, s{S_KOFF}"),
                        S(f"s_cselect_b32 s{S_KOFF2}, s{S_ROT2}, s{S_KOFF2}")])
    softmax_part(R_, 0, 2, G, "l0", HEAD, HEAD)
    softmax_part(R_, 64, 3, G + 1, "l1", HEAD, HEAD)
    return R_


def build_special(G):
    R_ = Region(256)
    base_iteration(R_, 0, 14, G, "s14")
    base_iteration(R_, 64, 15, G + 1, "s15")
    base_iteration(R_, 128, 0, G + 2, "s0")
    base_iteration(R_, 192, 1, G + 3, "s1")
    if ROLE == "A":
        R_.add(50, [S(f"s_mov_b32 s{S_V}, s{S_VN}"), S(f"s_mov_b32 s{S_V+1}, s{S_VN+1}"),
                    S(f"s_mov_b32 s{S_V+2}, s{S_KVN}"), S(f"s_mov_b32 s{S_VOFF}, s{S_ROT}"), S(f"s_mov_b32 s{S_VOFF2}, s{S_ROT2}")])
    for u, (qb, lam) in enumerate(UNITS):
        for ksl in range(4):
            ks = 4 * lam + ksl
            R_.add(2 * ks + qb + 2, [q_read(qb, ks, u)])
    def unit_regs(qb, lam):
        r = []
        for ksl in range(4):
            k, lo = Qfrag(qb, 4 * lam + ksl)
            r += R(k, lo, 4)
        return r
    late_start = [11, 12, 19]
    for idx, ((qb, lam), space) in enumerate(LATE):
        oq, ol = UNITS[space]
        grp = q_dma_static(qb, lam, space, ("QL", G, idx))
        grp[0] = [touch(unit_regs(oq, ol))] + grp[0]
        g0 = late_start[idx]
        for io in range(4):
            R_.add(g0 + 2 * io, grp[io])
    rd_at = [64 + LR0, 64 + LR1, 64 + LR2]
    for idx, ((qb, lam), space) in enumerate(LATE):
        R_.add(rd_at[idx], [wait_vm(("QL", G, idx))] + [q_read(qb, 4 * lam + ksl, space) for ksl in range(4)])
    softmax_part(R_, 0, 14, G, "s14", HEAD, HEAD)
    softmax_part(R_, 64, 15, G + 1, "s15", HEAD, HEAD0, next_true_max=True)
    softmax_part(R_, 128, 0, G + 2, "s0", HEAD0, HEAD)
    softmax_part(R_, 192, 1, G + 3, "s1", HEAD, HEAD)
    seq = []
    for t in range(8):
        ga, gb = epi_items(t)
        rel_a = 64 + 32 + 4 * t + 2 + EREL
        rel_b = rel_a + 1
        dl = 128 + 32 + 4 * t - 1
        seq += [(g, rel_a, dl) for g in ga] + [(g, rel_b, dl) for g in gb]
    R_.place(seq, "epilogue")
    seq = [([S(f"s_mov_b32 s{S_O}, s{S_ON}"), S(f"s_mov_b32 s{S_O+1}, s{S_ON+1}"), S(f"s_mov_b32 s{S_O+2}, s{S_ON+2}")], 192 + 2, 250)]
    seq.append(([S(f"s_add_u32 s{S_T}, s{S_T}, 32")], 192 + 2, 250))
    seq += [(g, 192 + 2, 250) for g in tile_params()]
    seq.append(([S(f"s_mov_b32 s{S_CNT}, 0")], 192 + 2, 250))
    if ROLE == "B":
        seq.append(([S(f"s_cmp_eq_u32 s{S_W}, 2"), S(f"s_cselect_b32 s{S_PFN}, s{S_KN}, s{S_VN}"),
                     S(f"s_cselect_b32 s{S_PFN+1}, s{S_KN+1}, s{S_VN+1}")], 192 + 2, 250))
    R_.place(seq, "params")
    return R_


LR0 = opt("lr0", 10)
LR1 = opt("lr1", 16)
LR2 = opt("lr2", 18)
EREL = opt("erel", 4)


def prologue_head():
    o = []
    A = o.append
    T = lambda s: A(raw(s, kind="salu"))
    T("s_cmp_ge_u32 s2, 256")
    A(raw("s_cbranch_scc1 L_end", kind="branch"))
    T("s_load_dwordx4 s[32:35], s[0:1], 0")
    T("s_load_dwordx4 s[36:39], s[0:1], 16")
    T(f"s_and_b32 s{S_XH}, s2, 7")
    T(f"s_lshl_b32 s{S_XH}, s{S_XH}, 5")
    T(f"s_lshr_b32 s{S_T}, s2, 3")
    T(f"s_mov_b32 s{S_16K}, 16384")
    A(valu("v_lshrrev_b32", V_TMP, "6", 0))
    A(valu("v_and_b32", V_T2, "63", 0))
    A(valu("v_readfirstlane_b32", f"s{S_W}", V_TMP))
    A(raw("s_waitcnt lgkmcnt(0)", kind="wait"))
    return o


def prologue(it15_vm):
    o = []
    A = o.append
    T = lambda s: A(raw(s, kind="salu"))
    for g in tile_params():
        o += g
    T(f"s_mov_b32 s{S_Q+3}, 0x00020000")
    T(f"s_mov_b32 s{S_K}, s{S_KN}")
    T(f"s_mov_b32 s{S_K+1}, s{S_KN+1}")
    T(f"s_mov_b32 s{S_K+2}, 262144")
    T(f"s_mov_b32 s{S_K+3}, 0x00020000")
    T(f"s_mov_b32 s{S_V}, s{S_VN}")
    T(f"s_mov_b32 s{S_V+1}, s{S_VN+1}")
    T(f"s_mov_b32 s{S_V+2}, 262144")
    T(f"s_mov_b32 s{S_V+3}, 0x00020000")
    T(f"s_mov_b32 s{S_O}, s{S_ON}")
    T(f"s_mov_b32 s{S_O+1}, s{S_ON+1}")
    T(f"s_mov_b32 s{S_O+2}, 0")
    T(f"s_mov_b32 s{S_O+3}, 0x00020000")
    T(f"s_mov_b32 s{S_C}, {f32bits(SCALE):#x}")
    T(f"s_mov_b32 s{S_NC}, {f32bits(-SCALE):#x}")
    T(f"s_mov_b32 s{S_THR}, {f32bits(4096.0):#x}")
    T(f"s_mov_b32 s{S_KOFF}, s{S_ROT}")
    T(f"s_mov_b32 s{S_VOFF}, s{S_ROT}")
    T(f"s_mov_b32 s{S_RHO}, 0")
    T(f"s_mul_i32 s{S_KM0}, s{S_W}, {4*KBLK}")
    T(f"s_add_u32 s{S_KM0}, s{S_KM0}, {KSLOT[0]}")
    T(f"s_mul_i32 s{S_VM0}, s{S_W}, {4*VBLK}")
    T(f"s_add_u32 s{S_VM0}, s{S_VM0}, {VSLOT[0]}")
    T(f"s_mul_i32 s{S_QMB}, s{S_W}, {5*QUNIT}")
    T(f"s_add_u32 s{S_QMB}, s{S_QMB}, {QBASE}")
    T(f"s_lshl_b32 s{S_WQ}, s{S_W}, 15")
    L = V_T2
    A(valu("v_lshrrev_b32", V_TMP, "5", L))
    A(valu("v_lshlrev_b32", V_DMA, "11", V_TMP))
    A(valu("v_and_b32", V_T3, "31", L))
    A(valu("v_lshl_add_u32", V_DMA, V_T3, "4", V_DMA))
    T(f"s_lshl_b32 s46, s{S_W}, 12")
    A(valu("v_add_u32", V_DMA, "s46", V_DMA))
    A(valu("v_lshrrev_b32", TT, "3", L))
    A(valu("v_bfe_u32", TT + 1, L, "4", "1"))
    A(valu("v_and_b32", TT + 2, "7", L))
    A(valu("v_xor_b32", TT + 2, TT + 2, TT + 1))
    A(valu("v_lshlrev_b32", V_QDMA, "9", TT))
    A(valu("v_lshl_add_u32", V_QDMA, TT + 2, "4", V_QDMA))

    def issue(kind, j):
        r = []
        for g in dma_unit(kind, j, four=True):
            r += g
        return r
    o += issue("K", 0)
    for u, (qb, lam) in enumerate(UNITS):
        for g in q_dma_static(qb, lam, u, ("Q0", u)):
            o += g
    A(valu("v_lshlrev_b32", V_QO, "9", V_T3))
    A(valu("v_lshl_add_u32", V_PF, V_TMP, "7", V_QO))
    A(valu("v_add_u32", V_QO, f"s{S_WQ}", V_QO))
    A(valu("v_lshl_add_u32", V_QO, V_TMP, "4", V_QO))
    for (qb, lam), _ in LATE:
        for ksl in range(4):
            ks = 4 * lam + ksl
            k, lo = Qfrag(qb, ks)
            A(bload(k, lo, 4, V_QO, S_Q, f"s{S_16K}" if qb else "0", 32 * ks, tag="QD"))
    o += issue("K", 1)
    o += issue("V", 0)
    A(valu("v_and_b32", V_KA, "3", V_T3))
    A(valu("v_lshrrev_b32", TT, "3", V_T3))
    A(valu("v_lshl_add_u32", V_KA, TT, "2", V_KA))
    T(f"s_movk_i32 s46, {KBLK}")
    A(valu("v_mul_lo_u32", V_KA, V_KA, "s46"))
    A(valu("v_bfe_u32", TT, V_T3, "2", "1"))
    A(valu("v_lshl_add_u32", V_KA, TT, "9", V_KA))
    A(valu("v_lshl_add_u32", V_KA, V_TMP, "4", V_KA))
    A(valu("v_bfe_u32", V_VA, L, "2", "2"))
    T(f"s_movk_i32 s46, {VBLK}")
    A(valu("v_mul_lo_u32", V_VA, V_VA, "s46"))
    A(valu("v_lshl_add_u32", V_VA, V_TMP, "9", V_VA))
    A(valu("v_bfe_u32", TT, L, "4", "1"))
    A(valu("v_lshl_add_u32", V_VA, TT, "5", V_VA))
    A(valu("v_and_b32", TT, "1", L))
    A(valu("v_lshl_add_u32", V_VA, TT, "4", V_VA))
    A(valu("v_bfe_u32", TT, L, "1", "1"))
    A(valu("v_lshl_add_u32", V_VA, TT, "3", V_VA))
    A(valu("v_lshrrev_b32", TT, "3", V_T3))
    T("s_movk_i32 s46, 1056")
    A(valu("v_mul_lo_u32", V_QRD, TT, "s46"))
    A(valu("v_and_b32", TT, "7", V_T3))
    A(valu("v_lshl_add_u32", V_QRD, TT, "7", V_QRD))
    A(valu("v_bfe_u32", TT, V_T3, "1", "1"))
    A(valu("v_xor_b32", TT, TT, V_TMP))
    A(valu("v_lshl_add_u32", V_QRD, TT, "4", V_QRD))
    A(valu("v_add_u32", V_QRD, f"s{S_QMB}", V_QRD))
    A(valu("v_mov_b32", V_RINV[0], "0"))
    A(valu("v_mov_b32", V_RINV[1], "0"))
    if ROLE == "A":
        T(f"s_lshl_b32 s46, s{S_W}, 12")
        A(valu("v_add_u32", V_DMA, "s46", V_DMA))
        T(f"s_mul_i32 s{S_KM0}, s{S_W}, {8*KBLK}")
        T(f"s_add_u32 s{S_KM0}, s{S_KM0}, {KSLOT[0]}")
        T(f"s_mul_i32 s{S_VM0}, s{S_W}, {8*VBLK}")
        T(f"s_add_u32 s{S_VM0}, s{S_VM0}, {VSLOT[0]}")
        T(f"s_add_u32 s{S_KOFF2}, s{S_KOFF}, 4096")
        T(f"s_add_u32 s{S_VOFF2}, s{S_VOFF}, 4096")
    else:
        A(valu("v_lshlrev_b32", V_DMA, "7", L))
        T(f"s_cmp_eq_u32 s{S_W}, 2")
        T(f"s_cselect_b32 s{S_PF}, s{S_K}, s{S_V}")
        T(f"s_cselect_b32 s{S_PF+1}, s{S_K+1}, s{S_V+1}")
        T(f"s_mov_b32 s{S_PF+2}, 262144")
        T(f"s_mov_b32 s{S_PF+3}, 0x00020000")
        T(f"s_sub_u32 s46, s{S_W}, 2")
        T(f"s_lshl_b32 s{S_BQ}, s46, 16")
        T(f"s_mul_i32 s{S_BQM}, s46, {10 * QUNIT}")
        T(f"s_add_u32 s{S_BQM}, s{S_BQM}, {QBASE}")
        T(f"s_add_u32 s{S_PFOFF}, s{S_ROT}, {2 * 16384}")
        T(f"s_and_b32 s{S_PFOFF}, s{S_PFOFF}, 0x3ffff")
        T(f"s_mov_b32 m0, {QDUMMY}")
        for k in range(2 * (PD - 2) if PFMODE else 0):
            A(Ins(f"buffer_load_dword v{V_DMA}, s[{S_PF}:{S_PF+3}], s{S_PFOFF} offen lds", rd=[("v", V_DMA), ("s", "m0")], kind="dma", cost=16, tag="PF0"))
            T(f"s_add_u32 s{S_PFOFF}, s{S_PFOFF}, 8192")
            T(f"s_and_b32 s{S_PFOFF}, s{S_PFOFF}, 0x3ffff")
    A(wait_vm(("K", 0)))
    A(barrier())
    for f in range(4):
        o += k_read(f, 0)
    for ks in range(16):
        lam = ks >> 2
        if (ks & 3) == 0:
            for u, (qb, l2) in enumerate(UNITS):
                if l2 == lam:
                    A(wait_vm(("Q0", u)))
                    for ksl in range(4):
                        A(q_read(qb, 4 * lam + ksl, u))
        for qb in (0, 1):
            F = ("v", FB + 4 * (ks % 4))
            D = Sacc(0, qb)
            A(mfma32(D, F, Qfrag(qb, ks), None if ks == 0 else D))
            g = 2 * ks + qb
            if g >= 1 and (g + 7) % 2 == 0 and 4 <= (g + 7) // 2 < 16:
                o += k_read((g + 7) // 2, 0)
            if g == 27:
                o += [wait_vm(("V", 0)), wait_lgkm0(), barrier()]
                o += k_read(0, 1) + k_read(1, 1)
            if g == 29:
                o += k_read(2, 1)
            if g == 31:
                o += k_read(3, 1)
    o += it15_vm
    A(nop(7))
    A(nop(7))
    for g in row_max2(0):
        o += g
    o += flat(softmax_steps(0, 0)[:HEAD0])
    A(wait_lgkm0())
    return o


def stamp(k=0, force=False):
    if not STAMP or ((PROF or PROF2) and not force):
        return []
    return [raw("s_memtime s[60:61]", kind="salu"), raw("s_waitcnt lgkmcnt(0)", kind="wait"),
            raw("v_mov_b32 v255, s60"), raw("buffer_store_dword v255, off, s[64:67], s62"),
            raw("s_add_u32 s62, s62, 4", kind="salu")]


def dump2():
    if not (PROF2 or PROF):
        return []
    o = stamp(force=True)
    for k in range(2):
        o += [raw(f"v_mov_b32 v255, s{88+k}"), raw("buffer_store_dword v255, off, s[64:67], s62"), raw("s_add_u32 s62, s62, 4", kind="salu"),
              raw(f"s_mov_b32 s{88+k}, 0", kind="salu")]
    return o


def stamp_init():
    if not STAMP:
        return []
    o = []
    T = lambda s: o.append(raw(s, kind="salu"))
    T("s_load_dwordx2 s[64:65], s[0:1], 32")
    T("v_lshrrev_b32 v255, 6, v0")
    T("s_nop 1")
    T("v_readfirstlane_b32 s62, v255")
    T("s_waitcnt lgkmcnt(0)")
    T("s_and_b32 s65, s65, 0xffff")
    T("s_mov_b32 s67, 0x00020000")
    T("s_lshl_b32 s62, s62, 8")
    T("s_add_u32 s62, s62, s2")
    T(f"s_cmp_eq_u32 s62, {opt('swg', 0)}")
    T("s_cselect_b32 s66, 256, 0")
    T("s_mov_b32 s62, 0")
    for k in range(4):
        T(f"s_mov_b32 s{88+k}, 0")
    return o


def stamp_out(n):
    if not STAMP:
        return []
    o = [raw("s_waitcnt vmcnt(0)", kind="wait")] + stamp(force=True)
    if PROF:
        for k in range(2):
            o += [raw(f"v_mov_b32 v255, s{88+k}"), raw("buffer_store_dword v255, off, s[64:67], s62"), raw("s_add_u32 s62, s62, 4", kind="salu")]
    return o


def build_role():
    import io, contextlib
    RL = ROLE
    st = WaitState()
    G = 14
    rounds = []
    for r in range(3):
        buf = io.StringIO()
        with contextlib.redirect_stdout(buf):
            Sx = build_special(G)
            L1 = build_loop(G + 4)
            L2 = build_loop(G + 6)
        if r == 2:
            print(buf.getvalue(), end="")
            for nm, Rg in (("S", Sx), ("L", L1)):
                print(RL, nm, "loads:", " ".join(str(Rg.load(i)) for i in range(Rg.n)))
                print(RL, nm, "over24:", sum(max(0, Rg.load(i) - 24) for i in range(Rg.n)))
        sr = insert_waits(Sx.flatten(), st)
        l1 = insert_waits(L1.flatten(), st)
        l2 = insert_waits(L2.flatten(), st)
        rounds.append((sr, l1, l2))
        G += 8
    sr, l1, l2 = rounds[2]
    l1 = l2
    tx = lambda s: [x.text for x in s]
    if RL == "A":
        assert tx(rounds[2][1]) == tx(l2), "loop not steady"
    assert tx(rounds[1][0]) == tx(sr), "special not steady"
    assert tx(rounds[1][2]) == tx(l2)
    sp = {}
    mcount = 0
    for i, x in enumerate(sr):
        if x.kind == "mfma":
            if mcount in (64, 128, 192):
                j = i
                while sr[j - 1].kind == "wait":
                    j -= 1
                sp[mcount] = j
            mcount += 1
    s14, s15, s_b, s_c = sr[:sp[64]], sr[sp[64]:sp[128]], sr[sp[128]:sp[192]], sr[sp[192]:]
    vm = []
    if RL == "A":
        started = False
        last_m0 = None
        offs = [f"s_add_u32 s{r}," for r in (S_KOFF, S_KOFF2, S_VOFF, S_VOFF2)] + [f"s_and_b32 s{r}," for r in (S_KOFF, S_KOFF2, S_VOFF, S_VOFF2)]
        for x in s15:
            if x.kind == "salu" and x.text.startswith("s_add_u32 m0"):
                last_m0 = x
            if x.kind == "dma" and x.tag[0] == "K":
                started = True
            if started:
                if x.kind == "dma":
                    assert x.tag[0] in ("K", "V")
                    vm += [last_m0, nop(0), x]
                elif x.kind == "vmem_st":
                    vm.append(x)
                elif x.kind == "salu" and any(x.text.startswith(p) for p in offs):
                    vm.append(x)
    pro = prologue([uncountedcopy(x) for x in vm])
    pro_r = insert_waits(pro, WaitState())
    loop_ctl = [raw(f"s_add_u32 s{S_CNT}, s{S_CNT}, 1", kind="salu"),
                raw(f"s_cmp_lt_u32 s{S_CNT}, 6", kind="salu"),
                raw(f"s_cbranch_scc1 L_loop{RL}", kind="branch")]
    exit_ctl = [raw(f"s_add_u32 s{S_RHO}, s{S_RHO}, 1", kind="salu"),
                raw(f"s_cmp_eq_u32 s{S_RHO}, 4", kind="salu"),
                raw("s_cbranch_scc1 L_fin", kind="branch")]
    check_hazards(pro_r + s_b + exit_ctl + s_c + l1 + loop_ctl + l1 + loop_ctl + s14 + s15 + s_b + exit_ctl + s_c + l1, "main" + RL)
    names = [("l0" + RL, 0), ("l1" + RL, 1), ("s14" + RL, 0), ("s15" + RL, 1), ("s1" + RL, 1)]
    seq = [label(f"L_pro{RL}")] + pro_r + [raw(f"s_branch L_it0{RL}", kind="branch")]
    seq += [label(f"L_sa{RL}")] + dump2() + stamp() + s14 + stamp() + s15 + [label(f"L_it0{RL}")] + stamp() + s_b + exit_ctl + stamp() + s_c + stamp() + [label(f"L_loop{RL}")] + l1 + loop_ctl
    seq += [raw(f"s_branch L_sa{RL}", kind="branch")]
    rare = []
    for nm, par in names:
        r = rare_path(par, nm)
        check_hazards(r, "rare")
        rare += r
    return seq, rare


def main():
    global ROLE
    head = prologue_head()
    ROLE = "A"
    sa, ra = build_role()
    ROLE = "B"
    sb, rb = build_role()
    seq = head[:2] + stamp_init() + stamp(0, force=True) + head[2:]
    seq += [raw(f"s_cmp_ge_u32 s{S_W}, 2", kind="salu"), raw("s_cbranch_scc1 L_proB", kind="branch")]
    seq += sa + [label("L_fin")] + stamp_out(2) + [label("L_end"), raw("s_endpgm")] + sb + ra + rb + [raw("s_endpgm")]
    hdr = open(f"cdna_kernels/{NAME}.s.ref").read().split("\n")
    head = [l for l in hdr if l.startswith(";") and "@launch" not in l and "Override" not in l and "grid=ceil" not in l]
    txt = "\n".join(head) + "\n"
    txt += f"; @launch grid=(256,1,1) block=(256,1,1) lds={LDS_BYTES}\n"
    txt += f'.amdgcn_target "amdgcn-amd-amdhsa--gfx950"\n.text\n.globl {NAME}_kernel\n.p2align 8\n.type {NAME}_kernel,@function\n{NAME}_kernel:\n'
    txt += render(seq) + "\n"
    txt += f""".section .rodata,"a"
.p2align 6
.amdhsa_kernel {NAME}_kernel
  .amdhsa_next_free_vgpr 512
  .amdhsa_next_free_sgpr 96
  .amdhsa_accum_offset 256
  .amdhsa_group_segment_fixed_size 0
  .amdhsa_kernarg_size 48
  .amdhsa_user_sgpr_count 2
  .amdhsa_user_sgpr_kernarg_segment_ptr 1
  .amdhsa_system_sgpr_workgroup_id_x 1
.end_amdhsa_kernel
"""
    out = sys.argv[1] if len(sys.argv) > 1 else f"cdna_kernels/{NAME}.s"
    open(out, "w").write(txt)
    print("wrote", out, len(seq), "instructions", len(txt), "bytes")


def uncountedcopy(x):
    y = Ins(x.text, rd=x.rd, wr=x.wr, kind=x.kind, cost=x.cost, tag=x.tag)
    return y


main()
```

```python
import sys, math, struct
sys.path.insert(0, "work")
from fw import *

NAME = "standalone__mha_softmax__near_ridge"
ARGS = sys.argv[2:]
STAMP = "stamp" in ARGS
PROF = "prof" in ARGS
PROF2 = "prof2" in ARGS
PFS = 128


def opt(name, default):
    for a in ARGS:
        if a.startswith(name + "="):
            return int(a.split("=")[1])
    return default


OA = ("v", 0)
OB = ("a", 0)
QA = 128
QB = 192
SB = [128, 160]
P0 = 192
P1 = 208
FB = 216
TT = 232
V_KA, V_VA, V_DMA = 236, 237, 238
V_NMC = [239, 240]
V_L = [241, 242]
V_LT = [243, 244]
V_TMP = 245
V_QO = 246
V_T2 = 247
V_T3 = 248
V_QDMA = 249
V_QRD = 250
V_PF = 251
V_RINV = [252, 254]
V_QCUR = 253
V_TMP2 = 255

S_Q, S_K, S_V, S_O = 4, 8, 12, 16
S_XH = 3
S_W = 20
S_C = 21
S_THR = 22
S_KOFF = 23
S_VOFF = 24
S_KM0 = 25
S_VM0 = 26
S_CNT = 27
S_QS = 28
S_QSTEP = 29
S_NC = 30
S_QM = 31
S_KN = 48
S_VN = 50
S_KVN = 52
S_16K = 53
S_ON = 54
S_T = 57
S_QMB = 58
S_RHO = 59
S_KOFF2 = 68
S_VOFF2 = 69
S_PF = 72
S_PFOFF = 70
S_PFN = 76
S_WQ = 71
S_BQ = 78
S_BQM = 79
S_ROT = 80
S_ROT2 = 81
ROTM = opt('rot', 15)
PFMODE = opt('pf', 0)
QNT = ' nt' if opt('qnt', 1) else ''
STNT = ' nt' if opt('stnt', 0) else ''
KVNT = ' nt' if opt('kvnt', 1) else ''
ROLE = "A"
PD = opt("pd", 6)

KBLK, VBLK = 1040, 1088
KSLOT = [0, 16 * KBLK]
VSLOT = [32 * KBLK, 32 * KBLK + 16 * VBLK]
QBASE = 32 * KBLK + 32 * VBLK
QUNIT = 4224
QDUMMY = QBASE + 4 * 5 * QUNIT
LDS_BYTES = QDUMMY + 4224

SCALE = (256 ** -0.5) * math.log2(math.e)
HEAD = opt("head", 19)
HEAD0 = opt("head0", 12)
UNITS = [(0, 0), (1, 0), (0, 1), (1, 1), (0, 2)]
LATE = [((1, 2), 0), ((0, 3), 1), ((1, 3), 2)]


def f32bits(x):
    return struct.unpack("<I", struct.pack("<f", x))[0]


def Oacc(qb, t):
    k, lo = (OA, OB)[qb]
    return (k, lo + 16 * t)


def Qfrag(qb, ks):
    return ("a", (QA, QB)[qb] + 4 * ks)


def Sacc(buf, qb):
    return ("v", SB[buf] + 16 * qb)


def Pfrag(par, qb, s):
    if s == 0:
        return ("v", P0 + par * 8 + qb * 4)
    return ("v", P1 + qb * 4)


def S(text, rd=(), wr=()):
    return salu(text, rd=rd, wr=wr)


def k_read(f, slot):
    return [ds_read("ds_read_b128", "v", FB + 4 * (f % 4), 4, V_KA, KSLOT[slot] + 32 * f)]


def v_read(f, slot):
    t, s = f >> 1, f & 1
    b = FB + 4 * (f % 4)
    return [ds_read("ds_read_b64_tr_b16", "v", b + 2 * u, 2, V_VA, VSLOT[slot] + (2 * s + u) * 4 * VBLK + 64 * t) for u in (0, 1)]


def q_read(qb, ks, space):
    k, lo = Qfrag(qb, ks)
    return ds_read("ds_read_b128", k, lo, 4, V_QRD, space * QUNIT + 32 * (ks & 3))


def dma_unit(kind, j, four=False):
    slot = j & 1
    if kind == "K":
        base, blk, sl, srd, soff, soff2 = S_KM0, KBLK, KSLOT, S_K, S_KOFF, S_KOFF2
    else:
        base, blk, sl, srd, soff, soff2 = S_VM0, VBLK, VSLOT, S_V, S_VOFF, S_VOFF2
    rel = sl[slot] - sl[0]
    groups = []
    for half in ((0,) if four else (0, 1)):
        so = (soff, soff2)[half]
        for q in range(4):
            g = [S(f"s_add_u32 m0, s{base}, {rel + half * 4 * blk + (blk - 512) * q}", rd=[base], wr=["m0"]),
                 nop(0),
                 dma(V_DMA, srd, f"s{so}", 512 * q, tag=(kind, j), flags=KVNT)]
            if q == 3:
                g.append(S(f"s_add_u32 s{so}, s{so}, 16384", rd=[so], wr=[so]))
                g.append(S(f"s_and_b32 s{so}, s{so}, 0x3ffff", rd=[so], wr=[so]))
            groups.append(g)
    return groups


def q_dma_static(qb, lam, space, tag):
    groups = []
    for io in range(4):
        groups.append([S(f"s_add_u32 m0, s{S_QMB}, {space * QUNIT + 1056 * io}", rd=[S_QMB], wr=["m0"]),
                       S(f"s_add_u32 s40, s{S_WQ}, {qb * 16384 + lam * 128 + io * 4096}", wr=[40]),
                       dma(V_QDMA, S_Q, "s40", 0, tag=tag, flags=QNT)])
    return groups


def softmax_steps(buf, par):
    def elem(e):
        s = e >> 4
        qb = (e >> 3) & 1
        r = 8 * s + (e & 7)
        return s, qb, r
    steps = []
    for k in range(34):
        st = []
        if k < 32:
            s, qb, r = elem(k)
            st.append(valu("v_fma_f32", TT + k % 4, SB[buf] + 16 * qb + r, f"s{S_C}", V_NMC[qb]))
        if 0 <= k - 1 < 32:
            e = k - 1
            st.append(trans("v_exp_f32", TT + e % 4, TT + e % 4))
        if 0 <= k - 2 < 32:
            e = k - 2
            s, qb, r = elem(e)
            if r == 1:
                st.append(valu("v_add_f32", V_LT[qb], TT + (e - 1) % 4, TT + e % 4))
            elif r > 1:
                st.append(valu("v_add_f32", V_LT[qb], V_LT[qb], TT + e % 4))
            if r & 1:
                pk, pl = Pfrag(par, qb, s)
                st.append(valu("v_cvt_pk_bf16_f32", pl + ((r & 7) >> 1), TT + (e - 1) % 4, TT + e % 4))
        steps.append(st)
    return steps


def swap32(a, b):
    return Ins(f"v_permlane32_swap_b32 v{a}, v{b}", rd=[("v", a), ("v", b)], wr=[("v", a), ("v", b)], kind="valu")


def row_max2(buf):
    dst = [V_T2, V_T3]
    tmp = [V_TMP, V_TMP2]
    groups = []
    b = [SB[buf], SB[buf] + 16]
    groups.append([valu("v_max3_f32", dst[q], b[q], b[q] + 1, b[q] + 2) for q in (0, 1)])
    for i in range(3, 15, 2):
        groups.append([valu("v_max3_f32", dst[q], dst[q], b[q] + i, b[q] + i + 1) for q in (0, 1)])
    groups.append([valu("v_max_f32", dst[q], dst[q], b[q] + 15) for q in (0, 1)])
    g = [valu("v_mov_b32", tmp[q], dst[q]) for q in (0, 1)]
    g += [nop(1)]
    g += [swap32(tmp[q], dst[q]) for q in (0, 1)]
    g += [nop(0)]
    g += [valu("v_max_f32", dst[q], dst[q], tmp[q]) for q in (0, 1)]
    g += [valu("v_mul_f32", V_NMC[q], f"s{S_NC}", dst[q]) for q in (0, 1)]
    groups.append(g)
    return groups


def rinv_group():
    tmp = [V_TMP, V_TMP2]
    g = [valu("v_mov_b32", tmp[q], V_L[q]) for q in (0, 1)]
    g += [nop(1)]
    g += [swap32(tmp[q], V_L[q]) for q in (0, 1)]
    g += [nop(0)]
    g += [valu("v_add_f32", V_L[q], V_L[q], tmp[q]) for q in (0, 1)]
    g += [trans("v_rcp_f32", V_RINV[q], V_L[q]) for q in (0, 1)]
    return g


def row_max(buf, qb, dst, tmp):
    b = SB[buf] + 16 * qb
    out = [valu("v_max3_f32", dst, b, b + 1, b + 2)]
    for i in range(3, 15, 2):
        out.append(valu("v_max3_f32", dst, dst, b + i, b + i + 1))
    out.append(valu("v_max_f32", dst, dst, b + 15))
    out.append(valu("v_mov_b32", tmp, dst))
    out.append(nop(1))
    out.append(swap32(tmp, dst))
    out.append(nop(0))
    out.append(valu("v_max_f32", dst, dst, tmp))
    return out


def flat(steps):
    out = []
    for st in steps:
        out += st
        out.append(nop(0))
    return out


def rare_path(par, name):
    out = [label(f"L_rare{name}")]
    out.append(nop(7))
    for qb in (0, 1):
        out += row_max(par, qb, V_T2, V_TMP)
        out.append(valu("v_mul_f32", V_T2, f"s{S_NC}", V_T2))
        out.append(valu("v_min_f32", V_T2, V_T2, V_NMC[qb]))
        out.append(valu("v_sub_f32", V_T3, V_T2, V_NMC[qb]))
        out.append(trans("v_exp_f32", V_T3, V_T3))
        out.append(valu("v_mov_b32", V_NMC[qb], V_T2))
        out.append(valu("v_mul_f32", V_L[qb], V_L[qb], V_T3))
        for r in range(128):
            if qb == 0:
                out.append(valu("v_mul_f32", r, r, V_T3))
            else:
                out.append(valu("v_accvgpr_read_b32", V_TMP, ("a", r)))
                out.append(valu("v_mul_f32", V_TMP, V_TMP, V_T3))
                out.append(valu("v_accvgpr_write_b32", ("a", r), V_TMP))
    out += flat(softmax_steps(par, par))
    out.append(nop(3))
    out.append(raw(f"s_branch L_back{name}", kind="branch"))
    return out


def pk_mul(r, qb):
    sel = "op_sel_hi:[1,0]"
    p = V_RINV[qb]
    return Ins(f"v_pk_mul_f32 v[{r}:{r+1}], v[{r}:{r+1}], v[{p}:{p+1}] {sel}",
               rd=[("v", r), ("v", r + 1), ("v", V_RINV[qb])], wr=[("v", r), ("v", r + 1)], kind="valu")


V_LIN = 253


def epi_chunks(tp):
    Rb = 32 * tp
    items = []
    spa = ((2 * tp) % 5) * QUNIT
    spb = ((2 * tp + 1) % 5) * QUNIT

    def wr(reg, sp, j):
        return ds_write("ds_write_b128", V_QRD, "v", reg, 4, sp + 32 * j)

    def rd(reg, sp, io):
        return ds_read("ds_read_b128", "v", reg, 4, V_LIN, sp + 1056 * io)

    def st(reg, qb, io):
        return [S(f"s_add_u32 s47, s{S_WQ}, {qb * 16384 + io * 4096}"),
                bstore("v", reg, 4, V_QDMA, S_O, "s47", 128 * tp, tag="ST", flags=STNT)]
    for tl in (0, 1):
        t = 2 * tp + tl
        for gp in (0, 1):
            o = Rb + 16 * tl + 8 * gp
            items.append(([pk_mul(o + 2 * j, 0) for j in range(4)], "a", t))
            items.append(([valu("v_cvt_pk_bf16_f32", o + e, o + 2 * e, o + 2 * e + 1) for e in range(4)] + [wr(o, spa, 2 * tl + gp)], "a", t))
    areg = [Rb, Rb + 8, Rb + 16, Rb + 24]
    items.append(([rd(areg[io], spa, io) for io in range(4)], "a", 2 * tp + 1))
    astores = [(st(areg[io], 0, io), "a", 2 * tp + 1) for io in range(4)]
    breg = [Rb + 4, Rb + 12, Rb + 20, Rb + 28]
    first = True
    for tl in (0, 1):
        t = 2 * tp + tl
        for gp in (0, 1):
            tmp = [breg[2 * gp] + e for e in range(4)] + [breg[2 * gp + 1] + e for e in range(4)]
            src = 16 * t + 8 * gp
            items.append(([valu("v_accvgpr_read_b32", tmp[e], ("a", src + e)) for e in range(4)], "b", t))
            items.append(([valu("v_accvgpr_read_b32", tmp[e], ("a", src + e)) for e in range(4, 8)], "b", t))
            items.append(([pk_mul(tmp[2 * j], 1) for j in range(4)], "b", t))
            items.append(([valu("v_cvt_pk_bf16_f32", tmp[e], tmp[2 * e], tmp[2 * e + 1]) for e in range(4)] + [wr(tmp[0], spb, 2 * tl + gp)], "b", t))
            if first:
                items += astores[:2]
                first = False
            elif astores:
                items += astores[2:]
                astores = []
    items.append(([rd(breg[io], spb, io) for io in range(4)], "b", 2 * tp + 1))
    bstores = [(st(breg[io], 1, io), "b", 2 * tp + 1) for io in range(4)]
    return items, bstores


def tile_params():
    o = []
    A = lambda t: o.append([S(t)])
    A(f"s_mul_hi_u32 s42, s{S_T}, 0x55555556")
    A("s_mul_i32 s43, s42, 3")
    A(f"s_sub_u32 s43, s{S_T}, s43")
    A(f"s_add_u32 s42, s42, s{S_XH}")
    A("s_mul_i32 s44, s42, 376832")
    A("s_lshl_b32 s43, s43, 17")
    A("s_add_u32 s44, s44, s43")
    A("s_lshl_b32 s45, s42, 18")
    A(f"s_lshr_b32 s{S_ROT}, s42, 4")
    A(f"s_xor_b32 s{S_ROT}, s{S_ROT}, s42")
    A(f"s_and_b32 s{S_ROT}, s{S_ROT}, {ROTM}")
    A(f"s_lshl_b32 s{S_ROT}, s{S_ROT}, 14")
    A(f"s_add_u32 s{S_ROT2}, s{S_ROT}, 0x1000")
    A("s_sub_u32 s43, 376832, s43")
    o.append([S(f"s_cmp_lt_u32 s{S_T}, 96"), S("s_cselect_b32 s43, s43, 0"), S(f"s_cselect_b32 s{S_KVN}, 262144, 0")])
    o.append([S(f"s_add_u32 s{S_Q}, s32, s44"), S(f"s_addc_u32 s{S_Q+1}, s33, 0")])
    A(f"s_and_b32 s{S_Q+1}, s{S_Q+1}, 0xffff")
    A(f"s_mov_b32 s{S_Q+2}, s43" if not opt('noq', 0) else f"s_mov_b32 s{S_Q+2}, 0")
    o.append([S(f"s_add_u32 s{S_ON}, s38, s44"), S(f"s_addc_u32 s{S_ON+1}, s39, 0")])
    A(f"s_and_b32 s{S_ON+1}, s{S_ON+1}, 0xffff")
    A(f"s_mov_b32 s{S_ON+2}, s43" if not opt('nost', 0) else f"s_mov_b32 s{S_ON+2}, 0")
    o.append([S(f"s_add_u32 s{S_KN}, s34, s45"), S(f"s_addc_u32 s{S_KN+1}, s35, 0")])
    A(f"s_and_b32 s{S_KN+1}, s{S_KN+1}, 0xffff")
    o.append([S(f"s_add_u32 s{S_VN}, s36, s45"), S(f"s_addc_u32 s{S_VN+1}, s37, 0")])
    A(f"s_and_b32 s{S_VN+1}, s{S_VN+1}, 0xffff")
    return o


def wrap2(g, acc):
    if not PROF2:
        return g
    T = lambda t: raw(t, kind="salu", cost=0)
    out = []
    for x in g:
        if x.kind == "dma":
            out += [T("s_memtime s[82:83]"), raw("s_waitcnt lgkmcnt(0)", kind="wait", cost=0), x,
                    T("s_memtime s[84:85]"), raw("s_waitcnt lgkmcnt(0)", kind="wait", cost=0),
                    T("s_sub_u32 s82, s84, s82"), T(f"s_add_u32 s{acc}, s{acc}, s82")]
        else:
            out.append(x)
    return out


class Region:
    def __init__(self, n):
        self.n = n
        self.mf = [None] * n
        self.g = [[] for _ in range(n)]

    def add(self, gap, items):
        self.g[gap] += [x for x in items if x is not None]

    def load(self, gap):
        return sum(x.cost for x in self.g[gap])

    def place(self, seqs, name=""):
        base = [self.load(i) for i in range(self.n)]

        def attempt(level):
            ld = list(base)
            res = []
            cur = 0
            for grp, rel, dl in seqs:
                c = sum(x.cost for x in grp)
                g = max(cur, rel)
                while g <= dl and ld[g] + c > level and not (ld[g] == 0):
                    g += 1
                if g > dl:
                    return None
                ld[g] += c
                res.append(g)
                cur = g
            return res
        level = 8
        while True:
            r = attempt(level)
            if r is not None:
                break
            level += 2
            assert level < 400, "cannot place " + name
        for (grp, rel, dl), g in zip(seqs, r):
            self.g[g] += grp
        if name:
            print(f"  place {name}: level {level}")

    def flatten(self):
        out = []
        for i in range(self.n):
            if self.mf[i] is not None:
                out.append(self.mf[i])
            out += self.g[i]
        return out


def base_iteration(R_, b, role, G, name, extra59=()):
    par = G & 1
    np_ = par ^ 1
    first_of_tile = (role == 0)
    for ks in range(16):
        for qb in (0, 1):
            F = ("v", FB + 4 * (ks % 4))
            D = Sacc(np_, qb)
            R_.mf[b + 2 * ks + qb] = mfma32(D, F, Qfrag(qb, ks), None if ks == 0 else D)
    for f in range(16):
        t, s = f >> 1, f & 1
        for qb in (0, 1):
            F = ("v", FB + 4 * (f % 4))
            D = Oacc(qb, t)
            C = None if (first_of_tile and s == 0) else D
            R_.mf[b + 32 + 2 * f + qb] = mfma32(D, F, Pfrag(par, qb, s), C)
    extra59 = list(extra59)
    for f in range(4, 16):
        R_.add(b + 2 * f - 7, k_read(f, np_))
    A_ = ROLE == "A"

    def prof(w, acc):
        if not PROF:
            return list(w) + [wait_lgkm0(), barrier()]
        T = lambda t: raw(t, kind="salu", cost=0)
        return [wait_lgkm0(), T("s_memtime s[82:83]"), wait_lgkm0()] + list(w) + [T("s_memtime s[84:85]"), raw("s_waitcnt lgkmcnt(0)", kind="wait", cost=0), barrier(),
                T("s_memtime s[86:87]"), raw("s_waitcnt lgkmcnt(0)", kind="wait", cost=0),
                T("s_sub_u32 s82, s82, s92"), T("s_mov_b32 s92, s86"),
                T(f"s_add_u32 s{88 if acc == 88 else 89}, s{88 if acc == 88 else 89}, s82")]
    R_.add(b + 27, prof([wait_vm(("V", G))] if A_ else [], 88) + v_read(0, par) + v_read(1, par))
    R_.add(b + 29, v_read(2, par))
    R_.add(b + 31, v_read(3, par))
    for f in range(4, 16):
        R_.add(b + 32 + 2 * f - 7, v_read(f, par))
    R_.add(b + 59, prof([wait_vm(("K", G + 2))] if A_ else extra59, 90) + k_read(0, par) + k_read(1, par))
    R_.add(b + 61, k_read(2, par))
    R_.add(b + 63, k_read(3, par))
    if A_:
        grp = dma_unit("K", G + 3)
        for q, g in enumerate(grp):
            R_.add(b + KD[q], wrap2(g, 88))
        grp = dma_unit("V", G + 2)
        for q in range(4):
            R_.add(b + VD[q], wrap2(grp[q], 89))
        grp = dma_unit("V", G + 1)
        for q in range(4):
            R_.add(b + VD2[q], wrap2(grp[4 + q], 89))
    elif PFMODE:
        for q in range(2):
            g = [S(f"s_mov_b32 m0, {QDUMMY}", wr=["m0"]),
                 S(f"s_add_u32 s41, s{S_PFOFF}, {8192 * q}"),
                 Ins(f"buffer_load_dword v{V_DMA}, s[{S_PF}:{S_PF+3}], s41 offen lds", rd=[("v", V_DMA), ("s", "m0")], kind="dma", cost=16, tag=("PF", G))]
            if q == 1:
                g.append(S(f"s_add_u32 s{S_PFOFF}, s{S_PFOFF}, 16384"))
                g.append(S(f"s_and_b32 s{S_PFOFF}, s{S_PFOFF}, 0x3ffff"))
            R_.add(b + PFD[q], wrap2(g, 89))


KD = [29, 32, 35, 38, 41, 44, 47, 50]
VD = [60, 61, 62, 63]
VD2 = [0, 2, 4, 6]
QD = [34, 38, 42, 46]
PFD = [12, 20]


def softmax_part(R_, b, role, G, name, head_prev, head_next, next_true_max=False):
    name = name + ROLE
    par = G & 1
    np_ = par ^ 1
    st = softmax_steps(par, par)
    R_.place([(s_, b + 0, b + 28) for s_ in st[head_prev:]], name + ".tail")
    if role == 0:
        R_.add(b + 30, [valu("v_mov_b32", V_L[0], V_LT[0]), valu("v_mov_b32", V_L[1], V_LT[1])])
    else:
        R_.add(b + 29, [valu("v_add_f32", V_TMP, V_LT[0], V_LT[1])])
        R_.add(b + 30, [valu("v_cmp_nge_f32", "vcc", f"s{S_THR}", V_TMP),
                        raw(f"s_cbranch_vccnz L_rare{name}", kind="branch"),
                        label(f"L_back{name}"),
                        valu("v_add_f32", V_L[0], V_L[0], V_LT[0]),
                        valu("v_add_f32", V_L[1], V_L[1], V_LT[1])])
    st = softmax_steps(np_, np_)
    seq = []
    lo = b + 35
    if next_true_max:
        seq.append((rinv_group(), b + 32, b + 34))
        for g in row_max2(np_):
            seq.append((g, b + 34, b + 63))
    for s_ in st[:head_next]:
        seq.append((s_, lo, b + 63))
    R_.place(seq, name + ".head")


def build_loop(G):
    R_ = Region(128)
    c = S_CNT
    x59 = []
    if ROLE == "B":
        x59 = [S(f"s_cmp_lg_u32 s{c}, 5"), raw("s_cbranch_scc1 L_skipq", kind="branch"), wait_vm(("Q", G - 1)), label("L_skipq")]
    base_iteration(R_, 0, 2, G, "l0")
    base_iteration(R_, 64, 3, G + 1, "l1", extra59=x59)
    if ROLE == "B":
        R_.add(1, [S(f"s_cmp_eq_u32 s{c}, 4"),
                   S(f"s_cselect_b32 s{S_PF}, s{S_PFN}, s{S_PF}"),
                   S(f"s_cselect_b32 s{S_PF+1}, s{S_PFN+1}, s{S_PF+1}"),
                   S(f"s_cselect_b32 s{S_PF+2}, s{S_KVN}, s{S_PF+2}"),
                   S(f"s_cselect_b32 s{S_PFOFF}, s{S_ROT}, s{S_PFOFF}")])
        pre = [S(f"s_and_b32 s42, s{c}, 1"), S("s_lshl_b32 s42, s42, 14"), S(f"s_lshr_b32 s43, s{c}, 1"),
               S("s_lshl_b32 s43, s43, 7"), S("s_or_b32 s44, s42, s43"),
               S(f"s_mul_i32 s45, s{c}, {QUNIT}"), S(f"s_add_u32 s45, s45, s{S_BQM}")]
        sel = [S(f"s_cmp_eq_u32 s{c}, 5"), S("s_cselect_b32 s44, 256, s44"),
               S(f"s_cselect_b32 s{S_QSTEP}, s{S_16K}, 0x1000"),
               S(f"s_cselect_b32 s46, 0, {5 * QUNIT}"),
               S(f"s_cselect_b32 s45, {QDUMMY}, s45"),
               S("s_cselect_b64 vcc, -1, 0"),
               valu("v_cndmask_b32", V_QCUR, V_QDMA, V_PF, "vcc")]
        for k, x in enumerate(pre):
            R_.add(3 + 2 * k, [x])
        R_.add(18, sel)
        for it in (0, 1):
            b = 64 * it
            if it == 0:
                R_.add(b + 22, [S(f"s_add_u32 s{S_QS}, s44, s{S_BQ}"), S(f"s_mov_b32 s{S_QM}, s45")])
            else:
                R_.add(b + 22, [S(f"s_add_u32 s{S_QS}, s44, s{S_BQ}"), S(f"s_add_u32 s{S_QS}, s{S_QS}, 32768"), S(f"s_add_u32 s{S_QM}, s45, s46")])
            for io in range(4):
                R_.add(b + QD[io], wrap2([S(f"s_add_u32 m0, s{S_QM}, {1056 * io}", rd=[S_QM], wr=["m0"]), nop(0),
                                    dma(V_QCUR, S_Q, f"s{S_QS}", 0, tag=("Q", G + it), flags=QNT),
                                    S(f"s_add_u32 s{S_QS}, s{S_QS}, s{S_QSTEP}")], 88))
    else:
        R_.add(64 + 4, [S(f"s_cmp_eq_u32 s{c}, 5"),
                        S(f"s_cselect_b32 s{S_K}, s{S_KN}, s{S_K}"),
                        S(f"s_cselect_b32 s{S_K+1}, s{S_KN+1}, s{S_K+1}"),
                        S(f"s_cselect_b32 s{S_K+2}, s{S_KVN}, s{S_K+2}"),
                        S(f"s_cselect_b32 s{S_KOFF}, s{S_ROT}, s{S_KOFF}"),
                        S(f"s_cselect_b32 s{S_KOFF2}, s{S_ROT2}, s{S_KOFF2}")])
    softmax_part(R_, 0, 2, G, "l0", HEAD, HEAD)
    softmax_part(R_, 64, 3, G + 1, "l1", HEAD, HEAD)
    return R_


def build_special(G):
    R_ = Region(256)
    base_iteration(R_, 0, 14, G, "s14")
    base_iteration(R_, 64, 15, G + 1, "s15")
    base_iteration(R_, 128, 0, G + 2, "s0")
    base_iteration(R_, 192, 1, G + 3, "s1")
    if ROLE == "A":
        R_.add(50, [S(f"s_mov_b32 s{S_V}, s{S_VN}"), S(f"s_mov_b32 s{S_V+1}, s{S_VN+1}"),
                    S(f"s_mov_b32 s{S_V+2}, s{S_KVN}"), S(f"s_mov_b32 s{S_VOFF}, s{S_ROT}"), S(f"s_mov_b32 s{S_VOFF2}, s{S_ROT2}")])
    for u, (qb, lam) in enumerate(UNITS):
        for ksl in range(4):
            ks = 4 * lam + ksl
            R_.add(2 * ks + qb + 2, [q_read(qb, ks, u)])
    def unit_regs(qb, lam):
        r = []
        for ksl in range(4):
            k, lo = Qfrag(qb, 4 * lam + ksl)
            r += R(k, lo, 4)
        return r
    late_start = [11, 12, 19]
    for idx, ((qb, lam), space) in enumerate(LATE):
        oq, ol = UNITS[space]
        grp = q_dma_static(qb, lam, space, ("QL", G, idx))
        grp[0] = [touch(unit_regs(oq, ol))] + grp[0]
        g0 = late_start[idx]
        for io in range(4):
            R_.add(g0 + 2 * io, grp[io])
    rd_at = [64 + LR0, 64 + LR1, 64 + LR2]
    for idx, ((qb, lam), space) in enumerate(LATE):
        R_.add(rd_at[idx], [wait_vm(("QL", G, idx))] + [q_read(qb, 4 * lam + ksl, space) for ksl in range(4)])
    softmax_part(R_, 0, 14, G, "s14", HEAD, HEAD)
    softmax_part(R_, 64, 15, G + 1, "s15", HEAD, HEAD0, next_true_max=True)
    softmax_part(R_, 128, 0, G + 2, "s0", HEAD0, HEAD)
    softmax_part(R_, 192, 1, G + 3, "s1", HEAD, HEAD)
    seq = [([valu("v_mbcnt_lo_u32_b32", V_LIN, "-1", "0"), valu("v_mbcnt_hi_u32_b32", V_LIN, "-1", V_LIN),
              valu("v_lshlrev_b32", V_LIN, "4", V_LIN), valu("v_add_u32", V_LIN, f"s{S_QMB}", V_LIN)], 64 + 30, 64 + 40)]
    pend = []
    for tp in range(4):
        items, bst = epi_chunks(tp)
        dl = 128 + 32 + 8 * tp - 1
        k = 0
        for g, kind, t in items:
            rel = 64 + 32 + 4 * t + 2 + EREL + (1 if kind == "b" else 0)
            seq.append((g, rel, dl))
            k += 1
            if pend and k in (2, 4, 6, 8):
                g2, d2 = pend.pop(0)
                seq.append((g2, rel, d2))
        assert not pend
        pend = [(g, dl) for g, kind, t in bst]
    for g2, d2 in pend:
        seq.append((g2, 0, d2))
    R_.place(seq, "epilogue")
    seq = [([S(f"s_mov_b32 s{S_O}, s{S_ON}"), S(f"s_mov_b32 s{S_O+1}, s{S_ON+1}"), S(f"s_mov_b32 s{S_O+2}, s{S_ON+2}")], 192 + 2, 250)]
    seq.append(([S(f"s_add_u32 s{S_T}, s{S_T}, 32")], 192 + 2, 250))
    seq += [(g, 192 + 2, 250) for g in tile_params()]
    seq.append(([S(f"s_mov_b32 s{S_CNT}, 0")], 192 + 2, 250))
    if ROLE == "B":
        seq.append(([S(f"s_cmp_eq_u32 s{S_W}, 2"), S(f"s_cselect_b32 s{S_PFN}, s{S_KN}, s{S_VN}"),
                     S(f"s_cselect_b32 s{S_PFN+1}, s{S_KN+1}, s{S_VN+1}")], 192 + 2, 250))
    R_.place(seq, "params")
    return R_


LR0 = opt("lr0", 10)
LR1 = opt("lr1", 16)
LR2 = opt("lr2", 18)
EREL = opt("erel", 4)


def prologue_head():
    o = []
    A = o.append
    T = lambda s: A(raw(s, kind="salu"))
    T("s_cmp_ge_u32 s2, 256")
    A(raw("s_cbranch_scc1 L_end", kind="branch"))
    T("s_load_dwordx4 s[32:35], s[0:1], 0")
    T("s_load_dwordx4 s[36:39], s[0:1], 16")
    T(f"s_and_b32 s{S_XH}, s2, 7")
    T(f"s_lshl_b32 s{S_XH}, s{S_XH}, 5")
    T(f"s_lshr_b32 s{S_T}, s2, 3")
    T(f"s_mov_b32 s{S_16K}, 16384")
    A(valu("v_lshrrev_b32", V_TMP, "6", 0))
    A(valu("v_and_b32", V_T2, "63", 0))
    A(valu("v_readfirstlane_b32", f"s{S_W}", V_TMP))
    A(raw("s_waitcnt lgkmcnt(0)", kind="wait"))
    return o


def prologue(it15_vm):
    o = []
    A = o.append
    T = lambda s: A(raw(s, kind="salu"))
    for g in tile_params():
        o += g
    T(f"s_mov_b32 s{S_Q+3}, 0x00020000")
    T(f"s_mov_b32 s{S_K}, s{S_KN}")
    T(f"s_mov_b32 s{S_K+1}, s{S_KN+1}")
    T(f"s_mov_b32 s{S_K+2}, 262144")
    T(f"s_mov_b32 s{S_K+3}, 0x00020000")
    T(f"s_mov_b32 s{S_V}, s{S_VN}")
    T(f"s_mov_b32 s{S_V+1}, s{S_VN+1}")
    T(f"s_mov_b32 s{S_V+2}, 262144")
    T(f"s_mov_b32 s{S_V+3}, 0x00020000")
    T(f"s_mov_b32 s{S_O}, s{S_ON}")
    T(f"s_mov_b32 s{S_O+1}, s{S_ON+1}")
    T(f"s_mov_b32 s{S_O+2}, 0")
    T(f"s_mov_b32 s{S_O+3}, 0x00020000")
    T(f"s_mov_b32 s{S_C}, {f32bits(SCALE):#x}")
    T(f"s_mov_b32 s{S_NC}, {f32bits(-SCALE):#x}")
    T(f"s_mov_b32 s{S_THR}, {f32bits(4096.0):#x}")
    T(f"s_mov_b32 s{S_KOFF}, s{S_ROT}")
    T(f"s_mov_b32 s{S_VOFF}, s{S_ROT}")
    T(f"s_mov_b32 s{S_RHO}, 0")
    T(f"s_mul_i32 s{S_KM0}, s{S_W}, {4*KBLK}")
    T(f"s_add_u32 s{S_KM0}, s{S_KM0}, {KSLOT[0]}")
    T(f"s_mul_i32 s{S_VM0}, s{S_W}, {4*VBLK}")
    T(f"s_add_u32 s{S_VM0}, s{S_VM0}, {VSLOT[0]}")
    T(f"s_mul_i32 s{S_QMB}, s{S_W}, {5*QUNIT}")
    T(f"s_add_u32 s{S_QMB}, s{S_QMB}, {QBASE}")
    T(f"s_lshl_b32 s{S_WQ}, s{S_W}, 15")
    L = V_T2
    A(valu("v_lshrrev_b32", V_TMP, "5", L))
    A(valu("v_lshlrev_b32", V_DMA, "11", V_TMP))
    A(valu("v_and_b32", V_T3, "31", L))
    A(valu("v_lshl_add_u32", V_DMA, V_T3, "4", V_DMA))
    T(f"s_lshl_b32 s46, s{S_W}, 12")
    A(valu("v_add_u32", V_DMA, "s46", V_DMA))
    A(valu("v_lshrrev_b32", TT, "3", L))
    A(valu("v_bfe_u32", TT + 1, L, "4", "1"))
    A(valu("v_and_b32", TT + 2, "7", L))
    A(valu("v_xor_b32", TT + 2, TT + 2, TT + 1))
    A(valu("v_lshlrev_b32", V_QDMA, "9", TT))
    A(valu("v_lshl_add_u32", V_QDMA, TT + 2, "4", V_QDMA))

    def issue(kind, j):
        r = []
        for g in dma_unit(kind, j, four=True):
            r += g
        return r
    o += issue("K", 0)
    for u, (qb, lam) in enumerate(UNITS):
        for g in q_dma_static(qb, lam, u, ("Q0", u)):
            o += g
    A(valu("v_lshlrev_b32", V_QO, "9", V_T3))
    A(valu("v_lshl_add_u32", V_PF, V_TMP, "7", V_QO))
    A(valu("v_add_u32", V_QO, f"s{S_WQ}", V_QO))
    A(valu("v_lshl_add_u32", V_QO, V_TMP, "4", V_QO))
    for (qb, lam), _ in LATE:
        for ksl in range(4):
            ks = 4 * lam + ksl
            k, lo = Qfrag(qb, ks)
            A(bload(k, lo, 4, V_QO, S_Q, f"s{S_16K}" if qb else "0", 32 * ks, tag="QD", flags=QNT))
    o += issue("K", 1)
    o += issue("V", 0)
    A(valu("v_and_b32", V_KA, "3", V_T3))
    A(valu("v_lshrrev_b32", TT, "3", V_T3))
    A(valu("v_lshl_add_u32", V_KA, TT, "2", V_KA))
    T(f"s_movk_i32 s46, {KBLK}")
    A(valu("v_mul_lo_u32", V_KA, V_KA, "s46"))
    A(valu("v_bfe_u32", TT, V_T3, "2", "1"))
    A(valu("v_lshl_add_u32", V_KA, TT, "9", V_KA))
    A(valu("v_lshl_add_u32", V_KA, V_TMP, "4", V_KA))
    A(valu("v_bfe_u32", V_VA, L, "2", "2"))
    T(f"s_movk_i32 s46, {VBLK}")
    A(valu("v_mul_lo_u32", V_VA, V_VA, "s46"))
    A(valu("v_lshl_add_u32", V_VA, V_TMP, "9", V_VA))
    A(valu("v_bfe_u32", TT, L, "4", "1"))
    A(valu("v_lshl_add_u32", V_VA, TT, "5", V_VA))
    A(valu("v_and_b32", TT, "1", L))
    A(valu("v_lshl_add_u32", V_VA, TT, "4", V_VA))
    A(valu("v_bfe_u32", TT, L, "1", "1"))
    A(valu("v_lshl_add_u32", V_VA, TT, "3", V_VA))
    A(valu("v_lshrrev_b32", TT, "3", V_T3))
    T("s_movk_i32 s46, 1056")
    A(valu("v_mul_lo_u32", V_QRD, TT, "s46"))
    A(valu("v_and_b32", TT, "7", V_T3))
    A(valu("v_lshl_add_u32", V_QRD, TT, "7", V_QRD))
    A(valu("v_bfe_u32", TT, V_T3, "1", "1"))
    A(valu("v_xor_b32", TT, TT, V_TMP))
    A(valu("v_lshl_add_u32", V_QRD, TT, "4", V_QRD))
    A(valu("v_add_u32", V_QRD, f"s{S_QMB}", V_QRD))
    A(valu("v_mov_b32", V_RINV[0], "0"))
    A(valu("v_mov_b32", V_RINV[1], "0"))
    if ROLE == "A":
        T(f"s_lshl_b32 s46, s{S_W}, 12")
        A(valu("v_add_u32", V_DMA, "s46", V_DMA))
        T(f"s_mul_i32 s{S_KM0}, s{S_W}, {8*KBLK}")
        T(f"s_add_u32 s{S_KM0}, s{S_KM0}, {KSLOT[0]}")
        T(f"s_mul_i32 s{S_VM0}, s{S_W}, {8*VBLK}")
        T(f"s_add_u32 s{S_VM0}, s{S_VM0}, {VSLOT[0]}")
        T(f"s_add_u32 s{S_KOFF2}, s{S_KOFF}, 4096")
        T(f"s_add_u32 s{S_VOFF2}, s{S_VOFF}, 4096")
    else:
        A(valu("v_lshlrev_b32", V_DMA, "7", L))
        T(f"s_cmp_eq_u32 s{S_W}, 2")
        T(f"s_cselect_b32 s{S_PF}, s{S_K}, s{S_V}")
        T(f"s_cselect_b32 s{S_PF+1}, s{S_K+1}, s{S_V+1}")
        T(f"s_mov_b32 s{S_PF+2}, 262144")
        T(f"s_mov_b32 s{S_PF+3}, 0x00020000")
        T(f"s_sub_u32 s46, s{S_W}, 2")
        T(f"s_lshl_b32 s{S_BQ}, s46, 16")
        T(f"s_mul_i32 s{S_BQM}, s46, {10 * QUNIT}")
        T(f"s_add_u32 s{S_BQM}, s{S_BQM}, {QBASE}")
        T(f"s_add_u32 s{S_PFOFF}, s{S_ROT}, {2 * 16384}")
        T(f"s_and_b32 s{S_PFOFF}, s{S_PFOFF}, 0x3ffff")
        T(f"s_mov_b32 m0, {QDUMMY}")
        for k in range(2 * (PD - 2) if PFMODE else 0):
            A(Ins(f"buffer_load_dword v{V_DMA}, s[{S_PF}:{S_PF+3}], s{S_PFOFF} offen lds", rd=[("v", V_DMA), ("s", "m0")], kind="dma", cost=16, tag="PF0"))
            T(f"s_add_u32 s{S_PFOFF}, s{S_PFOFF}, 8192")
            T(f"s_and_b32 s{S_PFOFF}, s{S_PFOFF}, 0x3ffff")
    A(wait_vm(("K", 0)))
    A(barrier())
    for f in range(4):
        o += k_read(f, 0)
    for ks in range(16):
        lam = ks >> 2
        if (ks & 3) == 0:
            for u, (qb, l2) in enumerate(UNITS):
                if l2 == lam:
                    A(wait_vm(("Q0", u)))
                    for ksl in range(4):
                        A(q_read(qb, 4 * lam + ksl, u))
        for qb in (0, 1):
            F = ("v", FB + 4 * (ks % 4))
            D = Sacc(0, qb)
            A(mfma32(D, F, Qfrag(qb, ks), None if ks == 0 else D))
            g = 2 * ks + qb
            if g >= 1 and (g + 7) % 2 == 0 and 4 <= (g + 7) // 2 < 16:
                o += k_read((g + 7) // 2, 0)
            if g == 27:
                o += [wait_vm(("V", 0)), wait_lgkm0(), barrier()]
                o += k_read(0, 1) + k_read(1, 1)
            if g == 29:
                o += k_read(2, 1)
            if g == 31:
                o += k_read(3, 1)
    o += it15_vm
    A(nop(7))
    A(nop(7))
    for g in row_max2(0):
        o += g
    o += flat(softmax_steps(0, 0)[:HEAD0])
    A(wait_lgkm0())
    return o


def stamp(k=0, force=False):
    if not STAMP or ((PROF or PROF2) and not force):
        return []
    return [raw("s_memtime s[60:61]", kind="salu"), raw("s_waitcnt lgkmcnt(0)", kind="wait"),
            raw("v_mov_b32 v255, s60"), raw("buffer_store_dword v255, off, s[64:67], s62"),
            raw("s_add_u32 s62, s62, 4", kind="salu")]


def dump2():
    if not (PROF2 or PROF):
        return []
    o = stamp(force=True)
    for k in range(2):
        o += [raw(f"v_mov_b32 v255, s{88+k}"), raw("buffer_store_dword v255, off, s[64:67], s62"), raw("s_add_u32 s62, s62, 4", kind="salu"),
              raw(f"s_mov_b32 s{88+k}, 0", kind="salu")]
    return o


def stamp_init():
    if not STAMP:
        return []
    o = []
    T = lambda s: o.append(raw(s, kind="salu"))
    T("s_load_dwordx2 s[64:65], s[0:1], 32")
    T("v_lshrrev_b32 v255, 6, v0")
    T("s_nop 1")
    T("v_readfirstlane_b32 s62, v255")
    T("s_waitcnt lgkmcnt(0)")
    T("s_and_b32 s65, s65, 0xffff")
    T("s_mov_b32 s67, 0x00020000")
    T("s_lshl_b32 s62, s62, 8")
    T("s_add_u32 s62, s62, s2")
    T(f"s_cmp_eq_u32 s62, {opt('swg', 0)}")
    T("s_cselect_b32 s66, 256, 0")
    T("s_mov_b32 s62, 0")
    for k in range(4):
        T(f"s_mov_b32 s{88+k}, 0")
    return o


def stamp_out(n):
    if not STAMP:
        return []
    o = [raw("s_waitcnt vmcnt(0)", kind="wait")] + stamp(force=True)
    if PROF:
        for k in range(2):
            o += [raw(f"v_mov_b32 v255, s{88+k}"), raw("buffer_store_dword v255, off, s[64:67], s62"), raw("s_add_u32 s62, s62, 4", kind="salu")]
    return o


def build_role():
    import io, contextlib
    RL = ROLE
    st = WaitState()
    G = 14
    rounds = []
    for r in range(3):
        buf = io.StringIO()
        with contextlib.redirect_stdout(buf):
            Sx = build_special(G)
            L1 = build_loop(G + 4)
            L2 = build_loop(G + 6)
        if r == 2:
            print(buf.getvalue(), end="")
            for nm, Rg in (("S", Sx), ("L", L1)):
                print(RL, nm, "loads:", " ".join(str(Rg.load(i)) for i in range(Rg.n)))
                print(RL, nm, "over24:", sum(max(0, Rg.load(i) - 24) for i in range(Rg.n)))
        sr = insert_waits(Sx.flatten(), st)
        l1 = insert_waits(L1.flatten(), st)
        l2 = insert_waits(L2.flatten(), st)
        rounds.append((sr, l1, l2))
        G += 8
    sr, l1, l2 = rounds[2]
    l1 = l2
    tx = lambda s: [x.text for x in s]
    if RL == "A":
        assert tx(rounds[2][1]) == tx(l2), "loop not steady"
    assert tx(rounds[1][0]) == tx(sr), "special not steady"
    assert tx(rounds[1][2]) == tx(l2)
    sp = {}
    mcount = 0
    for i, x in enumerate(sr):
        if x.kind == "mfma":
            if mcount in (64, 128, 192):
                j = i
                while sr[j - 1].kind == "wait":
                    j -= 1
                sp[mcount] = j
            mcount += 1
    s14, s15, s_b, s_c = sr[:sp[64]], sr[sp[64]:sp[128]], sr[sp[128]:sp[192]], sr[sp[192]:]
    vm = []
    if RL == "A":
        started = False
        last_m0 = None
        offs = [f"s_add_u32 s{r}," for r in (S_KOFF, S_KOFF2, S_VOFF, S_VOFF2)] + [f"s_and_b32 s{r}," for r in (S_KOFF, S_KOFF2, S_VOFF, S_VOFF2)]
        for x in s15:
            if x.kind == "salu" and x.text.startswith("s_add_u32 m0"):
                last_m0 = x
            if x.kind == "dma" and x.tag[0] == "K":
                started = True
            if started:
                if x.kind == "dma":
                    assert x.tag[0] in ("K", "V")
                    vm += [last_m0, nop(0), x]
                elif x.kind == "vmem_st":
                    vm.append(x)
                elif x.kind == "salu" and any(x.text.startswith(p) for p in offs):
                    vm.append(x)
    pro = prologue([uncountedcopy(x) for x in vm])
    pro_r = insert_waits(pro, WaitState())
    loop_ctl = [raw(f"s_add_u32 s{S_CNT}, s{S_CNT}, 1", kind="salu"),
                raw(f"s_cmp_lt_u32 s{S_CNT}, 6", kind="salu"),
                raw(f"s_cbranch_scc1 L_loop{RL}", kind="branch")]
    exit_ctl = [raw(f"s_add_u32 s{S_RHO}, s{S_RHO}, 1", kind="salu"),
                raw(f"s_cmp_eq_u32 s{S_RHO}, 4", kind="salu"),
                raw("s_cbranch_scc1 L_fin", kind="branch")]
    check_hazards(pro_r + s_b + exit_ctl + s_c + l1 + loop_ctl + l1 + loop_ctl + s14 + s15 + s_b + exit_ctl + s_c + l1, "main" + RL)
    names = [("l0" + RL, 0), ("l1" + RL, 1), ("s14" + RL, 0), ("s15" + RL, 1), ("s1" + RL, 1)]
    seq = [label(f"L_pro{RL}")] + pro_r + [raw(f"s_branch L_it0{RL}", kind="branch")]
    seq += [label(f"L_sa{RL}")] + dump2() + stamp() + s14 + stamp() + s15 + [label(f"L_it0{RL}")] + stamp() + s_b + exit_ctl + stamp() + s_c + stamp() + [label(f"L_loop{RL}")] + l1 + loop_ctl
    seq += [raw(f"s_branch L_sa{RL}", kind="branch")]
    rare = []
    for nm, par in names:
        r = rare_path(par, nm)
        check_hazards(r, "rare")
        rare += r
    return seq, rare


def main():
    global ROLE
    head = prologue_head()
    ROLE = "A"
    sa, ra = build_role()
    ROLE = "B"
    sb, rb = build_role()
    seq = head[:2] + stamp_init() + stamp(0, force=True) + head[2:]
    seq += [raw(f"s_cmp_ge_u32 s{S_W}, 2", kind="salu"), raw("s_cbranch_scc1 L_proB", kind="branch")]
    seq += sa + [label("L_fin")] + stamp_out(2) + [label("L_end"), raw("s_endpgm")] + sb + ra + rb + [raw("s_endpgm")]
    hdr = open(f"cdna_kernels/{NAME}.s.ref").read().split("\n")
    head = [l for l in hdr if l.startswith(";") and "@launch" not in l and "Override" not in l and "grid=ceil" not in l]
    txt = "\n".join(head) + "\n"
    txt += f"; @launch grid=(256,1,1) block=(256,1,1) lds={LDS_BYTES}\n"
    txt += f'.amdgcn_target "amdgcn-amd-amdhsa--gfx950"\n.text\n.globl {NAME}_kernel\n.p2align 8\n.type {NAME}_kernel,@function\n{NAME}_kernel:\n'
    txt += render(seq) + "\n"
    txt += f""".section .rodata,"a"
.p2align 6
.amdhsa_kernel {NAME}_kernel
  .amdhsa_next_free_vgpr 512
  .amdhsa_next_free_sgpr 96
  .amdhsa_accum_offset 256
  .amdhsa_group_segment_fixed_size 0
  .amdhsa_kernarg_size 48
  .amdhsa_user_sgpr_count 2
  .amdhsa_user_sgpr_kernarg_segment_ptr 1
  .amdhsa_system_sgpr_workgroup_id_x 1
.end_amdhsa_kernel
"""
    out = sys.argv[1] if len(sys.argv) > 1 else f"cdna_kernels/{NAME}.s"
    open(out, "w").write(txt)
    print("wrote", out, len(seq), "instructions", len(txt), "bytes")


def uncountedcopy(x):
    y = Ins(x.text, rd=x.rd, wr=x.wr, kind=x.kind, cost=x.cost, tag=x.tag)
    return y


main()
```

```python
import sys, math, struct
sys.path.insert(0, "work")
from fw import *

NAME = "standalone__mha_softmax__near_ridge"
ARGS = sys.argv[2:]
STAMP = "stamp" in ARGS
PROF = "prof" in ARGS
PROF2 = "prof2" in ARGS
PFS = 128


def opt(name, default):
    for a in ARGS:
        if a.startswith(name + "="):
            return int(a.split("=")[1])
    return default


OA = ("v", 0)
OB = ("a", 0)
QA = 128
QB = 192
SB = [128, 160]
P0 = 192
P1 = 208
FB = 216
TT = 232
V_KA, V_VA, V_DMA = 236, 237, 238
V_NMC = [239, 240]
V_L = [241, 242]
V_LT = [243, 244]
V_TMP = 245
V_QO = 246
V_T2 = 247
V_T3 = 248
V_QDMA = 249
V_QRD = 250
V_PF = 251
V_RINV = [252, 254]
V_QCUR = 253
V_TMP2 = 255

S_Q, S_K, S_V, S_O = 4, 8, 12, 16
S_XH = 3
S_W = 20
S_C = 21
S_THR = 22
S_KOFF = 23
S_VOFF = 24
S_KM0 = 25
S_VM0 = 26
S_CNT = 27
S_QS = 28
S_QSTEP = 29
S_NC = 30
S_QM = 31
S_KN = 48
S_VN = 50
S_KVN = 52
S_16K = 53
S_ON = 54
S_T = 57
S_QMB = 58
S_RHO = 59
S_KOFF2 = 68
S_VOFF2 = 69
S_PF = 72
S_PFOFF = 70
S_PFN = 76
S_WQ = 71
S_BQ = 78
S_BQM = 79
S_ROT = 80
S_ROT2 = 81
ROTM = opt('rot', 15)
PFMODE = opt('pf', 0)
QNT = ' nt' if opt('qnt', 1) else ''
STNT = ' nt' if opt('stnt', 0) else ''
KVNT = ' nt' if opt('kvnt', 1) else ''
ROLE = "A"
PD = opt("pd", 6)

KBLK, VBLK = 1040, 1088
KSLOT = [0, 16 * KBLK]
VSLOT = [32 * KBLK, 32 * KBLK + 16 * VBLK]
QBASE = 32 * KBLK + 32 * VBLK
QUNIT = 4224
QDUMMY = QBASE + 4 * 5 * QUNIT
LDS_BYTES = QDUMMY + 4224

SCALE = (256 ** -0.5) * math.log2(math.e)
HEAD = opt("head", 19)
HEAD0 = opt("head0", 12)
UNITS = [(0, 0), (1, 0), (0, 1), (1, 1), (0, 2)]
LATE = [((1, 2), 0), ((0, 3), 1), ((1, 3), 2)]


def f32bits(x):
    return struct.unpack("<I", struct.pack("<f", x))[0]


def Oacc(qb, t):
    k, lo = (OA, OB)[qb]
    return (k, lo + 16 * t)


def Qfrag(qb, ks):
    return ("a", (QA, QB)[qb] + 4 * ks)


def Sacc(buf, qb):
    return ("v", SB[buf] + 16 * qb)


def Pfrag(par, qb, s):
    if s == 0:
        return ("v", P0 + par * 8 + qb * 4)
    return ("v", P1 + qb * 4)


def S(text, rd=(), wr=()):
    return salu(text, rd=rd, wr=wr)


def k_read(f, slot):
    return [ds_read("ds_read_b128", "v", FB + 4 * (f % 4), 4, V_KA, KSLOT[slot] + 32 * f)]


def v_read(f, slot):
    t, s = f >> 1, f & 1
    b = FB + 4 * (f % 4)
    return [ds_read("ds_read_b64_tr_b16", "v", b + 2 * u, 2, V_VA, VSLOT[slot] + (2 * s + u) * 4 * VBLK + 64 * t) for u in (0, 1)]


def q_read(qb, ks, space):
    k, lo = Qfrag(qb, ks)
    return ds_read("ds_read_b128", k, lo, 4, V_QRD, space * QUNIT + 32 * (ks & 3))


def dma_unit(kind, j, four=False):
    slot = j & 1
    if kind == "K":
        base, blk, sl, srd, soff, soff2 = S_KM0, KBLK, KSLOT, S_K, S_KOFF, S_KOFF2
    else:
        base, blk, sl, srd, soff, soff2 = S_VM0, VBLK, VSLOT, S_V, S_VOFF, S_VOFF2
    rel = sl[slot] - sl[0]
    groups = []
    for half in ((0,) if four else (0, 1)):
        so = (soff, soff2)[half]
        for q in range(4):
            g = [S(f"s_add_u32 m0, s{base}, {rel + half * 4 * blk + (blk - 512) * q}", rd=[base], wr=["m0"]),
                 nop(0),
                 dma(V_DMA, srd, f"s{so}", 512 * q, tag=(kind, j), flags=KVNT)]
            if q == 3:
                g.append(S(f"s_add_u32 s{so}, s{so}, 16384", rd=[so], wr=[so]))
                g.append(S(f"s_and_b32 s{so}, s{so}, 0x3ffff", rd=[so], wr=[so]))
            groups.append(g)
    return groups


def q_dma_static(qb, lam, space, tag):
    groups = []
    for io in range(4):
        groups.append([S(f"s_add_u32 m0, s{S_QMB}, {space * QUNIT + 1056 * io}", rd=[S_QMB], wr=["m0"]),
                       S(f"s_add_u32 s40, s{S_WQ}, {qb * 16384 + lam * 128 + io * 4096}", wr=[40]),
                       dma(V_QDMA, S_Q, "s40", 0, tag=tag, flags=QNT)])
    return groups


def softmax_steps(buf, par):
    def elem(e):
        s = e >> 4
        qb = (e >> 3) & 1
        r = 8 * s + (e & 7)
        return s, qb, r
    steps = []
    for k in range(34):
        st = []
        if k < 32:
            s, qb, r = elem(k)
            st.append(valu("v_fma_f32", TT + k % 4, SB[buf] + 16 * qb + r, f"s{S_C}", V_NMC[qb]))
        if 0 <= k - 1 < 32:
            e = k - 1
            st.append(trans("v_exp_f32", TT + e % 4, TT + e % 4))
        if 0 <= k - 2 < 32:
            e = k - 2
            s, qb, r = elem(e)
            if r == 1:
                st.append(valu("v_add_f32", V_LT[qb], TT + (e - 1) % 4, TT + e % 4))
            elif r > 1:
                st.append(valu("v_add_f32", V_LT[qb], V_LT[qb], TT + e % 4))
            if r & 1:
                pk, pl = Pfrag(par, qb, s)
                st.append(valu("v_cvt_pk_bf16_f32", pl + ((r & 7) >> 1), TT + (e - 1) % 4, TT + e % 4))
        steps.append(st)
    return steps


def swap32(a, b):
    return Ins(f"v_permlane32_swap_b32 v{a}, v{b}", rd=[("v", a), ("v", b)], wr=[("v", a), ("v", b)], kind="valu")


def row_max2(buf):
    dst = [V_T2, V_T3]
    tmp = [V_TMP, V_TMP2]
    groups = []
    b = [SB[buf], SB[buf] + 16]
    groups.append([valu("v_max3_f32", dst[q], b[q], b[q] + 1, b[q] + 2) for q in (0, 1)])
    for i in range(3, 15, 2):
        groups.append([valu("v_max3_f32", dst[q], dst[q], b[q] + i, b[q] + i + 1) for q in (0, 1)])
    groups.append([valu("v_max_f32", dst[q], dst[q], b[q] + 15) for q in (0, 1)])
    g = [valu("v_mov_b32", tmp[q], dst[q]) for q in (0, 1)]
    g += [nop(1)]
    g += [swap32(tmp[q], dst[q]) for q in (0, 1)]
    g += [nop(0)]
    g += [valu("v_max_f32", dst[q], dst[q], tmp[q]) for q in (0, 1)]
    g += [valu("v_mul_f32", V_NMC[q], f"s{S_NC}", dst[q]) for q in (0, 1)]
    groups.append(g)
    return groups


def rinv_group():
    tmp = [V_TMP, V_TMP2]
    g = [valu("v_mov_b32", tmp[q], V_L[q]) for q in (0, 1)]
    g += [nop(1)]
    g += [swap32(tmp[q], V_L[q]) for q in (0, 1)]
    g += [nop(0)]
    g += [valu("v_add_f32", V_L[q], V_L[q], tmp[q]) for q in (0, 1)]
    g += [trans("v_rcp_f32", V_RINV[q], V_L[q]) for q in (0, 1)]
    return g


def row_max(buf, qb, dst, tmp):
    b = SB[buf] + 16 * qb
    out = [valu("v_max3_f32", dst, b, b + 1, b + 2)]
    for i in range(3, 15, 2):
        out.append(valu("v_max3_f32", dst, dst, b + i, b + i + 1))
    out.append(valu("v_max_f32", dst, dst, b + 15))
    out.append(valu("v_mov_b32", tmp, dst))
    out.append(nop(1))
    out.append(swap32(tmp, dst))
    out.append(nop(0))
    out.append(valu("v_max_f32", dst, dst, tmp))
    return out


def flat(steps):
    out = []
    for st in steps:
        out += st
        out.append(nop(0))
    return out


def rare_path(par, name):
    out = [label(f"L_rare{name}")]
    out.append(nop(7))
    for qb in (0, 1):
        out += row_max(par, qb, V_T2, V_TMP)
        out.append(valu("v_mul_f32", V_T2, f"s{S_NC}", V_T2))
        out.append(valu("v_min_f32", V_T2, V_T2, V_NMC[qb]))
        out.append(valu("v_sub_f32", V_T3, V_T2, V_NMC[qb]))
        out.append(trans("v_exp_f32", V_T3, V_T3))
        out.append(valu("v_mov_b32", V_NMC[qb], V_T2))
        out.append(valu("v_mul_f32", V_L[qb], V_L[qb], V_T3))
        for r in range(128):
            if qb == 0:
                out.append(valu("v_mul_f32", r, r, V_T3))
            else:
                out.append(valu("v_accvgpr_read_b32", V_TMP, ("a", r)))
                out.append(valu("v_mul_f32", V_TMP, V_TMP, V_T3))
                out.append(valu("v_accvgpr_write_b32", ("a", r), V_TMP))
    out += flat(softmax_steps(par, par))
    out.append(nop(3))
    out.append(raw(f"s_branch L_back{name}", kind="branch"))
    return out


def pk_mul(r, qb):
    sel = "op_sel_hi:[1,0]"
    p = V_RINV[qb]
    return Ins(f"v_pk_mul_f32 v[{r}:{r+1}], v[{r}:{r+1}], v[{p}:{p+1}] {sel}",
               rd=[("v", r), ("v", r + 1), ("v", V_RINV[qb])], wr=[("v", r), ("v", r + 1)], kind="valu")


V_LIN = 251
V_DR = 252
S_OD = 72
S_DF = 70
NDIR = opt('ndir', 3)


def chunk_space(k):
    return (k - NDIR) % 5


def fchunk(k):
    return (k & 1) * 16384 + (k >> 1) * 128


def epi_chunks(tp):
    Rb = 32 * tp
    items = []
    spa = chunk_space(2 * tp) * QUNIT
    spb = chunk_space(2 * tp + 1) * QUNIT
    dira = 2 * tp < NDIR
    dirb = 2 * tp + 1 < NDIR

    def wr(reg, sp, j):
        return ds_write("ds_write_b128", V_QRD, "v", reg, 4, sp + 32 * j)

    def rd(reg, sp, io):
        return ds_read("ds_read_b128", "v", reg, 4, V_LIN, sp + 1056 * io)

    def st(reg, qb, io):
        return [S(f"s_add_u32 s47, s{S_WQ}, {qb * 16384 + io * 4096}"),
                bstore("v", reg, 4, V_QDMA, S_O, "s47", 128 * tp, tag="ST", flags=STNT)]
    for tl in (0, 1):
        t = 2 * tp + tl
        for gp in (0, 1):
            o = Rb + 16 * tl + 8 * gp
            items.append(([pk_mul(o + 2 * j, 0) for j in range(4)], "a", t))
            items.append(([valu("v_cvt_pk_bf16_f32", o + e, o + 2 * e, o + 2 * e + 1) for e in range(4)] + [wr(o, spa, 2 * tl + gp)], "a", t))
    areg = [Rb, Rb + 8, Rb + 16, Rb + 24]
    astores = []
    if dira:
        items.append(([rd(areg[io], spa, io) for io in range(4)], "a", 2 * tp + 1))
        astores = [(st(areg[io], 0, io), "a", 2 * tp + 1) for io in range(4)]
    breg = [Rb + 4, Rb + 12, Rb + 20, Rb + 28]
    first = True
    for tl in (0, 1):
        t = 2 * tp + tl
        for gp in (0, 1):
            tmp = [breg[2 * gp] + e for e in range(4)] + [breg[2 * gp + 1] + e for e in range(4)]
            src = 16 * t + 8 * gp
            items.append(([valu("v_accvgpr_read_b32", tmp[e], ("a", src + e)) for e in range(4)], "b", t))
            items.append(([valu("v_accvgpr_read_b32", tmp[e], ("a", src + e)) for e in range(4, 8)], "b", t))
            items.append(([pk_mul(tmp[2 * j], 1) for j in range(4)], "b", t))
            items.append(([valu("v_cvt_pk_bf16_f32", tmp[e], tmp[2 * e], tmp[2 * e + 1]) for e in range(4)] + [wr(tmp[0], spb, 2 * tl + gp)], "b", t))
            if first:
                items += astores[:2]
                first = False
            elif astores:
                items += astores[2:]
                astores = []
    bstores = []
    if dirb:
        items.append(([rd(breg[io], spb, io) for io in range(4)], "b", 2 * tp + 1))
        bstores = [(st(breg[io], 1, io), "b", 2 * tp + 1) for io in range(4)]
    return items, bstores


DRR = [1, 7, 13, 19]
DRS = [5, 11, 17, 23]


def drain(R_, b, ldsoff, client):
    for io in range(4):
        R_.add(b + DRR[io], [ds_read("ds_read_b128", "v", V_DR, 4, V_LIN, ldsoff + 1056 * io)])
        R_.add(b + DRS[io], [S(f"s_add_u32 s47, s{S_DF}, {client * 32768 + io * 4096}"),
                             bstore("v", V_DR, 4, V_QDMA, S_OD, "s47", 0, tag="DR", flags=STNT)])


def tile_params():
    o = []
    A = lambda t: o.append([S(t)])
    A(f"s_mul_hi_u32 s42, s{S_T}, 0x55555556")
    A("s_mul_i32 s43, s42, 3")
    A(f"s_sub_u32 s43, s{S_T}, s43")
    A(f"s_add_u32 s42, s42, s{S_XH}")
    A("s_mul_i32 s44, s42, 376832")
    A("s_lshl_b32 s43, s43, 17")
    A("s_add_u32 s44, s44, s43")
    A("s_lshl_b32 s45, s42, 18")
    A(f"s_lshr_b32 s{S_ROT}, s42, 4")
    A(f"s_xor_b32 s{S_ROT}, s{S_ROT}, s42")
    A(f"s_and_b32 s{S_ROT}, s{S_ROT}, {ROTM}")
    A(f"s_lshl_b32 s{S_ROT}, s{S_ROT}, 14")
    A(f"s_add_u32 s{S_ROT2}, s{S_ROT}, 0x1000")
    A("s_sub_u32 s43, 376832, s43")
    o.append([S(f"s_cmp_lt_u32 s{S_T}, 96"), S("s_cselect_b32 s43, s43, 0"), S(f"s_cselect_b32 s{S_KVN}, 262144, 0")])
    o.append([S(f"s_add_u32 s{S_Q}, s32, s44"), S(f"s_addc_u32 s{S_Q+1}, s33, 0")])
    A(f"s_and_b32 s{S_Q+1}, s{S_Q+1}, 0xffff")
    A(f"s_mov_b32 s{S_Q+2}, s43" if not opt('noq', 0) else f"s_mov_b32 s{S_Q+2}, 0")
    o.append([S(f"s_add_u32 s{S_ON}, s38, s44"), S(f"s_addc_u32 s{S_ON+1}, s39, 0")])
    A(f"s_and_b32 s{S_ON+1}, s{S_ON+1}, 0xffff")
    A(f"s_mov_b32 s{S_ON+2}, s43" if not opt('nost', 0) else f"s_mov_b32 s{S_ON+2}, 0")
    o.append([S(f"s_add_u32 s{S_KN}, s34, s45"), S(f"s_addc_u32 s{S_KN+1}, s35, 0")])
    A(f"s_and_b32 s{S_KN+1}, s{S_KN+1}, 0xffff")
    o.append([S(f"s_add_u32 s{S_VN}, s36, s45"), S(f"s_addc_u32 s{S_VN+1}, s37, 0")])
    A(f"s_and_b32 s{S_VN+1}, s{S_VN+1}, 0xffff")
    return o


def wrap2(g, acc):
    if not PROF2:
        return g
    T = lambda t: raw(t, kind="salu", cost=0)
    out = []
    for x in g:
        if x.kind == "dma":
            out += [T("s_memtime s[82:83]"), raw("s_waitcnt lgkmcnt(0)", kind="wait", cost=0), x,
                    T("s_memtime s[84:85]"), raw("s_waitcnt lgkmcnt(0)", kind="wait", cost=0),
                    T("s_sub_u32 s82, s84, s82"), T(f"s_add_u32 s{acc}, s{acc}, s82")]
        else:
            out.append(x)
    return out


class Region:
    def __init__(self, n):
        self.n = n
        self.mf = [None] * n
        self.g = [[] for _ in range(n)]

    def add(self, gap, items):
        self.g[gap] += [x for x in items if x is not None]

    def load(self, gap):
        return sum(x.cost for x in self.g[gap])

    def place(self, seqs, name=""):
        base = [self.load(i) for i in range(self.n)]

        def attempt(level):
            ld = list(base)
            res = []
            cur = 0
            for grp, rel, dl in seqs:
                c = sum(x.cost for x in grp)
                g = max(cur, rel)
                while g <= dl and ld[g] + c > level and not (ld[g] == 0):
                    g += 1
                if g > dl:
                    return None
                ld[g] += c
                res.append(g)
                cur = g
            return res
        level = 8
        while True:
            r = attempt(level)
            if r is not None:
                break
            level += 2
            assert level < 400, "cannot place " + name
        for (grp, rel, dl), g in zip(seqs, r):
            self.g[g] += grp
        if name:
            print(f"  place {name}: level {level}")

    def flatten(self):
        out = []
        for i in range(self.n):
            if self.mf[i] is not None:
                out.append(self.mf[i])
            out += self.g[i]
        return out


def base_iteration(R_, b, role, G, name, extra59=()):
    par = G & 1
    np_ = par ^ 1
    first_of_tile = (role == 0)
    for ks in range(16):
        for qb in (0, 1):
            F = ("v", FB + 4 * (ks % 4))
            D = Sacc(np_, qb)
            R_.mf[b + 2 * ks + qb] = mfma32(D, F, Qfrag(qb, ks), None if ks == 0 else D)
    for f in range(16):
        t, s = f >> 1, f & 1
        for qb in (0, 1):
            F = ("v", FB + 4 * (f % 4))
            D = Oacc(qb, t)
            C = None if (first_of_tile and s == 0) else D
            R_.mf[b + 32 + 2 * f + qb] = mfma32(D, F, Pfrag(par, qb, s), C)
    extra59 = list(extra59)
    for f in range(4, 16):
        R_.add(b + 2 * f - 7, k_read(f, np_))
    A_ = ROLE == "A"

    def prof(w, acc):
        if not PROF:
            return list(w) + [wait_lgkm0(), barrier()]
        T = lambda t: raw(t, kind="salu", cost=0)
        return [wait_lgkm0(), T("s_memtime s[82:83]"), wait_lgkm0()] + list(w) + [T("s_memtime s[84:85]"), raw("s_waitcnt lgkmcnt(0)", kind="wait", cost=0), barrier(),
                T("s_memtime s[86:87]"), raw("s_waitcnt lgkmcnt(0)", kind="wait", cost=0),
                T("s_sub_u32 s82, s82, s92"), T("s_mov_b32 s92, s86"),
                T(f"s_add_u32 s{88 if acc == 88 else 89}, s{88 if acc == 88 else 89}, s82")]
    R_.add(b + 27, prof([wait_vm(("V", G))] if A_ else [], 88) + v_read(0, par) + v_read(1, par))
    R_.add(b + 29, v_read(2, par))
    R_.add(b + 31, v_read(3, par))
    for f in range(4, 16):
        R_.add(b + 32 + 2 * f - 7, v_read(f, par))
    R_.add(b + 59, prof([wait_vm(("K", G + 2))] if A_ else extra59, 90) + k_read(0, par) + k_read(1, par))
    R_.add(b + 61, k_read(2, par))
    R_.add(b + 63, k_read(3, par))
    if A_:
        grp = dma_unit("K", G + 3)
        for q, g in enumerate(grp):
            R_.add(b + KD[q], wrap2(g, 88))
        grp = dma_unit("V", G + 2)
        for q in range(4):
            R_.add(b + VD[q], wrap2(grp[q], 89))
        grp = dma_unit("V", G + 1)
        for q in range(4):
            R_.add(b + VD2[q], wrap2(grp[4 + q], 89))
    elif PFMODE:
        for q in range(2):
            g = [S(f"s_mov_b32 m0, {QDUMMY}", wr=["m0"]),
                 S(f"s_add_u32 s41, s{S_PFOFF}, {8192 * q}"),
                 Ins(f"buffer_load_dword v{V_DMA}, s[{S_PF}:{S_PF+3}], s41 offen lds", rd=[("v", V_DMA), ("s", "m0")], kind="dma", cost=16, tag=("PF", G))]
            if q == 1:
                g.append(S(f"s_add_u32 s{S_PFOFF}, s{S_PFOFF}, 16384"))
                g.append(S(f"s_and_b32 s{S_PFOFF}, s{S_PFOFF}, 0x3ffff"))
            R_.add(b + PFD[q], wrap2(g, 89))


KD = [29, 32, 35, 38, 41, 44, 47, 50]
VD = [60, 61, 62, 63]
VD2 = [0, 2, 4, 6]
QD = [34, 38, 42, 46]
PFD = [12, 20]


def softmax_part(R_, b, role, G, name, head_prev, head_next, next_true_max=False):
    name = name + ROLE
    par = G & 1
    np_ = par ^ 1
    st = softmax_steps(par, par)
    R_.place([(s_, b + 0, b + 28) for s_ in st[head_prev:]], name + ".tail")
    if role == 0:
        R_.add(b + 30, [valu("v_mov_b32", V_L[0], V_LT[0]), valu("v_mov_b32", V_L[1], V_LT[1])])
    else:
        R_.add(b + 29, [valu("v_add_f32", V_TMP, V_LT[0], V_LT[1])])
        R_.add(b + 30, [valu("v_cmp_nge_f32", "vcc", f"s{S_THR}", V_TMP),
                        raw(f"s_cbranch_vccnz L_rare{name}", kind="branch"),
                        label(f"L_back{name}"),
                        valu("v_add_f32", V_L[0], V_L[0], V_LT[0]),
                        valu("v_add_f32", V_L[1], V_L[1], V_LT[1])])
    st = softmax_steps(np_, np_)
    seq = []
    lo = b + 35
    if next_true_max:
        seq.append((rinv_group(), b + 32, b + 34))
        for g in row_max2(np_):
            seq.append((g, b + 34, b + 63))
    for s_ in st[:head_next]:
        seq.append((s_, lo, b + 63))
    R_.place(seq, name + ".head")


def build_loop(G):
    R_ = Region(128)
    c = S_CNT
    x59 = []
    if ROLE == "B":
        x59 = [S(f"s_cmp_lg_u32 s{c}, 5"), raw("s_cbranch_scc1 L_skipq", kind="branch"), wait_vm(("Q", G - 1)), label("L_skipq")]
    base_iteration(R_, 0, 2, G, "l0")
    base_iteration(R_, 64, 3, G + 1, "l1", extra59=x59)
    if ROLE == "B":
        pre = [S(f"s_and_b32 s42, s{c}, 1"), S("s_lshl_b32 s42, s42, 14"), S(f"s_lshr_b32 s43, s{c}, 1"),
               S("s_lshl_b32 s43, s43, 7"), S("s_or_b32 s44, s42, s43"),
               S(f"s_mul_i32 s45, s{c}, {QUNIT}"), S(f"s_add_u32 s45, s45, s{S_BQM}")]
        sel = [S(f"s_cmp_eq_u32 s{c}, 5"), S("s_cselect_b32 s44, 0x40000000, s44"),
               S(f"s_cselect_b32 s46, 0, {5 * QUNIT}"),
               S(f"s_cselect_b32 s45, {QDUMMY}, s45")]
        for k, x in enumerate(pre):
            R_.add(3 + 2 * k, [x])
        R_.add(18, sel)
        for it in (0, 1):
            b = 64 * it
            if it == 0:
                R_.add(b + 22, [S(f"s_add_u32 s{S_QS}, s44, s{S_BQ}"), S(f"s_mov_b32 s{S_QM}, s45")])
            else:
                R_.add(b + 22, [S(f"s_add_u32 s{S_QS}, s44, s{S_BQ}"), S(f"s_add_u32 s{S_QS}, s{S_QS}, 32768"), S(f"s_add_u32 s{S_QM}, s45, s46")])
            for io in range(4):
                R_.add(b + QD[io], wrap2([S(f"s_add_u32 m0, s{S_QM}, {1056 * io}", rd=[S_QM], wr=["m0"]), nop(0),
                                    dma(V_QDMA, S_Q, f"s{S_QS}", 0, tag=("Q", G + it), flags=QNT),
                                    S(f"s_add_u32 s{S_QS}, s{S_QS}, 0x1000")], 88))
        drain(R_, 0, 5 * QUNIT, 1)
        df = [S(f"s_add_u32 s76, s{c}, {NDIR + 1}"), S("s_and_b32 s77, s76, 1"), S("s_lshl_b32 s77, s77, 14"),
              S("s_lshr_b32 s76, s76, 1"), S("s_lshl_b32 s76, s76, 7"), S("s_or_b32 s76, s76, s77"),
              S(f"s_add_u32 s76, s76, s{S_BQ}")]
        for k, x in enumerate(df):
            R_.add(33 + 2 * k, [x])
        R_.add(63, [S(f"s_cmp_ge_u32 s{c}, 4"), S(f"s_cselect_b32 s{S_DF}, 0x40000000, s76")])
        drain(R_, 64, QUNIT, 0)
        R_.add(64 + 28, [valu("v_add_u32", V_LIN, f"{QUNIT}", V_LIN)])
    else:
        R_.add(64 + 4, [S(f"s_cmp_eq_u32 s{c}, 5"),
                        S(f"s_cselect_b32 s{S_K}, s{S_KN}, s{S_K}"),
                        S(f"s_cselect_b32 s{S_K+1}, s{S_KN+1}, s{S_K+1}"),
                        S(f"s_cselect_b32 s{S_K+2}, s{S_KVN}, s{S_K+2}"),
                        S(f"s_cselect_b32 s{S_KOFF}, s{S_ROT}, s{S_KOFF}"),
                        S(f"s_cselect_b32 s{S_KOFF2}, s{S_ROT2}, s{S_KOFF2}")])
    softmax_part(R_, 0, 2, G, "l0", HEAD, HEAD)
    softmax_part(R_, 64, 3, G + 1, "l1", HEAD, HEAD)
    return R_


def build_special(G):
    R_ = Region(256)
    base_iteration(R_, 0, 14, G, "s14")
    base_iteration(R_, 64, 15, G + 1, "s15")
    base_iteration(R_, 128, 0, G + 2, "s0")
    base_iteration(R_, 192, 1, G + 3, "s1")
    if ROLE == "A":
        R_.add(50, [S(f"s_mov_b32 s{S_V}, s{S_VN}"), S(f"s_mov_b32 s{S_V+1}, s{S_VN+1}"),
                    S(f"s_mov_b32 s{S_V+2}, s{S_KVN}"), S(f"s_mov_b32 s{S_VOFF}, s{S_ROT}"), S(f"s_mov_b32 s{S_VOFF2}, s{S_ROT2}")])
    for u, (qb, lam) in enumerate(UNITS):
        for ksl in range(4):
            ks = 4 * lam + ksl
            R_.add(2 * ks + qb + 2, [q_read(qb, ks, u)])
    def unit_regs(qb, lam):
        r = []
        for ksl in range(4):
            k, lo = Qfrag(qb, 4 * lam + ksl)
            r += R(k, lo, 4)
        return r
    late_start = [11, 12, 19]
    for idx, ((qb, lam), space) in enumerate(LATE):
        oq, ol = UNITS[space]
        grp = q_dma_static(qb, lam, space, ("QL", G, idx))
        grp[0] = [touch(unit_regs(oq, ol))] + grp[0]
        g0 = late_start[idx]
        for io in range(4):
            R_.add(g0 + 2 * io, grp[io])
    rd_at = [64 + LR0, 64 + LR1, 64 + LR2]
    for idx, ((qb, lam), space) in enumerate(LATE):
        R_.add(rd_at[idx], [wait_vm(("QL", G, idx))] + [q_read(qb, 4 * lam + ksl, space) for ksl in range(4)])
    softmax_part(R_, 0, 14, G, "s14", HEAD, HEAD)
    softmax_part(R_, 64, 15, G + 1, "s15", HEAD, HEAD0, next_true_max=True)
    softmax_part(R_, 128, 0, G + 2, "s0", HEAD0, HEAD)
    softmax_part(R_, 192, 1, G + 3, "s1", HEAD, HEAD)
    seq = [([valu("v_mbcnt_lo_u32_b32", V_LIN, "-1", "0"), valu("v_mbcnt_hi_u32_b32", V_LIN, "-1", V_LIN),
              valu("v_lshlrev_b32", V_LIN, "4", V_LIN), valu("v_add_u32", V_LIN, f"s{S_QMB}", V_LIN)], 64 + 30, 64 + 40)]
    pend = []
    for tp in range(4):
        items, bst = epi_chunks(tp)
        dl = 128 + 32 + 8 * tp - 1
        k = 0
        for g, kind, t in items:
            rel = 64 + 32 + 4 * t + 2 + EREL + (1 if kind == "b" else 0)
            seq.append((g, rel, dl))
            k += 1
            if pend and k in (2, 4, 6, 8):
                g2, d2 = pend.pop(0)
                seq.append((g2, rel, d2))
        assert not pend
        pend = [(g, dl) for g, kind, t in bst]
    for g2, d2 in pend:
        seq.append((g2, 0, d2))
    R_.place(seq, "epilogue")
    if ROLE == "B":
        R_.add(128 + 60, [valu("v_mbcnt_lo_u32_b32", V_LIN, "-1", "0"), valu("v_mbcnt_hi_u32_b32", V_LIN, "-1", V_LIN),
                          valu("v_lshlrev_b32", V_LIN, "4", V_LIN), valu("v_add_u32", V_LIN, f"s{S_BQM}", V_LIN)])
        R_.add(192 + 0, [S(f"s_mov_b32 s{S_OD}, s{S_O}"), S(f"s_mov_b32 s{S_OD+1}, s{S_O+1}"), S(f"s_mov_b32 s{S_OD+2}, s{S_O+2}"),
                         S(f"s_add_u32 s{S_DF}, s{S_BQ}, {fchunk(NDIR)}")])
        drain(R_, 192, 0, 0)
    seq = [([S(f"s_mov_b32 s{S_O}, s{S_ON}"), S(f"s_mov_b32 s{S_O+1}, s{S_ON+1}"), S(f"s_mov_b32 s{S_O+2}, s{S_ON+2}")], 192 + 2, 250)]
    seq.append(([S(f"s_add_u32 s{S_T}, s{S_T}, 32")], 192 + 2, 250))
    seq += [(g, 192 + 2, 250) for g in tile_params()]
    seq.append(([S(f"s_mov_b32 s{S_CNT}, 0")], 192 + 2, 250))
    R_.place(seq, "params")
    return R_


LR0 = opt("lr0", 10)
LR1 = opt("lr1", 16)
LR2 = opt("lr2", 18)
EREL = opt("erel", 4)


def prologue_head():
    o = []
    A = o.append
    T = lambda s: A(raw(s, kind="salu"))
    T("s_cmp_ge_u32 s2, 256")
    A(raw("s_cbranch_scc1 L_end", kind="branch"))
    T("s_load_dwordx4 s[32:35], s[0:1], 0")
    T("s_load_dwordx4 s[36:39], s[0:1], 16")
    T(f"s_and_b32 s{S_XH}, s2, 7")
    T(f"s_lshl_b32 s{S_XH}, s{S_XH}, 5")
    T(f"s_lshr_b32 s{S_T}, s2, 3")
    T(f"s_mov_b32 s{S_16K}, 16384")
    A(valu("v_lshrrev_b32", V_TMP, "6", 0))
    A(valu("v_and_b32", V_T2, "63", 0))
    A(valu("v_readfirstlane_b32", f"s{S_W}", V_TMP))
    A(raw("s_waitcnt lgkmcnt(0)", kind="wait"))
    return o


def prologue(it15_vm):
    o = []
    A = o.append
    T = lambda s: A(raw(s, kind="salu"))
    for g in tile_params():
        o += g
    T(f"s_mov_b32 s{S_Q+3}, 0x00020000")
    T(f"s_mov_b32 s{S_K}, s{S_KN}")
    T(f"s_mov_b32 s{S_K+1}, s{S_KN+1}")
    T(f"s_mov_b32 s{S_K+2}, 262144")
    T(f"s_mov_b32 s{S_K+3}, 0x00020000")
    T(f"s_mov_b32 s{S_V}, s{S_VN}")
    T(f"s_mov_b32 s{S_V+1}, s{S_VN+1}")
    T(f"s_mov_b32 s{S_V+2}, 262144")
    T(f"s_mov_b32 s{S_V+3}, 0x00020000")
    T(f"s_mov_b32 s{S_O}, s{S_ON}")
    T(f"s_mov_b32 s{S_O+1}, s{S_ON+1}")
    T(f"s_mov_b32 s{S_O+2}, 0")
    T(f"s_mov_b32 s{S_O+3}, 0x00020000")
    T(f"s_mov_b32 s{S_C}, {f32bits(SCALE):#x}")
    T(f"s_mov_b32 s{S_NC}, {f32bits(-SCALE):#x}")
    T(f"s_mov_b32 s{S_THR}, {f32bits(4096.0):#x}")
    T(f"s_mov_b32 s{S_KOFF}, s{S_ROT}")
    T(f"s_mov_b32 s{S_VOFF}, s{S_ROT}")
    T(f"s_mov_b32 s{S_RHO}, 0")
    T(f"s_mul_i32 s{S_KM0}, s{S_W}, {4*KBLK}")
    T(f"s_add_u32 s{S_KM0}, s{S_KM0}, {KSLOT[0]}")
    T(f"s_mul_i32 s{S_VM0}, s{S_W}, {4*VBLK}")
    T(f"s_add_u32 s{S_VM0}, s{S_VM0}, {VSLOT[0]}")
    T(f"s_mul_i32 s{S_QMB}, s{S_W}, {5*QUNIT}")
    T(f"s_add_u32 s{S_QMB}, s{S_QMB}, {QBASE}")
    T(f"s_lshl_b32 s{S_WQ}, s{S_W}, 15")
    L = V_T2
    A(valu("v_lshrrev_b32", V_TMP, "5", L))
    A(valu("v_lshlrev_b32", V_DMA, "11", V_TMP))
    A(valu("v_and_b32", V_T3, "31", L))
    A(valu("v_lshl_add_u32", V_DMA, V_T3, "4", V_DMA))
    T(f"s_lshl_b32 s46, s{S_W}, 12")
    A(valu("v_add_u32", V_DMA, "s46", V_DMA))
    A(valu("v_lshrrev_b32", TT, "3", L))
    A(valu("v_bfe_u32", TT + 1, L, "4", "1"))
    A(valu("v_and_b32", TT + 2, "7", L))
    A(valu("v_xor_b32", TT + 2, TT + 2, TT + 1))
    A(valu("v_lshlrev_b32", V_QDMA, "9", TT))
    A(valu("v_lshl_add_u32", V_QDMA, TT + 2, "4", V_QDMA))

    def issue(kind, j):
        r = []
        for g in dma_unit(kind, j, four=True):
            r += g
        return r
    o += issue("K", 0)
    for u, (qb, lam) in enumerate(UNITS):
        for g in q_dma_static(qb, lam, u, ("Q0", u)):
            o += g
    A(valu("v_lshlrev_b32", V_QO, "9", V_T3))
    A(valu("v_add_u32", V_QO, f"s{S_WQ}", V_QO))
    A(valu("v_lshl_add_u32", V_QO, V_TMP, "4", V_QO))
    for (qb, lam), _ in LATE:
        for ksl in range(4):
            ks = 4 * lam + ksl
            k, lo = Qfrag(qb, ks)
            A(bload(k, lo, 4, V_QO, S_Q, f"s{S_16K}" if qb else "0", 32 * ks, tag="QD", flags=QNT))
    o += issue("K", 1)
    o += issue("V", 0)
    A(valu("v_and_b32", V_KA, "3", V_T3))
    A(valu("v_lshrrev_b32", TT, "3", V_T3))
    A(valu("v_lshl_add_u32", V_KA, TT, "2", V_KA))
    T(f"s_movk_i32 s46, {KBLK}")
    A(valu("v_mul_lo_u32", V_KA, V_KA, "s46"))
    A(valu("v_bfe_u32", TT, V_T3, "2", "1"))
    A(valu("v_lshl_add_u32", V_KA, TT, "9", V_KA))
    A(valu("v_lshl_add_u32", V_KA, V_TMP, "4", V_KA))
    A(valu("v_bfe_u32", V_VA, L, "2", "2"))
    T(f"s_movk_i32 s46, {VBLK}")
    A(valu("v_mul_lo_u32", V_VA, V_VA, "s46"))
    A(valu("v_lshl_add_u32", V_VA, V_TMP, "9", V_VA))
    A(valu("v_bfe_u32", TT, L, "4", "1"))
    A(valu("v_lshl_add_u32", V_VA, TT, "5", V_VA))
    A(valu("v_and_b32", TT, "1", L))
    A(valu("v_lshl_add_u32", V_VA, TT, "4", V_VA))
    A(valu("v_bfe_u32", TT, L, "1", "1"))
    A(valu("v_lshl_add_u32", V_VA, TT, "3", V_VA))
    A(valu("v_lshrrev_b32", TT, "3", V_T3))
    T("s_movk_i32 s46, 1056")
    A(valu("v_mul_lo_u32", V_QRD, TT, "s46"))
    A(valu("v_and_b32", TT, "7", V_T3))
    A(valu("v_lshl_add_u32", V_QRD, TT, "7", V_QRD))
    A(valu("v_bfe_u32", TT, V_T3, "1", "1"))
    A(valu("v_xor_b32", TT, TT, V_TMP))
    A(valu("v_lshl_add_u32", V_QRD, TT, "4", V_QRD))
    A(valu("v_add_u32", V_QRD, f"s{S_QMB}", V_QRD))
    A(valu("v_mov_b32", V_RINV[0], "0"))
    A(valu("v_mov_b32", V_RINV[1], "0"))
    if ROLE == "A":
        T(f"s_lshl_b32 s46, s{S_W}, 12")
        A(valu("v_add_u32", V_DMA, "s46", V_DMA))
        T(f"s_mul_i32 s{S_KM0}, s{S_W}, {8*KBLK}")
        T(f"s_add_u32 s{S_KM0}, s{S_KM0}, {KSLOT[0]}")
        T(f"s_mul_i32 s{S_VM0}, s{S_W}, {8*VBLK}")
        T(f"s_add_u32 s{S_VM0}, s{S_VM0}, {VSLOT[0]}")
        T(f"s_add_u32 s{S_KOFF2}, s{S_KOFF}, 4096")
        T(f"s_add_u32 s{S_VOFF2}, s{S_VOFF}, 4096")
    else:
        A(valu("v_lshlrev_b32", V_DMA, "7", L))
        T(f"s_mov_b32 s{S_OD+2}, 0")
        T(f"s_mov_b32 s{S_OD+3}, 0x00020000")
        T(f"s_sub_u32 s46, s{S_W}, 2")
        T(f"s_lshl_b32 s{S_BQ}, s46, 16")
        T(f"s_mul_i32 s{S_BQM}, s46, {10 * QUNIT}")
        T(f"s_add_u32 s{S_BQM}, s{S_BQM}, {QBASE}")
    A(wait_vm(("K", 0)))
    A(barrier())
    for f in range(4):
        o += k_read(f, 0)
    for ks in range(16):
        lam = ks >> 2
        if (ks & 3) == 0:
            for u, (qb, l2) in enumerate(UNITS):
                if l2 == lam:
                    A(wait_vm(("Q0", u)))
                    for ksl in range(4):
                        A(q_read(qb, 4 * lam + ksl, u))
        for qb in (0, 1):
            F = ("v", FB + 4 * (ks % 4))
            D = Sacc(0, qb)
            A(mfma32(D, F, Qfrag(qb, ks), None if ks == 0 else D))
            g = 2 * ks + qb
            if g >= 1 and (g + 7) % 2 == 0 and 4 <= (g + 7) // 2 < 16:
                o += k_read((g + 7) // 2, 0)
            if g == 27:
                o += [wait_vm(("V", 0)), wait_lgkm0(), barrier()]
                o += k_read(0, 1) + k_read(1, 1)
            if g == 29:
                o += k_read(2, 1)
            if g == 31:
                o += k_read(3, 1)
    o += it15_vm
    A(nop(7))
    A(nop(7))
    for g in row_max2(0):
        o += g
    o += flat(softmax_steps(0, 0)[:HEAD0])
    A(wait_lgkm0())
    return o


def stamp(k=0, force=False):
    if not STAMP or ((PROF or PROF2) and not force):
        return []
    return [raw("s_memtime s[60:61]", kind="salu"), raw("s_waitcnt lgkmcnt(0)", kind="wait"),
            raw("v_mov_b32 v255, s60"), raw("buffer_store_dword v255, off, s[64:67], s62"),
            raw("s_add_u32 s62, s62, 4", kind="salu")]


def dump2():
    if not (PROF2 or PROF):
        return []
    o = stamp(force=True)
    for k in range(2):
        o += [raw(f"v_mov_b32 v255, s{88+k}"), raw("buffer_store_dword v255, off, s[64:67], s62"), raw("s_add_u32 s62, s62, 4", kind="salu"),
              raw(f"s_mov_b32 s{88+k}, 0", kind="salu")]
    return o


def stamp_init():
    if not STAMP:
        return []
    o = []
    T = lambda s: o.append(raw(s, kind="salu"))
    T("s_load_dwordx2 s[64:65], s[0:1], 32")
    T("v_lshrrev_b32 v255, 6, v0")
    T("s_nop 1")
    T("v_readfirstlane_b32 s62, v255")
    T("s_waitcnt lgkmcnt(0)")
    T("s_and_b32 s65, s65, 0xffff")
    T("s_mov_b32 s67, 0x00020000")
    T("s_lshl_b32 s62, s62, 8")
    T("s_add_u32 s62, s62, s2")
    T(f"s_cmp_eq_u32 s62, {opt('swg', 0)}")
    T("s_cselect_b32 s66, 256, 0")
    T("s_mov_b32 s62, 0")
    for k in range(4):
        T(f"s_mov_b32 s{88+k}, 0")
    return o


def stamp_out(n):
    if not STAMP:
        return []
    o = [raw("s_waitcnt vmcnt(0)", kind="wait")] + stamp(force=True)
    if PROF:
        for k in range(2):
            o += [raw(f"v_mov_b32 v255, s{88+k}"), raw("buffer_store_dword v255, off, s[64:67], s62"), raw("s_add_u32 s62, s62, 4", kind="salu")]
    return o


def build_role():
    import io, contextlib
    RL = ROLE
    st = WaitState()
    G = 14
    rounds = []
    for r in range(3):
        buf = io.StringIO()
        with contextlib.redirect_stdout(buf):
            Sx = build_special(G)
            L1 = build_loop(G + 4)
            L2 = build_loop(G + 6)
        if r == 2:
            print(buf.getvalue(), end="")
            for nm, Rg in (("S", Sx), ("L", L1)):
                print(RL, nm, "loads:", " ".join(str(Rg.load(i)) for i in range(Rg.n)))
                print(RL, nm, "over24:", sum(max(0, Rg.load(i) - 24) for i in range(Rg.n)))
        sr = insert_waits(Sx.flatten(), st)
        l1 = insert_waits(L1.flatten(), st)
        l2 = insert_waits(L2.flatten(), st)
        rounds.append((sr, l1, l2))
        G += 8
    sr, l1, l2 = rounds[2]
    l1 = l2
    tx = lambda s: [x.text for x in s]
    if RL == "A":
        assert tx(rounds[2][1]) == tx(l2), "loop not steady"
    assert tx(rounds[1][0]) == tx(sr), "special not steady"
    assert tx(rounds[1][2]) == tx(l2)
    sp = {}
    mcount = 0
    for i, x in enumerate(sr):
        if x.kind == "mfma":
            if mcount in (64, 128, 192):
                j = i
                while sr[j - 1].kind == "wait":
                    j -= 1
                sp[mcount] = j
            mcount += 1
    s14, s15, s_b, s_c = sr[:sp[64]], sr[sp[64]:sp[128]], sr[sp[128]:sp[192]], sr[sp[192]:]
    vm = []
    if RL == "A":
        started = False
        last_m0 = None
        offs = [f"s_add_u32 s{r}," for r in (S_KOFF, S_KOFF2, S_VOFF, S_VOFF2)] + [f"s_and_b32 s{r}," for r in (S_KOFF, S_KOFF2, S_VOFF, S_VOFF2)]
        for x in s15:
            if x.kind == "salu" and x.text.startswith("s_add_u32 m0"):
                last_m0 = x
            if x.kind == "dma" and x.tag[0] == "K":
                started = True
            if started:
                if x.kind == "dma":
                    assert x.tag[0] in ("K", "V")
                    vm += [last_m0, nop(0), x]
                elif x.kind == "vmem_st":
                    vm.append(x)
                elif x.kind == "salu" and any(x.text.startswith(p) for p in offs):
                    vm.append(x)
    pro = prologue([uncountedcopy(x) for x in vm])
    pro_r = insert_waits(pro, WaitState())
    loop_ctl = [raw(f"s_add_u32 s{S_CNT}, s{S_CNT}, 1", kind="salu"),
                raw(f"s_cmp_lt_u32 s{S_CNT}, 6", kind="salu"),
                raw(f"s_cbranch_scc1 L_loop{RL}", kind="branch")]
    exit_ctl = [raw(f"s_add_u32 s{S_RHO}, s{S_RHO}, 1", kind="salu"),
                raw(f"s_cmp_eq_u32 s{S_RHO}, 4", kind="salu"),
                raw("s_cbranch_scc1 L_fin", kind="branch")]
    check_hazards(pro_r + s_b + exit_ctl + s_c + l1 + loop_ctl + l1 + loop_ctl + s14 + s15 + s_b + exit_ctl + s_c + l1, "main" + RL)
    names = [("l0" + RL, 0), ("l1" + RL, 1), ("s14" + RL, 0), ("s15" + RL, 1), ("s1" + RL, 1)]
    seq = [label(f"L_pro{RL}")] + pro_r + [raw(f"s_branch L_it0{RL}", kind="branch")]
    seq += [label(f"L_sa{RL}")] + dump2() + stamp() + s14 + stamp() + s15 + [label(f"L_it0{RL}")] + stamp() + s_b + exit_ctl + stamp() + s_c + stamp() + [label(f"L_loop{RL}")] + l1 + loop_ctl
    seq += [raw(f"s_branch L_sa{RL}", kind="branch")]
    rare = []
    for nm, par in names:
        r = rare_path(par, nm)
        check_hazards(r, "rare")
        rare += r
    return seq, rare


def final_drain():
    o = [wait_lgkm0(),
         valu("v_mbcnt_lo_u32_b32", V_LIN, "-1", "0"), valu("v_mbcnt_hi_u32_b32", V_LIN, "-1", V_LIN),
         valu("v_lshlrev_b32", V_LIN, "4", V_LIN), valu("v_add_u32", V_LIN, f"s{S_QMB}", V_LIN)]
    rds, sts = [], []
    for k in range(NDIR, 8):
        u = chunk_space(k)
        for io in range(4):
            reg = 16 * u + 4 * io
            rds.append(ds_read("ds_read_b128", "v", reg, 4, V_LIN, u * QUNIT + 1056 * io))
            sts.append([S(f"s_add_u32 s47, s{S_WQ}, {fchunk(k) + io * 4096}"),
                        bstore("v", reg, 4, V_QDMA, S_O, "s47", 0, tag="ST", flags=STNT)])
    n = len(rds)
    for i in range(n + 6):
        if i < n:
            o.append(rds[i])
        if i >= 6:
            o += sts[i - 6]
    r = insert_waits(o, WaitState())
    check_hazards(r, "fin")
    return r


def main():
    global ROLE
    head = prologue_head()
    ROLE = "A"
    sa, ra = build_role()
    ROLE = "B"
    sb, rb = build_role()
    seq = head[:2] + stamp_init() + stamp(0, force=True) + head[2:]
    seq += [raw(f"s_cmp_ge_u32 s{S_W}, 2", kind="salu"), raw("s_cbranch_scc1 L_proB", kind="branch")]
    seq += sa + [label("L_fin")] + final_drain() + stamp_out(2) + [label("L_end"), raw("s_endpgm")] + sb + ra + rb + [raw("s_endpgm")]
    hdr = open(f"cdna_kernels/{NAME}.s.ref").read().split("\n")
    head = [l for l in hdr if l.startswith(";") and "@launch" not in l and "Override" not in l and "grid=ceil" not in l]
    txt = "\n".join(head) + "\n"
    txt += f"; @launch grid=(256,1,1) block=(256,1,1) lds={LDS_BYTES}\n"
    txt += f'.amdgcn_target "amdgcn-amd-amdhsa--gfx950"\n.text\n.globl {NAME}_kernel\n.p2align 8\n.type {NAME}_kernel,@function\n{NAME}_kernel:\n'
    txt += render(seq) + "\n"
    txt += f""".section .rodata,"a"
.p2align 6
.amdhsa_kernel {NAME}_kernel
  .amdhsa_next_free_vgpr 512
  .amdhsa_next_free_sgpr 96
  .amdhsa_accum_offset 256
  .amdhsa_group_segment_fixed_size 0
  .amdhsa_kernarg_size 48
  .amdhsa_user_sgpr_count 2
  .amdhsa_user_sgpr_kernarg_segment_ptr 1
  .amdhsa_system_sgpr_workgroup_id_x 1
.end_amdhsa_kernel
"""
    out = sys.argv[1] if len(sys.argv) > 1 else f"cdna_kernels/{NAME}.s"
    open(out, "w").write(txt)
    print("wrote", out, len(seq), "instructions", len(txt), "bytes")


def uncountedcopy(x):
    y = Ins(x.text, rd=x.rd, wr=x.wr, kind=x.kind, cost=x.cost, tag=x.tag)
    return y


main()
```

```python
import sys, math, struct
sys.path.insert(0, "work")
from fw import *

NAME = "standalone__mha_softmax__near_ridge"
ARGS = sys.argv[2:]
STAMP = "stamp" in ARGS
PROF = "prof" in ARGS
PROF2 = "prof2" in ARGS
PFS = 128


def opt(name, default):
    for a in ARGS:
        if a.startswith(name + "="):
            return int(a.split("=")[1])
    return default


OA = ("v", 0)
OB = ("a", 0)
QA = 128
QB = 192
SB = [128, 160]
P0 = 192
P1 = 208
FB = 216
TT = 232
V_KA, V_VA, V_DMA = 236, 237, 238
V_NMC = [239, 240]
V_L = [241, 242]
V_LT = [243, 244]
V_TMP = 245
V_QO = 246
V_T2 = 247
V_T3 = 248
V_QDMA = 249
V_QRD = 250
V_PF = 251
V_RINV = [252, 254]
V_QCUR = 253
V_TMP2 = 255

S_Q, S_K, S_V, S_O = 4, 8, 12, 16
S_XH = 3
S_W = 20
S_C = 21
S_THR = 22
S_KOFF = 23
S_VOFF = 24
S_KM0 = 25
S_VM0 = 26
S_CNT = 27
S_QS = 28
S_QSTEP = 29
S_NC = 30
S_QM = 31
S_KN = 48
S_VN = 50
S_KVN = 52
S_16K = 53
S_ON = 54
S_T = 57
S_QMB = 58
S_RHO = 59
S_KOFF2 = 68
S_VOFF2 = 69
S_PF = 72
S_PFOFF = 70
S_PFN = 76
S_WQ = 71
S_BQ = 78
S_BQM = 79
S_ROT = 80
S_ROT2 = 81
ROTM = opt('rot', 15)
PFMODE = opt('pf', 0)
QNT = ' nt' if opt('qnt', 1) else ''
STNT = ' nt' if opt('stnt', 0) else ''
KVNT = ' nt' if opt('kvnt', 1) else ''
ROLE = "A"
PD = opt("pd", 6)

KBLK, VBLK = 1040, 1088
KSLOT = [0, 16 * KBLK]
VSLOT = [32 * KBLK, 32 * KBLK + 16 * VBLK]
QBASE = 32 * KBLK + 32 * VBLK
QUNIT = 4656
QDUMMY = QBASE + 4 * 5 * QUNIT
LDS_BYTES = QDUMMY + 1024

SCALE = (256 ** -0.5) * math.log2(math.e)
HEAD = opt("head", 19)
HEAD0 = opt("head0", 12)
UNITS = [(0, 0), (1, 0), (0, 1), (1, 1), (0, 2)]
LATE = [((1, 2), 0), ((0, 3), 1), ((1, 3), 2)]


def f32bits(x):
    return struct.unpack("<I", struct.pack("<f", x))[0]


def Oacc(qb, t):
    k, lo = (OA, OB)[qb]
    return (k, lo + 16 * t)


def Qfrag(qb, ks):
    return ("a", (QA, QB)[qb] + 4 * ks)


def Sacc(buf, qb):
    return ("v", SB[buf] + 16 * qb)


def Pfrag(par, qb, s):
    if s == 0:
        return ("v", P0 + par * 8 + qb * 4)
    return ("v", P1 + qb * 4)


def S(text, rd=(), wr=()):
    return salu(text, rd=rd, wr=wr)


def k_read(f, slot):
    return [ds_read("ds_read_b128", "v", FB + 4 * (f % 4), 4, V_KA, KSLOT[slot] + 32 * f)]


def v_read(f, slot):
    t, s = f >> 1, f & 1
    b = FB + 4 * (f % 4)
    return [ds_read("ds_read_b64_tr_b16", "v", b + 2 * u, 2, V_VA, VSLOT[slot] + (2 * s + u) * 4 * VBLK + 64 * t) for u in (0, 1)]


def q_read(qb, ks, space):
    k, lo = Qfrag(qb, ks)
    return ds_read("ds_read_b128", k, lo, 4, V_QRD, space * QUNIT + 32 * (ks & 3))


def dma_unit(kind, j, four=False):
    slot = j & 1
    if kind == "K":
        base, blk, sl, srd, soff, soff2 = S_KM0, KBLK, KSLOT, S_K, S_KOFF, S_KOFF2
    else:
        base, blk, sl, srd, soff, soff2 = S_VM0, VBLK, VSLOT, S_V, S_VOFF, S_VOFF2
    rel = sl[slot] - sl[0]
    groups = []
    for half in ((0,) if four else (0, 1)):
        so = (soff, soff2)[half]
        for q in range(4):
            g = [S(f"s_add_u32 m0, s{base}, {rel + half * 4 * blk + (blk - 512) * q}", rd=[base], wr=["m0"]),
                 nop(0),
                 dma(V_DMA, srd, f"s{so}", 512 * q, tag=(kind, j), flags=KVNT)]
            if q == 3:
                g.append(S(f"s_add_u32 s{so}, s{so}, 16384", rd=[so], wr=[so]))
                g.append(S(f"s_and_b32 s{so}, s{so}, 0x3ffff", rd=[so], wr=[so]))
            groups.append(g)
    return groups


def q_dma_static(qb, lam, space, tag):
    groups = []
    for io in range(4):
        groups.append([S(f"s_add_u32 m0, s{S_QMB}, {space * QUNIT + 1056 * io}", rd=[S_QMB], wr=["m0"]),
                       S(f"s_add_u32 s40, s{S_WQ}, {qb * 16384 + lam * 128 + io * 4096}", wr=[40]),
                       dma(V_QDMA, S_Q, "s40", 0, tag=tag, flags=QNT)])
    return groups


def softmax_steps(buf, par):
    def elem(e):
        s = e >> 4
        qb = (e >> 3) & 1
        r = 8 * s + (e & 7)
        return s, qb, r
    steps = []
    for k in range(34):
        st = []
        if k < 32:
            s, qb, r = elem(k)
            st.append(valu("v_fma_f32", TT + k % 4, SB[buf] + 16 * qb + r, f"s{S_C}", V_NMC[qb]))
        if 0 <= k - 1 < 32:
            e = k - 1
            st.append(trans("v_exp_f32", TT + e % 4, TT + e % 4))
        if 0 <= k - 2 < 32:
            e = k - 2
            s, qb, r = elem(e)
            if r == 1:
                st.append(valu("v_add_f32", V_LT[qb], TT + (e - 1) % 4, TT + e % 4))
            elif r > 1:
                st.append(valu("v_add_f32", V_LT[qb], V_LT[qb], TT + e % 4))
            if r & 1:
                pk, pl = Pfrag(par, qb, s)
                st.append(valu("v_cvt_pk_bf16_f32", pl + ((r & 7) >> 1), TT + (e - 1) % 4, TT + e % 4))
        steps.append(st)
    return steps


def swap32(a, b):
    return Ins(f"v_permlane32_swap_b32 v{a}, v{b}", rd=[("v", a), ("v", b)], wr=[("v", a), ("v", b)], kind="valu")


def row_max2(buf):
    dst = [V_T2, V_T3]
    tmp = [V_TMP, V_TMP2]
    groups = []
    b = [SB[buf], SB[buf] + 16]
    groups.append([valu("v_max3_f32", dst[q], b[q], b[q] + 1, b[q] + 2) for q in (0, 1)])
    for i in range(3, 15, 2):
        groups.append([valu("v_max3_f32", dst[q], dst[q], b[q] + i, b[q] + i + 1) for q in (0, 1)])
    groups.append([valu("v_max_f32", dst[q], dst[q], b[q] + 15) for q in (0, 1)])
    g = [valu("v_mov_b32", tmp[q], dst[q]) for q in (0, 1)]
    g += [nop(1)]
    g += [swap32(tmp[q], dst[q]) for q in (0, 1)]
    g += [nop(0)]
    g += [valu("v_max_f32", dst[q], dst[q], tmp[q]) for q in (0, 1)]
    g += [valu("v_mul_f32", V_NMC[q], f"s{S_NC}", dst[q]) for q in (0, 1)]
    groups.append(g)
    return groups


def rinv_group():
    tmp = [V_TMP, V_TMP2]
    g = [valu("v_mov_b32", tmp[q], V_L[q]) for q in (0, 1)]
    g += [nop(1)]
    g += [swap32(tmp[q], V_L[q]) for q in (0, 1)]
    g += [nop(0)]
    g += [valu("v_add_f32", V_L[q], V_L[q], tmp[q]) for q in (0, 1)]
    g += [trans("v_rcp_f32", V_RINV[q], V_L[q]) for q in (0, 1)]
    return g


def row_max(buf, qb, dst, tmp):
    b = SB[buf] + 16 * qb
    out = [valu("v_max3_f32", dst, b, b + 1, b + 2)]
    for i in range(3, 15, 2):
        out.append(valu("v_max3_f32", dst, dst, b + i, b + i + 1))
    out.append(valu("v_max_f32", dst, dst, b + 15))
    out.append(valu("v_mov_b32", tmp, dst))
    out.append(nop(1))
    out.append(swap32(tmp, dst))
    out.append(nop(0))
    out.append(valu("v_max_f32", dst, dst, tmp))
    return out


def flat(steps):
    out = []
    for st in steps:
        out += st
        out.append(nop(0))
    return out


def rare_path(par, name):
    out = [label(f"L_rare{name}")]
    out.append(nop(7))
    for qb in (0, 1):
        out += row_max(par, qb, V_T2, V_TMP)
        out.append(valu("v_mul_f32", V_T2, f"s{S_NC}", V_T2))
        out.append(valu("v_min_f32", V_T2, V_T2, V_NMC[qb]))
        out.append(valu("v_sub_f32", V_T3, V_T2, V_NMC[qb]))
        out.append(trans("v_exp_f32", V_T3, V_T3))
        out.append(valu("v_mov_b32", V_NMC[qb], V_T2))
        out.append(valu("v_mul_f32", V_L[qb], V_L[qb], V_T3))
        for r in range(128):
            if qb == 0:
                out.append(valu("v_mul_f32", r, r, V_T3))
            else:
                out.append(valu("v_accvgpr_read_b32", V_TMP, ("a", r)))
                out.append(valu("v_mul_f32", V_TMP, V_TMP, V_T3))
                out.append(valu("v_accvgpr_write_b32", ("a", r), V_TMP))
    out += flat(softmax_steps(par, par))
    out.append(nop(3))
    out.append(raw(f"s_branch L_back{name}", kind="branch"))
    return out


def pk_mul(r, qb):
    sel = "op_sel_hi:[1,0]"
    p = V_RINV[qb]
    return Ins(f"v_pk_mul_f32 v[{r}:{r+1}], v[{r}:{r+1}], v[{p}:{p+1}] {sel}",
               rd=[("v", r), ("v", r + 1), ("v", V_RINV[qb])], wr=[("v", r), ("v", r + 1)], kind="valu")


def pk_muls(rs_, qb):
    if opt('pkm', 1):
        return [pk_mul(r, qb) for r in rs_]
    return [valu("v_mul_f32", r + e, r + e, V_RINV[qb]) for r in rs_ for e in (0, 1)]


V_LIN = 251
V_W = 253
V_OST = 246
S_LD1 = 76
S_LD2 = 77


def rdoff(io):
    return ((io & 1) * 18 + (io >> 1) * 148) * 16


def stoff(io):
    return (io & 1) * 1024 + (io >> 1) * 8192


V_DR = 252
S_OD = 72
S_DF = 70
NDIR = opt('ndir', 3)


def chunk_space(k):
    return (k - NDIR) % 5


def fchunk(k):
    return (k & 1) * 16384 + (k >> 1) * 128


def epi_chunks(tp, final=False):
    Rb = 32 * tp
    items = []
    spa = chunk_space(2 * tp) * QUNIT
    spb = chunk_space(2 * tp + 1) * QUNIT
    dira = 2 * tp < NDIR
    dirb = 2 * tp + 1 < NDIR
    if final:
        spa = ((2 * tp) % 5) * QUNIT
        spb = ((2 * tp + 1) % 5) * QUNIT
        dira = dirb = True

    def wr(reg, sp, j):
        return ds_write("ds_write_b128", V_W, "v", reg, 4, sp + 32 * j)

    def rd(reg, sp, io):
        return ds_read("ds_read_b128", "v", reg, 4, V_LIN, sp + rdoff(io))

    def st(reg, qb, io):
        return [S(f"s_add_u32 s47, s{S_WQ}, {qb * 16384 + stoff(io)}"),
                bstore("v", reg, 4, V_OST, S_O, "s47", 128 * tp, tag="ST", flags=STNT)]
    for tl in (0, 1):
        t = 2 * tp + tl
        for gp in (0, 1):
            o = Rb + 16 * tl + 8 * gp
            items.append((pk_muls([o + 2 * j for j in range(4)], 0), "a", t))
            items.append(([valu("v_cvt_pk_bf16_f32", o + e, o + 2 * e, o + 2 * e + 1) for e in range(4)] + [wr(o, spa, 2 * tl + gp)], "a", t))
    areg = [Rb, Rb + 8, Rb + 16, Rb + 24]
    astores = []
    if dira:
        items.append(([rd(areg[io], spa, io) for io in range(4)], "a", 2 * tp + 1))
        astores = [(st(areg[io], 0, io), "a", 2 * tp + 1) for io in range(4)]
    breg = [Rb + 4, Rb + 12, Rb + 20, Rb + 28]
    first = True
    for tl in (0, 1):
        t = 2 * tp + tl
        for gp in (0, 1):
            tmp = [breg[2 * gp] + e for e in range(4)] + [breg[2 * gp + 1] + e for e in range(4)]
            src = 16 * t + 8 * gp
            items.append(([valu("v_accvgpr_read_b32", tmp[e], ("a", src + e)) for e in range(4)], "b", t))
            items.append(([valu("v_accvgpr_read_b32", tmp[e], ("a", src + e)) for e in range(4, 8)], "b", t))
            items.append((pk_muls([tmp[2 * j] for j in range(4)], 1), "b", t))
            items.append(([valu("v_cvt_pk_bf16_f32", tmp[e], tmp[2 * e], tmp[2 * e + 1]) for e in range(4)] + [wr(tmp[0], spb, 2 * tl + gp)], "b", t))
            if first:
                items += astores[:2]
                first = False
            elif astores:
                items += astores[2:]
                astores = []
    bstores = []
    if dirb:
        items.append(([rd(breg[io], spb, io) for io in range(4)], "b", 2 * tp + 1))
        bstores = [(st(breg[io], 1, io), "b", 2 * tp + 1) for io in range(4)]
    def keep(x):
        t = x.text
        if opt('xmul', 0) and ('pk_mul' in t or 'v_mul_f32' in t): return False
        if opt('xacc', 0) and 'accvgpr_read' in t: return False
        if opt('xcvt', 0) and 'v_cvt_pk' in t: return False
        if opt('xwr', 0) and 'ds_write' in t: return False
        return True
    items = [([x for x in g if keep(x)], k, t) for g, k, t in items]
    items = [it for it in items if it[0]]
    return items, bstores


DRR = [1, 7, 13, 19]
DRS = [5, 11, 17, 23]


def drain(R_, b, ldsoff, client):
    for io in range(4):
        R_.add(b + DRR[io], [ds_read("ds_read_b128", "v", V_DR, 4, V_LIN, ldsoff + rdoff(io))])
        R_.add(b + DRS[io], [S(f"s_add_u32 s47, s{S_DF}, {client * 32768 + stoff(io)}"),
                             bstore("v", V_DR, 4, V_OST, S_OD, "s47", 0, tag="DR", flags=STNT)])


def tile_params():
    o = []
    A = lambda t: o.append([S(t)])
    A(f"s_mul_hi_u32 s42, s{S_T}, 0x55555556")
    A("s_mul_i32 s43, s42, 3")
    A(f"s_sub_u32 s43, s{S_T}, s43")
    A(f"s_add_u32 s42, s42, s{S_XH}")
    A("s_mul_i32 s44, s42, 376832")
    A("s_lshl_b32 s43, s43, 17")
    A("s_add_u32 s44, s44, s43")
    A("s_lshl_b32 s45, s42, 18")
    A(f"s_lshr_b32 s{S_ROT}, s42, 4")
    A(f"s_xor_b32 s{S_ROT}, s{S_ROT}, s42")
    A(f"s_and_b32 s{S_ROT}, s{S_ROT}, {ROTM}")
    A(f"s_lshl_b32 s{S_ROT}, s{S_ROT}, 14")
    A(f"s_add_u32 s{S_ROT2}, s{S_ROT}, 0x1000")
    A("s_sub_u32 s43, 376832, s43")
    o.append([S(f"s_cmp_lt_u32 s{S_T}, 96"), S("s_cselect_b32 s43, s43, 0"), S(f"s_cselect_b32 s{S_KVN}, 262144, 0")])
    o.append([S(f"s_add_u32 s{S_Q}, s32, s44"), S(f"s_addc_u32 s{S_Q+1}, s33, 0")])
    A(f"s_and_b32 s{S_Q+1}, s{S_Q+1}, 0xffff")
    A(f"s_mov_b32 s{S_Q+2}, s43" if not opt('noq', 0) else f"s_mov_b32 s{S_Q+2}, 0")
    o.append([S(f"s_add_u32 s{S_ON}, s38, s44"), S(f"s_addc_u32 s{S_ON+1}, s39, 0")])
    A(f"s_and_b32 s{S_ON+1}, s{S_ON+1}, 0xffff")
    A(f"s_mov_b32 s{S_ON+2}, s43" if not opt('nost', 0) else f"s_mov_b32 s{S_ON+2}, 0")
    o.append([S(f"s_add_u32 s{S_KN}, s34, s45"), S(f"s_addc_u32 s{S_KN+1}, s35, 0")])
    A(f"s_and_b32 s{S_KN+1}, s{S_KN+1}, 0xffff")
    o.append([S(f"s_add_u32 s{S_VN}, s36, s45"), S(f"s_addc_u32 s{S_VN+1}, s37, 0")])
    A(f"s_and_b32 s{S_VN+1}, s{S_VN+1}, 0xffff")
    return o


def wrap2(g, acc):
    if not PROF2:
        return g
    T = lambda t: raw(t, kind="salu", cost=0)
    out = []
    for x in g:
        if x.kind == "dma":
            out += [T("s_memtime s[82:83]"), raw("s_waitcnt lgkmcnt(0)", kind="wait", cost=0), x,
                    T("s_memtime s[84:85]"), raw("s_waitcnt lgkmcnt(0)", kind="wait", cost=0),
                    T("s_sub_u32 s82, s84, s82"), T(f"s_add_u32 s{acc}, s{acc}, s82")]
        else:
            out.append(x)
    return out


class Region:
    def __init__(self, n):
        self.n = n
        self.mf = [None] * n
        self.g = [[] for _ in range(n)]

    def add(self, gap, items):
        self.g[gap] += [x for x in items if x is not None]

    def load(self, gap):
        return sum(x.cost for x in self.g[gap])

    def place(self, seqs, name=""):
        base = [self.load(i) for i in range(self.n)]

        def attempt(level):
            ld = list(base)
            res = []
            cur = 0
            for grp, rel, dl in seqs:
                c = sum(x.cost for x in grp)
                g = max(cur, rel)
                while g <= dl and ld[g] + c > level and not (ld[g] == 0):
                    g += 1
                if g > dl:
                    return None
                ld[g] += c
                res.append(g)
                cur = g
            return res
        level = 8
        while True:
            r = attempt(level)
            if r is not None:
                break
            level += 2
            assert level < 400, "cannot place " + name
        for (grp, rel, dl), g in zip(seqs, r):
            self.g[g] += grp
        if name:
            print(f"  place {name}: level {level}")

    def flatten(self):
        out = []
        for i in range(self.n):
            if self.mf[i] is not None:
                out.append(self.mf[i])
            out += self.g[i]
        return out


def base_iteration(R_, b, role, G, name, extra59=()):
    par = G & 1
    np_ = par ^ 1
    first_of_tile = (role == 0)
    for ks in range(16):
        for qb in (0, 1):
            F = ("v", FB + 4 * (ks % 4))
            D = Sacc(np_, qb)
            R_.mf[b + 2 * ks + qb] = mfma32(D, F, Qfrag(qb, ks), None if ks == 0 else D)
    for f in range(16):
        t, s = f >> 1, f & 1
        for qb in (0, 1):
            F = ("v", FB + 4 * (f % 4))
            D = Oacc(qb, t)
            C = None if (first_of_tile and s == 0) else D
            R_.mf[b + 32 + 2 * f + qb] = mfma32(D, F, Pfrag(par, qb, s), C)
    extra59 = list(extra59)
    for f in range(4, 16):
        R_.add(b + 2 * f - 7, k_read(f, np_))
    A_ = ROLE == "A"

    def prof(w, acc):
        if not PROF:
            return list(w) + [wait_lgkm0(), barrier()]
        T = lambda t: raw(t, kind="salu", cost=0)
        return [wait_lgkm0(), T("s_memtime s[82:83]"), wait_lgkm0()] + list(w) + [T("s_memtime s[84:85]"), raw("s_waitcnt lgkmcnt(0)", kind="wait", cost=0), barrier(),
                T("s_memtime s[86:87]"), raw("s_waitcnt lgkmcnt(0)", kind="wait", cost=0),
                T("s_sub_u32 s82, s82, s92"), T("s_mov_b32 s92, s86"),
                T(f"s_add_u32 s{88 if acc == 88 else 89}, s{88 if acc == 88 else 89}, s82")]
    R_.add(b + 27, prof([wait_vm(("V", G))] if A_ else [], 88) + v_read(0, par) + v_read(1, par))
    R_.add(b + 29, v_read(2, par))
    R_.add(b + 31, v_read(3, par))
    for f in range(4, 16):
        R_.add(b + 32 + 2 * f - 7, v_read(f, par))
    R_.add(b + 59, prof([wait_vm(("K", G + 2))] if A_ else extra59, 90) + k_read(0, par) + k_read(1, par))
    R_.add(b + 61, k_read(2, par))
    R_.add(b + 63, k_read(3, par))
    if A_:
        grp = dma_unit("K", G + 3)
        for q, g in enumerate(grp):
            R_.add(b + KD[q], wrap2(g, 88))
        grp = dma_unit("V", G + 2)
        for q in range(4):
            R_.add(b + VD[q], wrap2(grp[q], 89))
        grp = dma_unit("V", G + 1)
        for q in range(4):
            R_.add(b + VD2[q], wrap2(grp[4 + q], 89))
    elif PFMODE:
        for q in range(2):
            g = [S(f"s_mov_b32 m0, {QDUMMY}", wr=["m0"]),
                 S(f"s_add_u32 s41, s{S_PFOFF}, {8192 * q}"),
                 Ins(f"buffer_load_dword v{V_DMA}, s[{S_PF}:{S_PF+3}], s41 offen lds", rd=[("v", V_DMA), ("s", "m0")], kind="dma", cost=16, tag=("PF", G))]
            if q == 1:
                g.append(S(f"s_add_u32 s{S_PFOFF}, s{S_PFOFF}, 16384"))
                g.append(S(f"s_and_b32 s{S_PFOFF}, s{S_PFOFF}, 0x3ffff"))
            R_.add(b + PFD[q], wrap2(g, 89))


KD = [29, 32, 35, 38, 41, 44, 47, 50]
VD = [60, 61, 62, 63]
VD2 = [0, 2, 4, 6]
QD = [34, 38, 42, 46]
PFD = [12, 20]


def softmax_part(R_, b, role, G, name, head_prev, head_next, next_true_max=False):
    name = name + ROLE
    par = G & 1
    np_ = par ^ 1
    st = softmax_steps(par, par)
    R_.place([(s_, b + 0, b + 28) for s_ in st[head_prev:]], name + ".tail")
    if role == 0:
        R_.add(b + 30, [valu("v_mov_b32", V_L[0], V_LT[0]), valu("v_mov_b32", V_L[1], V_LT[1])])
    else:
        R_.add(b + 29, [valu("v_add_f32", V_TMP, V_LT[0], V_LT[1])])
        R_.add(b + 30, [valu("v_cmp_nge_f32", "vcc", f"s{S_THR}", V_TMP),
                        raw(f"s_cbranch_vccnz L_rare{name}", kind="branch"),
                        label(f"L_back{name}"),
                        valu("v_add_f32", V_L[0], V_L[0], V_LT[0]),
                        valu("v_add_f32", V_L[1], V_L[1], V_LT[1])])
    st = softmax_steps(np_, np_)
    seq = []
    lo = b + 35
    if next_true_max:
        seq.append((rinv_group(), b + 32, b + 34))
        for g in row_max2(np_):
            seq.append((g, b + 34, b + 63))
    for s_ in st[:head_next]:
        seq.append((s_, lo, b + 63))
    R_.place(seq, name + ".head")


def build_loop(G):
    R_ = Region(128)
    c = S_CNT
    x59 = []
    if ROLE == "B":
        x59 = [S(f"s_cmp_lg_u32 s{c}, 5"), raw("s_cbranch_scc1 L_skipq", kind="branch"), wait_vm(("Q", G - 1)), label("L_skipq")]
    base_iteration(R_, 0, 2, G, "l0")
    base_iteration(R_, 64, 3, G + 1, "l1", extra59=x59)
    if ROLE == "B":
        pre = [S(f"s_and_b32 s42, s{c}, 1"), S("s_lshl_b32 s42, s42, 14"), S(f"s_lshr_b32 s43, s{c}, 1"),
               S("s_lshl_b32 s43, s43, 7"), S("s_or_b32 s44, s42, s43"),
               S(f"s_mul_i32 s45, s{c}, {QUNIT}"), S(f"s_add_u32 s45, s45, s{S_BQM}")]
        sel = [S(f"s_cmp_eq_u32 s{c}, 5"), S("s_cselect_b32 s44, 0x40000000, s44"),
               S(f"s_cselect_b32 s46, 0, {5 * QUNIT}"),
               S(f"s_cselect_b32 s{S_QSTEP}, 0, 1056"),
               S(f"s_cselect_b32 s45, {QDUMMY}, s45")]
        for k, x in enumerate(pre):
            R_.add(3 + 2 * k, [x])
        R_.add(18, sel)
        for it in (0, 1):
            b = 64 * it
            if it == 0:
                R_.add(b + 22, [S(f"s_add_u32 s{S_QS}, s44, s{S_BQ}"), S(f"s_mov_b32 s{S_QM}, s45")])
            else:
                R_.add(b + 22, [S(f"s_add_u32 s{S_QS}, s44, s{S_BQ}"), S(f"s_add_u32 s{S_QS}, s{S_QS}, 32768"), S(f"s_add_u32 s{S_QM}, s45, s46")])
            for io in range(4):
                R_.add(b + QD[io], wrap2([S(f"s_mov_b32 m0, s{S_QM}", rd=[S_QM], wr=["m0"]), S(f"s_add_u32 s{S_QM}, s{S_QM}, s{S_QSTEP}"),
                                    dma(V_QDMA, S_Q, f"s{S_QS}", 0, tag=("Q", G + it), flags=QNT),
                                    S(f"s_add_u32 s{S_QS}, s{S_QS}, 0x1000")], 88))
        drain(R_, 0, 5 * QUNIT, 1)
        df = [S(f"s_add_u32 s92, s{c}, {NDIR + 1}"), S("s_and_b32 s93, s92, 1"), S("s_lshl_b32 s93, s93, 14"),
              S("s_lshr_b32 s92, s92, 1"), S("s_lshl_b32 s92, s92, 7"), S("s_or_b32 s92, s92, s93"),
              S(f"s_add_u32 s92, s92, s{S_BQ}")]
        for k, x in enumerate(df):
            R_.add(33 + 2 * k, [x])
        R_.add(63, [S(f"s_cmp_ge_u32 s{c}, 4"), S(f"s_cselect_b32 s{S_DF}, 0x40000000, s92"), S(f"s_cselect_b32 s93, 0, {QUNIT}")])
        drain(R_, 64, QUNIT, 0)
        R_.add(64 + 28, [valu("v_add_u32", V_LIN, "s93", V_LIN)])
    else:
        R_.add(64 + 4, [S(f"s_cmp_eq_u32 s{c}, 5"),
                        S(f"s_cselect_b32 s{S_K}, s{S_KN}, s{S_K}"),
                        S(f"s_cselect_b32 s{S_K+1}, s{S_KN+1}, s{S_K+1}"),
                        S(f"s_cselect_b32 s{S_K+2}, s{S_KVN}, s{S_K+2}"),
                        S(f"s_cselect_b32 s{S_KOFF}, s{S_ROT}, s{S_KOFF}"),
                        S(f"s_cselect_b32 s{S_KOFF2}, s{S_ROT2}, s{S_KOFF2}")])
    softmax_part(R_, 0, 2, G, "l0", HEAD, HEAD)
    softmax_part(R_, 64, 3, G + 1, "l1", HEAD, HEAD)
    return R_


def build_special(G):
    R_ = Region(256)
    base_iteration(R_, 0, 14, G, "s14")
    base_iteration(R_, 64, 15, G + 1, "s15")
    base_iteration(R_, 128, 0, G + 2, "s0")
    base_iteration(R_, 192, 1, G + 3, "s1")
    if opt('fine', 0):
        for g in range(0, 256, opt('fine', 0)):
            if g % 64:
                R_.add(g, stamp())
    if ROLE == "A":
        R_.add(50, [S(f"s_mov_b32 s{S_V}, s{S_VN}"), S(f"s_mov_b32 s{S_V+1}, s{S_VN+1}"),
                    S(f"s_mov_b32 s{S_V+2}, s{S_KVN}"), S(f"s_mov_b32 s{S_VOFF}, s{S_ROT}"), S(f"s_mov_b32 s{S_VOFF2}, s{S_ROT2}")])
    for u, (qb, lam) in enumerate(UNITS):
        for ksl in range(4):
            ks = 4 * lam + ksl
            R_.add(2 * ks + qb + 2, [q_read(qb, ks, u)])
    def unit_regs(qb, lam):
        r = []
        for ksl in range(4):
            k, lo = Qfrag(qb, 4 * lam + ksl)
            r += R(k, lo, 4)
        return r
    late_start = [11, 12, 19]
    for idx, ((qb, lam), space) in enumerate(LATE):
        oq, ol = UNITS[space]
        grp = q_dma_static(qb, lam, space, ("QL", G, idx))
        grp[0] = [touch(unit_regs(oq, ol))] + grp[0]
        g0 = late_start[idx]
        for io in range(4):
            R_.add(g0 + 2 * io, grp[io])
    rd_at = [64 + LR0, 64 + LR1, 64 + LR2]
    for idx, ((qb, lam), space) in enumerate(LATE):
        R_.add(rd_at[idx], [wait_vm(("QL", G, idx))] + [q_read(qb, 4 * lam + ksl, space) for ksl in range(4)])
    softmax_part(R_, 0, 14, G, "s14", HEAD, HEAD)
    softmax_part(R_, 64, 15, G + 1, "s15", HEAD, HEAD0, next_true_max=True)
    softmax_part(R_, 128, 0, G + 2, "s0", HEAD0, HEAD)
    softmax_part(R_, 192, 1, G + 3, "s1", HEAD, HEAD)
    R_.add(64 + 26, [valu("v_mbcnt_lo_u32_b32", V_W, "-1", "0"), valu("v_mbcnt_hi_u32_b32", V_W, "-1", V_W),
                     valu("v_and_b32", V_T2, "31", V_W), valu("v_mul_u32_u24", V_T3, "0x90", V_T2)])
    R_.add(64 + 28, [valu("v_lshrrev_b32", V_T2, "4", V_T2), valu("v_lshl_add_u32", V_T3, V_T2, "6", V_T3),
                     valu("v_lshrrev_b32", V_W, "5", V_W), valu("v_lshl_add_u32", V_W, V_W, "4", V_T3),
                     valu("v_add_u32", V_W, f"s{S_QMB}", V_W)])
    seq = []
    if ROLE == "B":
        seq.append(([valu("v_add_u32", V_LIN, f"s{S_LD1}", V_LIN)], 64 + 30, 64 + 40))
    pend = []
    for tp in range(4):
        items, bst = epi_chunks(tp)
        dl = 128 + 32 + 8 * tp - 1
        k = 0
        for g, kind, t in items:
            rel = 64 + 32 + 4 * t + 2 + EREL + (1 if kind == "b" else 0)
            seq.append((g, rel, dl))
            k += 1
            if pend and k in (2, 4, 6, 8):
                g2, d2 = pend.pop(0)
                seq.append((g2, rel, d2))
        assert not pend
        pend = [(g, dl) for g, kind, t in bst]
    for g2, d2 in pend:
        seq.append((g2, 0, d2))
    R_.place(seq, "epilogue")
    if ROLE == "B":
        R_.add(192 + 0, [valu("v_add_u32", V_LIN, f"s{S_LD2}", V_LIN),
                         S(f"s_mov_b32 s{S_OD}, s{S_O}"), S(f"s_mov_b32 s{S_OD+1}, s{S_O+1}"), S(f"s_mov_b32 s{S_OD+2}, s{S_O+2}"),
                         S(f"s_add_u32 s{S_DF}, s{S_BQ}, {fchunk(NDIR)}")])
        drain(R_, 192, 0, 0)
    seq = [([S(f"s_mov_b32 s{S_O}, s{S_ON}"), S(f"s_mov_b32 s{S_O+1}, s{S_ON+1}"), S(f"s_mov_b32 s{S_O+2}, s{S_ON+2}")], 192 + 2, 250)]
    seq.append(([S(f"s_add_u32 s{S_T}, s{S_T}, 32")], 192 + 2, 250))
    seq += [(g, 192 + 2, 250) for g in tile_params()]
    seq.append(([S(f"s_mov_b32 s{S_CNT}, 0")], 192 + 2, 250))
    R_.place(seq, "params")
    return R_


def build_final(G, stf):
    par = G & 1
    name = "f15" + ROLE
    pre = []
    pre += flat(softmax_steps(par, par)[HEAD:])
    pre += [valu("v_add_f32", V_TMP, V_LT[0], V_LT[1]), nop(0),
            valu("v_cmp_nge_f32", "vcc", f"s{S_THR}", V_TMP),
            raw(f"s_cbranch_vccnz L_rare{name}", kind="branch"),
            label(f"L_back{name}"),
            valu("v_add_f32", V_L[0], V_L[0], V_LT[0]),
            valu("v_add_f32", V_L[1], V_L[1], V_LT[1])]
    pre += [wait_vm(("V", G)), wait_vm(("QL", G - 1, 2)), wait_lgkm0(), barrier()] + v_read(0, par) + v_read(1, par) + v_read(2, par) + v_read(3, par)
    pre += rinv_group()
    pre += [valu("v_mbcnt_lo_u32_b32", V_W, "-1", "0"), valu("v_mbcnt_hi_u32_b32", V_W, "-1", V_W),
            valu("v_and_b32", V_T2, "31", V_W), valu("v_mul_u32_u24", V_T3, "0x90", V_T2),
            valu("v_lshrrev_b32", V_T2, "4", V_T2), valu("v_lshl_add_u32", V_T3, V_T2, "6", V_T3),
            valu("v_lshrrev_b32", V_W, "5", V_W), valu("v_lshl_add_u32", V_W, V_W, "4", V_T3),
            valu("v_add_u32", V_W, f"s{S_QMB}", V_W)]
    if ROLE == "B":
        pre.append(valu("v_add_u32", V_LIN, f"s{S_LD1}", V_LIN))
    pre.append(nop(3))
    N = 32 + 48
    R_ = Region(N)
    for f in range(16):
        t, s_ = f >> 1, f & 1
        for qb in (0, 1):
            F = ("v", FB + 4 * (f % 4))
            D = Oacc(qb, t)
            R_.mf[2 * f + qb] = mfma32(D, F, Pfrag(par, qb, s_), D)
    for f in range(4, 16):
        R_.add(2 * f - 7, v_read(f, par))
    seq = []
    pend = []
    for tp in range(4):
        items, bst = epi_chunks(tp, final=True)
        k = 0
        for g, kind, t in items:
            rel = 4 * t + 2 + opt('frel', 5) + (1 if kind == "b" else 0)
            seq.append((g, rel, N - 1))
            k += 1
            if pend and k in (2, 4, 6, 8):
                seq.append((pend.pop(0), rel, N - 1))
        assert not pend
        pend = [g for g, kind, t in bst]
    for g2 in pend:
        seq.append((g2, 0, N - 1))
    R_.place(seq, "final")
    R_.g[31] = R_.g[31] + [nop(7), nop(7)]
    r = insert_waits(pre + R_.flatten(), stf)
    return r


LR0 = opt("lr0", 10)
LR1 = opt("lr1", 16)
LR2 = opt("lr2", 18)
EREL = opt("erel", 4)


def prologue_head():
    o = []
    A = o.append
    T = lambda s: A(raw(s, kind="salu"))
    T("s_cmp_ge_u32 s2, 256")
    A(raw("s_cbranch_scc1 L_end", kind="branch"))
    T("s_load_dwordx4 s[32:35], s[0:1], 0")
    T("s_load_dwordx4 s[36:39], s[0:1], 16")
    T(f"s_and_b32 s{S_XH}, s2, 7")
    T(f"s_lshl_b32 s{S_XH}, s{S_XH}, 5")
    T(f"s_lshr_b32 s{S_T}, s2, 3")
    T(f"s_mov_b32 s{S_16K}, 16384")
    A(valu("v_lshrrev_b32", V_TMP, "6", 0))
    A(valu("v_and_b32", V_T2, "63", 0))
    A(valu("v_readfirstlane_b32", f"s{S_W}", V_TMP))
    A(raw("s_waitcnt lgkmcnt(0)", kind="wait"))
    return o


def prologue(it15_vm):
    o = []
    A = o.append
    T = lambda s: A(raw(s, kind="salu"))
    for g in tile_params():
        o += g
    T(f"s_mov_b32 s{S_Q+3}, 0x00020000")
    T(f"s_mov_b32 s{S_K}, s{S_KN}")
    T(f"s_mov_b32 s{S_K+1}, s{S_KN+1}")
    T(f"s_mov_b32 s{S_K+2}, 262144")
    T(f"s_mov_b32 s{S_K+3}, 0x00020000")
    T(f"s_mov_b32 s{S_V}, s{S_VN}")
    T(f"s_mov_b32 s{S_V+1}, s{S_VN+1}")
    T(f"s_mov_b32 s{S_V+2}, 262144")
    T(f"s_mov_b32 s{S_V+3}, 0x00020000")
    T(f"s_mov_b32 s{S_O}, s{S_ON}")
    T(f"s_mov_b32 s{S_O+1}, s{S_ON+1}")
    T(f"s_mov_b32 s{S_O+2}, 0")
    T(f"s_mov_b32 s{S_O+3}, 0x00020000")
    T(f"s_mov_b32 s{S_C}, {f32bits(SCALE):#x}")
    T(f"s_mov_b32 s{S_NC}, {f32bits(-SCALE):#x}")
    T(f"s_mov_b32 s{S_THR}, {f32bits(4096.0):#x}")
    T(f"s_mov_b32 s{S_KOFF}, s{S_ROT}")
    T(f"s_mov_b32 s{S_VOFF}, s{S_ROT}")
    T(f"s_mov_b32 s{S_RHO}, 0")
    T(f"s_mul_i32 s{S_KM0}, s{S_W}, {4*KBLK}")
    T(f"s_add_u32 s{S_KM0}, s{S_KM0}, {KSLOT[0]}")
    T(f"s_mul_i32 s{S_VM0}, s{S_W}, {4*VBLK}")
    T(f"s_add_u32 s{S_VM0}, s{S_VM0}, {VSLOT[0]}")
    T(f"s_mul_i32 s{S_QMB}, s{S_W}, {5*QUNIT}")
    T(f"s_add_u32 s{S_QMB}, s{S_QMB}, {QBASE}")
    T(f"s_lshl_b32 s{S_WQ}, s{S_W}, 15")
    L = V_T2
    A(valu("v_lshrrev_b32", V_TMP, "5", L))
    A(valu("v_lshlrev_b32", V_DMA, "11", V_TMP))
    A(valu("v_and_b32", V_T3, "31", L))
    A(valu("v_lshl_add_u32", V_DMA, V_T3, "4", V_DMA))
    T(f"s_lshl_b32 s46, s{S_W}, 12")
    A(valu("v_add_u32", V_DMA, "s46", V_DMA))
    A(valu("v_lshrrev_b32", TT, "3", L))
    A(valu("v_bfe_u32", TT + 1, L, "4", "1"))
    A(valu("v_and_b32", TT + 2, "7", L))
    A(valu("v_xor_b32", TT + 2, TT + 2, TT + 1))
    A(valu("v_lshlrev_b32", V_QDMA, "9", TT))
    A(valu("v_lshl_add_u32", V_QDMA, TT + 2, "4", V_QDMA))

    def issue(kind, j):
        r = []
        for g in dma_unit(kind, j, four=True):
            r += g
        return r
    o += issue("K", 0)
    for u, (qb, lam) in enumerate(UNITS):
        for g in q_dma_static(qb, lam, u, ("Q0", u)):
            o += g
    A(valu("v_lshrrev_b32", TT, "3", V_T3))
    T("s_movk_i32 s46, 1056")
    A(valu("v_mul_lo_u32", V_QRD, TT, "s46"))
    A(valu("v_and_b32", TT, "7", V_T3))
    A(valu("v_lshl_add_u32", V_QRD, TT, "7", V_QRD))
    A(valu("v_bfe_u32", TT, V_T3, "1", "1"))
    A(valu("v_xor_b32", TT, TT, V_TMP))
    A(valu("v_lshl_add_u32", V_QRD, TT, "4", V_QRD))
    A(valu("v_add_u32", V_QRD, f"s{S_QMB}", V_QRD))
    LATE_CODE = []
    for idx, ((qb, lam), space) in enumerate(LATE):
        oq, ol = UNITS[space]
        LATE_CODE.append(wait_vm(("Q0", space)))
        for ksl in range(4):
            LATE_CODE.append(q_read(oq, 4 * ol + ksl, space))
        LATE_CODE.append(wait_lgkm0())
        for g in q_dma_static(qb, lam, space, ("QL0", idx)):
            LATE_CODE += g
    KV1 = issue("K", 1) + issue("V", 0)
    if opt('kvfirst', 0):
        o += KV1
    A(valu("v_and_b32", V_KA, "3", V_T3))
    A(valu("v_lshrrev_b32", TT, "3", V_T3))
    A(valu("v_lshl_add_u32", V_KA, TT, "2", V_KA))
    T(f"s_movk_i32 s46, {KBLK}")
    A(valu("v_mul_lo_u32", V_KA, V_KA, "s46"))
    A(valu("v_bfe_u32", TT, V_T3, "2", "1"))
    A(valu("v_lshl_add_u32", V_KA, TT, "9", V_KA))
    A(valu("v_lshl_add_u32", V_KA, V_TMP, "4", V_KA))
    A(valu("v_bfe_u32", V_VA, L, "2", "2"))
    T(f"s_movk_i32 s46, {VBLK}")
    A(valu("v_mul_lo_u32", V_VA, V_VA, "s46"))
    A(valu("v_lshl_add_u32", V_VA, V_TMP, "9", V_VA))
    A(valu("v_bfe_u32", TT, L, "4", "1"))
    A(valu("v_lshl_add_u32", V_VA, TT, "5", V_VA))
    A(valu("v_and_b32", TT, "1", L))
    A(valu("v_lshl_add_u32", V_VA, TT, "4", V_VA))
    A(valu("v_bfe_u32", TT, L, "1", "1"))
    A(valu("v_lshl_add_u32", V_VA, TT, "3", V_VA))
    A(valu("v_bfe_u32", TT, L, "3", "2"))
    A(valu("v_lshrrev_b32", TT + 1, "5", L))
    A(valu("v_lshl_add_u32", TT, TT, "2", TT + 1))
    A(valu("v_and_b32", TT + 1, "7", L))
    A(valu("v_lshlrev_b32", V_OST, "9", TT))
    A(valu("v_lshl_add_u32", V_OST, TT + 1, "4", V_OST))
    A(valu("v_mul_u32_u24", V_LIN, "0x90", TT))
    A(valu("v_lshl_add_u32", V_LIN, TT + 1, "4", V_LIN))
    A(valu("v_add_u32", V_LIN, f"s{S_QMB}", V_LIN))
    A(valu("v_mul_u32_u24", V_W, "0x90", V_T3))
    A(valu("v_lshrrev_b32", TT, "4", V_T3))
    A(valu("v_lshl_add_u32", V_W, TT, "6", V_W))
    A(valu("v_lshl_add_u32", V_W, V_TMP, "4", V_W))
    A(valu("v_add_u32", V_W, f"s{S_QMB}", V_W))
    o += LATE_CODE
    if not opt('kvfirst', 0):
        o += KV1
    if ROLE == "A":
        T(f"s_lshl_b32 s46, s{S_W}, 12")
        A(valu("v_add_u32", V_DMA, "s46", V_DMA))
        T(f"s_mul_i32 s{S_KM0}, s{S_W}, {8*KBLK}")
        T(f"s_add_u32 s{S_KM0}, s{S_KM0}, {KSLOT[0]}")
        T(f"s_mul_i32 s{S_VM0}, s{S_W}, {8*VBLK}")
        T(f"s_add_u32 s{S_VM0}, s{S_VM0}, {VSLOT[0]}")
        T(f"s_add_u32 s{S_KOFF2}, s{S_KOFF}, 4096")
        T(f"s_add_u32 s{S_VOFF2}, s{S_VOFF}, 4096")
    else:
        A(valu("v_lshlrev_b32", V_DMA, "7", L))
        T(f"s_mov_b32 s{S_OD+2}, 0")
        T(f"s_mov_b32 s{S_OD+3}, 0x00020000")
        T(f"s_sub_u32 s46, s{S_W}, 2")
        T(f"s_lshl_b32 s{S_BQ}, s46, 16")
        T(f"s_mul_i32 s{S_BQM}, s46, {10 * QUNIT}")
        T(f"s_add_u32 s{S_BQM}, s{S_BQM}, {QBASE}")
        T(f"s_sub_u32 s{S_LD1}, s{S_QMB}, s{S_BQM}")
        T(f"s_sub_u32 s{S_LD2}, s{S_BQM}, s{S_QMB}")
        T(f"s_sub_u32 s{S_LD1}, s{S_LD1}, {4 * QUNIT}")
    A(wait_vm(("K", 0)))
    A(barrier())
    for f in range(4):
        o += k_read(f, 0)
    for ks in range(16):
        lam = ks >> 2
        if (ks & 3) == 0:
            for u, (qb, l2) in enumerate(UNITS):
                if l2 == lam and u >= len(LATE):
                    A(wait_vm(("Q0", u)))
                    for ksl in range(4):
                        A(q_read(qb, 4 * lam + ksl, u))
            for idx, ((qb, l2), space) in enumerate(LATE):
                if l2 == lam:
                    A(wait_vm(("QL0", idx)))
                    for ksl in range(4):
                        A(q_read(qb, 4 * lam + ksl, space))
        for qb in (0, 1):
            F = ("v", FB + 4 * (ks % 4))
            D = Sacc(0, qb)
            A(mfma32(D, F, Qfrag(qb, ks), None if ks == 0 else D))
            g = 2 * ks + qb
            if g >= 1 and (g + 7) % 2 == 0 and 4 <= (g + 7) // 2 < 16:
                o += k_read((g + 7) // 2, 0)
            if g == 27:
                o += [wait_vm(("V", 0)), wait_lgkm0(), barrier()]
                o += k_read(0, 1) + k_read(1, 1)
            if g == 29:
                o += k_read(2, 1)
            if g == 31:
                o += k_read(3, 1)
    o += it15_vm
    A(nop(7))
    A(nop(7))
    for g in row_max2(0):
        o += g
    o += flat(softmax_steps(0, 0)[:HEAD0])
    A(wait_lgkm0())
    return o


def stamp(k=0, force=False):
    if not STAMP or ((PROF or PROF2) and not force):
        return []
    return [raw("s_memrealtime s[60:61]" if opt('rt', 0) else "s_memtime s[60:61]", kind="salu"), raw("s_waitcnt lgkmcnt(0)", kind="wait"),
            raw("v_mov_b32 v255, s60"), raw("buffer_store_dword v255, off, s[64:67], s62"),
            raw("s_add_u32 s62, s62, 4", kind="salu")]


def dump2():
    if not (PROF2 or PROF):
        return []
    o = stamp(force=True)
    for k in range(2):
        o += [raw(f"v_mov_b32 v255, s{88+k}"), raw("buffer_store_dword v255, off, s[64:67], s62"), raw("s_add_u32 s62, s62, 4", kind="salu"),
              raw(f"s_mov_b32 s{88+k}, 0", kind="salu")]
    return o


def stamp_init():
    if not STAMP:
        return []
    o = []
    T = lambda s: o.append(raw(s, kind="salu"))
    T("s_load_dwordx2 s[64:65], s[0:1], 32")
    T("v_lshrrev_b32 v255, 6, v0")
    T("s_nop 1")
    T("v_readfirstlane_b32 s62, v255")
    T("s_memrealtime s[94:95]")
    T("s_waitcnt lgkmcnt(0)")
    T("s_and_b32 s65, s65, 0xffff")
    T("s_mov_b32 s67, 0x00020000")
    T("s_lshl_b32 s62, s62, 8")
    T("s_add_u32 s62, s62, s2")
    T(f"s_cmp_eq_u32 s62, {opt('swg', 0)}")
    T("s_cselect_b32 s66, 256, 0")
    T("s_mov_b32 s62, 0")
    for k in range(4):
        T(f"s_mov_b32 s{88+k}, 0")
    return o


def stamp_out(n):
    if not STAMP:
        return []
    o = [raw("s_waitcnt vmcnt(0)", kind="wait")] + stamp(force=True)
    o += [raw("s_memrealtime s[60:61]", kind="salu"), raw("s_waitcnt lgkmcnt(0)", kind="wait"), raw("s_sub_u32 s60, s60, s94", kind="salu"),
          raw("v_mov_b32 v255, s60"), raw("s_movk_i32 s62, 252", kind="salu"), raw("buffer_store_dword v255, off, s[64:67], s62")]
    if PROF:
        for k in range(2):
            o += [raw(f"v_mov_b32 v255, s{88+k}"), raw("buffer_store_dword v255, off, s[64:67], s62"), raw("s_add_u32 s62, s62, 4", kind="salu")]
    return o


def build_role():
    import io, contextlib
    RL = ROLE
    st = WaitState()
    G = 14
    rounds = []
    for r in range(3):
        buf = io.StringIO()
        with contextlib.redirect_stdout(buf):
            Sx = build_special(G)
            L1 = build_loop(G + 4)
            L2 = build_loop(G + 6)
        if r == 2:
            print(buf.getvalue(), end="")
            for nm, Rg in (("S", Sx), ("L", L1)):
                print(RL, nm, "loads:", " ".join(str(Rg.load(i)) for i in range(Rg.n)))
                print(RL, nm, "over24:", sum(max(0, Rg.load(i) - 24) for i in range(Rg.n)))
        fl = Sx.flatten()
        mi = [i for i, x in enumerate(fl) if x.kind == "mfma"][64]
        sr = insert_waits(fl[:mi], st)
        stf = st.clone()
        Gf = G + 1
        sr = sr + insert_waits(fl[mi:], st)
        l1 = insert_waits(L1.flatten(), st)
        l2 = insert_waits(L2.flatten(), st)
        rounds.append((sr, l1, l2))
        G += 8
    sr, l1, l2 = rounds[2]
    l1 = l2
    tx = lambda s: [x.text for x in s]
    if RL == "A":
        assert tx(rounds[2][1]) == tx(l2), "loop not steady"
    assert tx(rounds[1][0]) == tx(sr), "special not steady"
    assert tx(rounds[1][2]) == tx(l2)
    sp = {}
    mcount = 0
    for i, x in enumerate(sr):
        if x.kind == "mfma":
            if mcount in (64, 128, 192):
                j = i
                while sr[j - 1].kind == "wait":
                    j -= 1
                sp[mcount] = j
            mcount += 1
    s14, s15, s_b, s_c = sr[:sp[64]], sr[sp[64]:sp[128]], sr[sp[128]:sp[192]], sr[sp[192]:]
    vm = []
    if RL == "A":
        started = False
        last_m0 = None
        offs = [f"s_add_u32 s{r}," for r in (S_KOFF, S_KOFF2, S_VOFF, S_VOFF2)] + [f"s_and_b32 s{r}," for r in (S_KOFF, S_KOFF2, S_VOFF, S_VOFF2)]
        for x in s15:
            if x.kind == "salu" and x.text.startswith("s_add_u32 m0"):
                last_m0 = x
            if x.kind == "dma" and x.tag[0] == "K":
                started = True
            if started:
                if x.kind == "dma":
                    assert x.tag[0] in ("K", "V")
                    vm += [last_m0, nop(0), x]
                elif x.kind == "vmem_st":
                    vm.append(x)
                elif x.kind == "salu" and any(x.text.startswith(p) for p in offs):
                    vm.append(x)
    pro = prologue([uncountedcopy(x) for x in vm])
    pro_r = insert_waits(pro, WaitState())
    loop_ctl = [raw(f"s_add_u32 s{S_CNT}, s{S_CNT}, 1", kind="salu"),
                raw(f"s_cmp_lt_u32 s{S_CNT}, 6", kind="salu"),
                raw(f"s_cbranch_scc1 L_loop{RL}", kind="branch")]
    exit_ctl = [raw(f"s_add_u32 s{S_RHO}, s{S_RHO}, 1", kind="salu")]
    fin_ctl = [raw(f"s_cmp_eq_u32 s{S_RHO}, 3", kind="salu"),
               raw(f"s_cbranch_scc1 L_f15{RL}", kind="branch")]
    fin = build_final(Gf, stf)
    check_hazards(s14 + fin_ctl + fin, "final" + RL)
    check_hazards(pro_r + s_b + exit_ctl + s_c + l1 + loop_ctl + l1 + loop_ctl + s14 + s15 + s_b + exit_ctl + s_c + l1, "main" + RL)
    names = [("l0" + RL, 0), ("l1" + RL, 1), ("s14" + RL, 0), ("s15" + RL, 1), ("s1" + RL, 1), ("f15" + RL, 1)]
    seq = [label(f"L_pro{RL}")] + pro_r + [raw(f"s_branch L_it0{RL}", kind="branch")]
    seq += [label(f"L_sa{RL}")] + dump2() + stamp() + s14 + fin_ctl + stamp() + s15 + [label(f"L_it0{RL}")] + stamp() + s_b + exit_ctl + stamp() + s_c + stamp() + [label(f"L_loop{RL}")] + l1 + loop_ctl
    seq += [raw(f"s_branch L_sa{RL}", kind="branch")]
    seq += [label(f"L_f15{RL}")] + stamp() + fin + [raw("s_branch L_fin", kind="branch")]
    rare = []
    for nm, par in names:
        r = rare_path(par, nm)
        check_hazards(r, "rare")
        rare += r
    return seq, rare


def final_drain():
    o = [wait_lgkm0()]
    rds, sts = [], []
    for k in range(NDIR, 8):
        u = chunk_space(k)
        for io in range(4):
            reg = 16 * u + 4 * io
            rds.append(ds_read("ds_read_b128", "v", reg, 4, V_LIN, u * QUNIT + rdoff(io)))
            sts.append([S(f"s_add_u32 s47, s{S_WQ}, {fchunk(k) + stoff(io)}"),
                        bstore("v", reg, 4, V_OST, S_O, "s47", 0, tag="ST", flags=STNT)])
    n = len(rds)
    for i in range(n + 6):
        if i < n:
            o.append(rds[i])
        if i >= 6:
            o += sts[i - 6]
    r = insert_waits(o, WaitState())
    check_hazards(r, "fin")
    return r


def main():
    global ROLE
    head = prologue_head()
    ROLE = "A"
    sa, ra = build_role()
    ROLE = "B"
    sb, rb = build_role()
    seq = head[:2] + stamp_init() + stamp(0, force=True) + head[2:]
    seq += [raw(f"s_cmp_ge_u32 s{S_W}, 2", kind="salu"), raw("s_cbranch_scc1 L_proB", kind="branch")]
    seq += sa + [label("L_fin")] + stamp_out(2) + [label("L_end"), raw("s_endpgm")] + sb + ra + rb + [raw("s_endpgm")]
    hdr = open(f"cdna_kernels/{NAME}.s.ref").read().split("\n")
    head = [l for l in hdr if l.startswith(";") and "@launch" not in l and "Override" not in l and "grid=ceil" not in l]
    txt = "\n".join(head) + "\n"
    txt += f"; @launch grid=(256,1,1) block=(256,1,1) lds={LDS_BYTES}\n"
    txt += f'.amdgcn_target "amdgcn-amd-amdhsa--gfx950"\n.text\n.globl {NAME}_kernel\n.p2align 8\n.type {NAME}_kernel,@function\n{NAME}_kernel:\n'
    txt += render(seq) + "\n"
    txt += f""".section .rodata,"a"
.p2align 6
.amdhsa_kernel {NAME}_kernel
  .amdhsa_next_free_vgpr 512
  .amdhsa_next_free_sgpr 96
  .amdhsa_accum_offset 256
  .amdhsa_group_segment_fixed_size 0
  .amdhsa_kernarg_size 48
  .amdhsa_user_sgpr_count 2
  .amdhsa_user_sgpr_kernarg_segment_ptr 1
  .amdhsa_system_sgpr_workgroup_id_x 1
.end_amdhsa_kernel
"""
    out = sys.argv[1] if len(sys.argv) > 1 else f"cdna_kernels/{NAME}.s"
    open(out, "w").write(txt)
    print("wrote", out, len(seq), "instructions", len(txt), "bytes")


def uncountedcopy(x):
    y = Ins(x.text, rd=x.rd, wr=x.wr, kind=x.kind, cost=x.cost, tag=x.tag)
    return y


main()
```

```python
import sys, math, struct
sys.path.insert(0, "work")
from fw import *

NAME = "standalone__mha_softmax__near_ridge"
ARGS = sys.argv[2:]
STAMP = "stamp" in ARGS
PROF = "prof" in ARGS
PROF2 = "prof2" in ARGS
PFS = 128


def opt(name, default):
    for a in ARGS:
        if a.startswith(name + "="):
            return int(a.split("=")[1])
    return default


OA = ("v", 0)
OB = ("a", 0)
QA = 128
QB = 192
SB = [128, 160]
P0 = 192
P1 = 208
FB = 216
TT = 232
V_KA, V_VA, V_DMA = 236, 237, 238
V_NMC = [239, 240]
V_L = [241, 242]
V_LT = [243, 244]
V_TMP = 245
V_QO = 246
V_T2 = 247
V_T3 = 248
V_QDMA = 249
V_QRD = 250
V_PF = 251
V_RINV = [252, 254]
V_QCUR = 253
V_TMP2 = 255

S_Q, S_K, S_V, S_O = 4, 8, 12, 16
S_XH = 3
S_W = 20
S_C = 21
S_THR = 22
S_KOFF = 23
S_VOFF = 24
S_KM0 = 25
S_VM0 = 26
S_CNT = 27
S_QS = 28
S_QSTEP = 29
S_NC = 30
S_QM = 31
S_KN = 48
S_VN = 50
S_KVN = 52
S_16K = 53
S_ON = 54
S_T = 57
S_QMB = 58
S_RHO = 59
S_KOFF2 = 68
S_VOFF2 = 69
S_PF = 72
S_PFOFF = 70
S_PFN = 76
S_WQ = 71
S_BQ = 78
S_BQM = 79
S_ROT = 80
S_ROT2 = 81
ROTM = opt('rot', 15)
PFMODE = opt('pf', 0)
QNT = ' nt' if opt('qnt', 1) else ''
STNT = ' nt' if opt('stnt', 1) else ''
KVNT = ' nt' if opt('kvnt', 1) else ''
ROLE = "A"
PD = opt("pd", 6)

KBLK, VBLK = 1040, 1088
KSLOT = [0, 16 * KBLK]
VSLOT = [32 * KBLK, 32 * KBLK + 16 * VBLK]
QBASE = 32 * KBLK + 32 * VBLK
QUNIT = 4656
QDUMMY = QBASE + 4 * 5 * QUNIT
LDS_BYTES = QDUMMY + 1024

SCALE = (256 ** -0.5) * math.log2(math.e)
HEAD = opt("head", 19)
HEAD0 = opt("head0", 12)
UNITS = [(0, 0), (1, 0), (0, 1), (1, 1), (0, 2)]
LATE = [((1, 2), 0), ((0, 3), 1), ((1, 3), 2)]


def f32bits(x):
    return struct.unpack("<I", struct.pack("<f", x))[0]


def Oacc(qb, t):
    k, lo = (OA, OB)[qb]
    return (k, lo + 16 * t)


def Qfrag(qb, ks):
    return ("a", (QA, QB)[qb] + 4 * ks)


def Sacc(buf, qb):
    return ("v", SB[buf] + 16 * qb)


def Pfrag(par, qb, s):
    if s == 0:
        return ("v", P0 + par * 8 + qb * 4)
    return ("v", P1 + qb * 4)


def S(text, rd=(), wr=()):
    return salu(text, rd=rd, wr=wr)


def k_read(f, slot):
    return [ds_read("ds_read_b128", "v", FB + 4 * (f % 4), 4, V_KA, KSLOT[slot] + 32 * f)]


def v_read(f, slot):
    t, s = f >> 1, f & 1
    b = FB + 4 * (f % 4)
    return [ds_read("ds_read_b64_tr_b16", "v", b + 2 * u, 2, V_VA, VSLOT[slot] + (2 * s + u) * 4 * VBLK + 64 * t) for u in (0, 1)]


def q_read(qb, ks, space):
    k, lo = Qfrag(qb, ks)
    return ds_read("ds_read_b128", k, lo, 4, V_QRD, space * QUNIT + 32 * (ks & 3))


def dma_unit(kind, j, four=False):
    slot = j & 1
    if kind == "K":
        base, blk, sl, srd, soff, soff2 = S_KM0, KBLK, KSLOT, S_K, S_KOFF, S_KOFF2
    else:
        base, blk, sl, srd, soff, soff2 = S_VM0, VBLK, VSLOT, S_V, S_VOFF, S_VOFF2
    rel = sl[slot] - sl[0]
    groups = []
    for half in ((0,) if four else (0, 1)):
        so = (soff, soff2)[half]
        for q in range(4):
            g = [S(f"s_add_u32 m0, s{base}, {rel + half * 4 * blk + (blk - 512) * q}", rd=[base], wr=["m0"]),
                 nop(0),
                 dma(V_DMA, srd, f"s{so}", 512 * q, tag=(kind, j), flags=KVNT)]
            if q == 3:
                g.append(S(f"s_add_u32 s{so}, s{so}, 16384", rd=[so], wr=[so]))
                g.append(S(f"s_and_b32 s{so}, s{so}, 0x3ffff", rd=[so], wr=[so]))
            groups.append(g)
    return groups


def q_dma_static(qb, lam, space, tag):
    groups = []
    for io in range(4):
        groups.append([S(f"s_add_u32 m0, s{S_QMB}, {space * QUNIT + 1056 * io}", rd=[S_QMB], wr=["m0"]),
                       S(f"s_add_u32 s40, s{S_WQ}, {qb * 16384 + lam * 128 + io * 4096}", wr=[40]),
                       dma(V_QDMA, S_Q, "s40", 0, tag=tag, flags=QNT)])
    return groups


def softmax_steps(buf, par):
    def elem(e):
        s = e >> 4
        qb = (e >> 3) & 1
        r = 8 * s + (e & 7)
        return s, qb, r
    steps = []
    for k in range(34):
        st = []
        if k < 32:
            s, qb, r = elem(k)
            st.append(valu("v_fma_f32", TT + k % 4, SB[buf] + 16 * qb + r, f"s{S_C}", V_NMC[qb]))
        if 0 <= k - 1 < 32:
            e = k - 1
            st.append(trans("v_exp_f32", TT + e % 4, TT + e % 4))
        if 0 <= k - 2 < 32:
            e = k - 2
            s, qb, r = elem(e)
            if r == 1:
                st.append(valu("v_add_f32", V_LT[qb], TT + (e - 1) % 4, TT + e % 4))
            elif r > 1:
                st.append(valu("v_add_f32", V_LT[qb], V_LT[qb], TT + e % 4))
            if r & 1:
                pk, pl = Pfrag(par, qb, s)
                st.append(valu("v_cvt_pk_bf16_f32", pl + ((r & 7) >> 1), TT + (e - 1) % 4, TT + e % 4))
        steps.append(st)
    return steps


def swap32(a, b):
    return Ins(f"v_permlane32_swap_b32 v{a}, v{b}", rd=[("v", a), ("v", b)], wr=[("v", a), ("v", b)], kind="valu")


def row_max2(buf):
    dst = [V_T2, V_T3]
    tmp = [V_TMP, V_TMP2]
    groups = []
    b = [SB[buf], SB[buf] + 16]
    groups.append([valu("v_max3_f32", dst[q], b[q], b[q] + 1, b[q] + 2) for q in (0, 1)])
    for i in range(3, 15, 2):
        groups.append([valu("v_max3_f32", dst[q], dst[q], b[q] + i, b[q] + i + 1) for q in (0, 1)])
    groups.append([valu("v_max_f32", dst[q], dst[q], b[q] + 15) for q in (0, 1)])
    g = [valu("v_mov_b32", tmp[q], dst[q]) for q in (0, 1)]
    g += [nop(1)]
    g += [swap32(tmp[q], dst[q]) for q in (0, 1)]
    g += [nop(0)]
    g += [valu("v_max_f32", dst[q], dst[q], tmp[q]) for q in (0, 1)]
    g += [valu("v_mul_f32", V_NMC[q], f"s{S_NC}", dst[q]) for q in (0, 1)]
    groups.append(g)
    return groups


def rinv_group():
    tmp = [V_TMP, V_TMP2]
    g = [valu("v_mov_b32", tmp[q], V_L[q]) for q in (0, 1)]
    g += [nop(1)]
    g += [swap32(tmp[q], V_L[q]) for q in (0, 1)]
    g += [nop(0)]
    g += [valu("v_add_f32", V_L[q], V_L[q], tmp[q]) for q in (0, 1)]
    g += [trans("v_rcp_f32", V_RINV[q], V_L[q]) for q in (0, 1)]
    return g


def row_max(buf, qb, dst, tmp):
    b = SB[buf] + 16 * qb
    out = [valu("v_max3_f32", dst, b, b + 1, b + 2)]
    for i in range(3, 15, 2):
        out.append(valu("v_max3_f32", dst, dst, b + i, b + i + 1))
    out.append(valu("v_max_f32", dst, dst, b + 15))
    out.append(valu("v_mov_b32", tmp, dst))
    out.append(nop(1))
    out.append(swap32(tmp, dst))
    out.append(nop(0))
    out.append(valu("v_max_f32", dst, dst, tmp))
    return out


def flat(steps):
    out = []
    for st in steps:
        out += st
        out.append(nop(0))
    return out


def rare_path(par, name):
    out = [label(f"L_rare{name}")]
    out.append(nop(7))
    for qb in (0, 1):
        out += row_max(par, qb, V_T2, V_TMP)
        out.append(valu("v_mul_f32", V_T2, f"s{S_NC}", V_T2))
        out.append(valu("v_min_f32", V_T2, V_T2, V_NMC[qb]))
        out.append(valu("v_sub_f32", V_T3, V_T2, V_NMC[qb]))
        out.append(trans("v_exp_f32", V_T3, V_T3))
        out.append(valu("v_mov_b32", V_NMC[qb], V_T2))
        out.append(valu("v_mul_f32", V_L[qb], V_L[qb], V_T3))
        for r in range(128):
            if qb == 0:
                out.append(valu("v_mul_f32", r, r, V_T3))
            else:
                out.append(valu("v_accvgpr_read_b32", V_TMP, ("a", r)))
                out.append(valu("v_mul_f32", V_TMP, V_TMP, V_T3))
                out.append(valu("v_accvgpr_write_b32", ("a", r), V_TMP))
    out += flat(softmax_steps(par, par))
    out.append(nop(3))
    out.append(raw(f"s_branch L_back{name}", kind="branch"))
    return out


def pk_mul(r, qb):
    sel = "op_sel_hi:[1,0]"
    p = V_RINV[qb]
    return Ins(f"v_pk_mul_f32 v[{r}:{r+1}], v[{r}:{r+1}], v[{p}:{p+1}] {sel}",
               rd=[("v", r), ("v", r + 1), ("v", V_RINV[qb])], wr=[("v", r), ("v", r + 1)], kind="valu")


def pk_muls(rs_, qb):
    if opt('pkm', 1):
        return [pk_mul(r, qb) for r in rs_]
    return [valu("v_mul_f32", r + e, r + e, V_RINV[qb]) for r in rs_ for e in (0, 1)]


V_LIN = 251
V_W = 253
V_OST = 246
S_LD1 = 76
S_LD2 = 77


def rdoff(io):
    return ((io & 1) * 18 + (io >> 1) * 148) * 16


def stoff(io):
    return (io & 1) * 1024 + (io >> 1) * 8192


V_DR = 252
S_OD = 72
S_DF = 70
NDIR = opt('ndir', 3)


def chunk_space(k):
    return (k - NDIR) % 5


def fchunk(k):
    return (k & 1) * 16384 + (k >> 1) * 128


def epi_chunks(tp, final=False):
    Rb = 32 * tp
    items = []
    spa = chunk_space(2 * tp) * QUNIT
    spb = chunk_space(2 * tp + 1) * QUNIT
    dira = 2 * tp < NDIR
    dirb = 2 * tp + 1 < NDIR
    if final:
        spa = ((2 * tp) % 5) * QUNIT
        spb = ((2 * tp + 1) % 5) * QUNIT
        dira = dirb = True

    def wr(reg, sp, j):
        return ds_write("ds_write_b128", V_W, "v", reg, 4, sp + 32 * j)

    def rd(reg, sp, io):
        return ds_read("ds_read_b128", "v", reg, 4, V_LIN, sp + rdoff(io))

    def st(reg, qb, io):
        return [S(f"s_add_u32 s47, s{S_WQ}, {qb * 16384 + stoff(io)}"),
                bstore("v", reg, 4, V_OST, S_O, "s47", 128 * tp, tag="ST", flags=STNT)]
    for tl in (0, 1):
        t = 2 * tp + tl
        for gp in (0, 1):
            o = Rb + 16 * tl + 8 * gp
            items.append((pk_muls([o + 2 * j for j in range(4)], 0), "a", t))
            items.append(([valu("v_cvt_pk_bf16_f32", o + e, o + 2 * e, o + 2 * e + 1) for e in range(4)] + [wr(o, spa, 2 * tl + gp)], "a", t))
    areg = [Rb, Rb + 8, Rb + 16, Rb + 24]
    astores = []
    if dira:
        items.append(([rd(areg[io], spa, io) for io in range(4)], "a", 2 * tp + 1))
        astores = [(st(areg[io], 0, io), "a", 2 * tp + 1) for io in range(4)]
    breg = [Rb + 4, Rb + 12, Rb + 20, Rb + 28]
    first = True
    for tl in (0, 1):
        t = 2 * tp + tl
        for gp in (0, 1):
            tmp = [breg[2 * gp] + e for e in range(4)] + [breg[2 * gp + 1] + e for e in range(4)]
            src = 16 * t + 8 * gp
            items.append(([valu("v_accvgpr_read_b32", tmp[e], ("a", src + e)) for e in range(4)], "b", t))
            items.append(([valu("v_accvgpr_read_b32", tmp[e], ("a", src + e)) for e in range(4, 8)], "b", t))
            items.append((pk_muls([tmp[2 * j] for j in range(4)], 1), "b", t))
            items.append(([valu("v_cvt_pk_bf16_f32", tmp[e], tmp[2 * e], tmp[2 * e + 1]) for e in range(4)] + [wr(tmp[0], spb, 2 * tl + gp)], "b", t))
            if first:
                items += astores[:2]
                first = False
            elif astores:
                items += astores[2:]
                astores = []
    bstores = []
    if dirb:
        items.append(([rd(breg[io], spb, io) for io in range(4)], "b", 2 * tp + 1))
        bstores = [(st(breg[io], 1, io), "b", 2 * tp + 1) for io in range(4)]
    def keep(x):
        t = x.text
        if opt('xmul', 0) and ('pk_mul' in t or 'v_mul_f32' in t): return False
        if opt('xacc', 0) and 'accvgpr_read' in t: return False
        if opt('xcvt', 0) and 'v_cvt_pk' in t: return False
        if opt('xwr', 0) and 'ds_write' in t: return False
        return True
    items = [([x for x in g if keep(x)], k, t) for g, k, t in items]
    items = [it for it in items if it[0]]
    return items, bstores


DRR = [1, 7, 13, 19]
DRS = [5, 11, 17, 23]


def drain(R_, b, ldsoff, client):
    for io in range(4):
        R_.add(b + DRR[io], [ds_read("ds_read_b128", "v", V_DR, 4, V_LIN, ldsoff + rdoff(io))])
        R_.add(b + DRS[io], [S(f"s_add_u32 s47, s{S_DF}, {client * 32768 + stoff(io)}"),
                             bstore("v", V_DR, 4, V_OST, S_OD, "s47", 0, tag="DR", flags=STNT)])


def tile_params():
    o = []
    A = lambda t: o.append([S(t)])
    A(f"s_mul_hi_u32 s42, s{S_T}, 0x55555556")
    A("s_mul_i32 s43, s42, 3")
    A(f"s_sub_u32 s43, s{S_T}, s43")
    A(f"s_add_u32 s42, s42, s{S_XH}")
    A("s_mul_i32 s44, s42, 376832")
    A("s_lshl_b32 s43, s43, 17")
    A("s_add_u32 s44, s44, s43")
    A("s_lshl_b32 s45, s42, 18")
    A(f"s_lshr_b32 s{S_ROT}, s42, 4")
    A(f"s_xor_b32 s{S_ROT}, s{S_ROT}, s42")
    A(f"s_and_b32 s{S_ROT}, s{S_ROT}, {ROTM}")
    A(f"s_lshl_b32 s{S_ROT}, s{S_ROT}, 14")
    A(f"s_add_u32 s{S_ROT2}, s{S_ROT}, 0x1000")
    A("s_sub_u32 s43, 376832, s43")
    o.append([S(f"s_cmp_lt_u32 s{S_T}, 96"), S("s_cselect_b32 s43, s43, 0"), S(f"s_cselect_b32 s{S_KVN}, 262144, 0")])
    o.append([S(f"s_add_u32 s{S_Q}, s32, s44"), S(f"s_addc_u32 s{S_Q+1}, s33, 0")])
    A(f"s_and_b32 s{S_Q+1}, s{S_Q+1}, 0xffff")
    A(f"s_mov_b32 s{S_Q+2}, s43" if not opt('noq', 0) else f"s_mov_b32 s{S_Q+2}, 0")
    o.append([S(f"s_add_u32 s{S_ON}, s38, s44"), S(f"s_addc_u32 s{S_ON+1}, s39, 0")])
    A(f"s_and_b32 s{S_ON+1}, s{S_ON+1}, 0xffff")
    A(f"s_mov_b32 s{S_ON+2}, s43" if not opt('nost', 0) else f"s_mov_b32 s{S_ON+2}, 0")
    o.append([S(f"s_add_u32 s{S_KN}, s34, s45"), S(f"s_addc_u32 s{S_KN+1}, s35, 0")])
    A(f"s_and_b32 s{S_KN+1}, s{S_KN+1}, 0xffff")
    o.append([S(f"s_add_u32 s{S_VN}, s36, s45"), S(f"s_addc_u32 s{S_VN+1}, s37, 0")])
    A(f"s_and_b32 s{S_VN+1}, s{S_VN+1}, 0xffff")
    return o


def wrap2(g, acc):
    if not PROF2:
        return g
    T = lambda t: raw(t, kind="salu", cost=0)
    out = []
    for x in g:
        if x.kind == "dma":
            out += [T("s_memtime s[82:83]"), raw("s_waitcnt lgkmcnt(0)", kind="wait", cost=0), x,
                    T("s_memtime s[84:85]"), raw("s_waitcnt lgkmcnt(0)", kind="wait", cost=0),
                    T("s_sub_u32 s82, s84, s82"), T(f"s_add_u32 s{acc}, s{acc}, s82")]
        else:
            out.append(x)
    return out


class Region:
    def __init__(self, n):
        self.n = n
        self.mf = [None] * n
        self.g = [[] for _ in range(n)]

    def add(self, gap, items):
        self.g[gap] += [x for x in items if x is not None]

    def load(self, gap):
        return sum(x.cost for x in self.g[gap])

    def place(self, seqs, name=""):
        base = [self.load(i) for i in range(self.n)]

        def attempt(level):
            ld = list(base)
            res = []
            cur = 0
            for grp, rel, dl in seqs:
                c = sum(x.cost for x in grp)
                g = max(cur, rel)
                while g <= dl and ld[g] + c > level and not (ld[g] == 0):
                    g += 1
                if g > dl:
                    return None
                ld[g] += c
                res.append(g)
                cur = g
            return res
        level = 8
        while True:
            r = attempt(level)
            if r is not None:
                break
            level += 2
            assert level < 400, "cannot place " + name
        for (grp, rel, dl), g in zip(seqs, r):
            self.g[g] += grp
        if name:
            print(f"  place {name}: level {level}")

    def flatten(self):
        out = []
        for i in range(self.n):
            if self.mf[i] is not None:
                out.append(self.mf[i])
            out += self.g[i]
        return out


def base_iteration(R_, b, role, G, name, extra59=()):
    par = G & 1
    np_ = par ^ 1
    first_of_tile = (role == 0)
    for ks in range(16):
        for qb in (0, 1):
            F = ("v", FB + 4 * (ks % 4))
            D = Sacc(np_, qb)
            R_.mf[b + 2 * ks + qb] = mfma32(D, F, Qfrag(qb, ks), None if ks == 0 else D)
    for f in range(16):
        t, s = f >> 1, f & 1
        for qb in (0, 1):
            F = ("v", FB + 4 * (f % 4))
            D = Oacc(qb, t)
            C = None if (first_of_tile and s == 0) else D
            R_.mf[b + 32 + 2 * f + qb] = mfma32(D, F, Pfrag(par, qb, s), C)
    extra59 = list(extra59)
    for f in range(4, 16):
        R_.add(b + 2 * f - 7, k_read(f, np_))
    A_ = ROLE == "A"

    def prof(w, acc):
        if not PROF:
            return list(w) + [wait_lgkm0(), barrier()]
        T = lambda t: raw(t, kind="salu", cost=0)
        return [wait_lgkm0(), T("s_memtime s[82:83]"), wait_lgkm0()] + list(w) + [T("s_memtime s[84:85]"), raw("s_waitcnt lgkmcnt(0)", kind="wait", cost=0), barrier(),
                T("s_memtime s[86:87]"), raw("s_waitcnt lgkmcnt(0)", kind="wait", cost=0),
                T("s_sub_u32 s82, s82, s92"), T("s_mov_b32 s92, s86"),
                T(f"s_add_u32 s{88 if acc == 88 else 89}, s{88 if acc == 88 else 89}, s82")]
    R_.add(b + 27, prof([wait_vm(("V", G))] if A_ else [], 88) + v_read(0, par) + v_read(1, par))
    R_.add(b + 29, v_read(2, par))
    R_.add(b + 31, v_read(3, par))
    for f in range(4, 16):
        R_.add(b + 32 + 2 * f - 7, v_read(f, par))
    R_.add(b + 59, prof([wait_vm(("K", G + 2))] if A_ else extra59, 90) + k_read(0, par) + k_read(1, par))
    R_.add(b + 61, k_read(2, par))
    R_.add(b + 63, k_read(3, par))
    if A_:
        grp = dma_unit("K", G + 3)
        for q, g in enumerate(grp):
            R_.add(b + KD[q], wrap2(g, 88))
        grp = dma_unit("V", G + 2)
        for q in range(4):
            R_.add(b + VD[q], wrap2(grp[q], 89))
        grp = dma_unit("V", G + 1)
        for q in range(4):
            R_.add(b + VD2[q], wrap2(grp[4 + q], 89))
    elif PFMODE:
        for q in range(2):
            g = [S(f"s_mov_b32 m0, {QDUMMY}", wr=["m0"]),
                 S(f"s_add_u32 s41, s{S_PFOFF}, {8192 * q}"),
                 Ins(f"buffer_load_dword v{V_DMA}, s[{S_PF}:{S_PF+3}], s41 offen lds", rd=[("v", V_DMA), ("s", "m0")], kind="dma", cost=16, tag=("PF", G))]
            if q == 1:
                g.append(S(f"s_add_u32 s{S_PFOFF}, s{S_PFOFF}, 16384"))
                g.append(S(f"s_and_b32 s{S_PFOFF}, s{S_PFOFF}, 0x3ffff"))
            R_.add(b + PFD[q], wrap2(g, 89))


KD = [29, 32, 35, 38, 41, 44, 47, 50]
VD = [60, 61, 62, 63]
VD2 = [0, 2, 4, 6]
QD = [34, 38, 42, 46]
PFD = [12, 20]


def softmax_part(R_, b, role, G, name, head_prev, head_next, next_true_max=False):
    name = name + ROLE
    par = G & 1
    np_ = par ^ 1
    st = softmax_steps(par, par)
    R_.place([(s_, b + 0, b + 28) for s_ in st[head_prev:]], name + ".tail")
    if role == 0:
        R_.add(b + 30, [valu("v_mov_b32", V_L[0], V_LT[0]), valu("v_mov_b32", V_L[1], V_LT[1])])
    else:
        R_.add(b + 29, [valu("v_add_f32", V_TMP, V_LT[0], V_LT[1])])
        R_.add(b + 30, [valu("v_cmp_nge_f32", "vcc", f"s{S_THR}", V_TMP),
                        raw(f"s_cbranch_vccnz L_rare{name}", kind="branch"),
                        label(f"L_back{name}"),
                        valu("v_add_f32", V_L[0], V_L[0], V_LT[0]),
                        valu("v_add_f32", V_L[1], V_L[1], V_LT[1])])
    st = softmax_steps(np_, np_)
    seq = []
    lo = b + 35
    if next_true_max:
        seq.append((rinv_group(), b + 32, b + 34))
        for g in row_max2(np_):
            seq.append((g, b + 34, b + 63))
    for s_ in st[:head_next]:
        seq.append((s_, lo, b + 63))
    R_.place(seq, name + ".head")


def build_loop(G):
    R_ = Region(128)
    c = S_CNT
    x59 = []
    if ROLE == "B":
        x59 = [S(f"s_cmp_lg_u32 s{c}, 5"), raw("s_cbranch_scc1 L_skipq", kind="branch"), wait_vm(("Q", G - 1)), label("L_skipq")]
    base_iteration(R_, 0, 2, G, "l0")
    base_iteration(R_, 64, 3, G + 1, "l1", extra59=x59)
    if ROLE == "B":
        pre = [S(f"s_and_b32 s42, s{c}, 1"), S("s_lshl_b32 s42, s42, 14"), S(f"s_lshr_b32 s43, s{c}, 1"),
               S("s_lshl_b32 s43, s43, 7"), S("s_or_b32 s44, s42, s43"),
               S(f"s_mul_i32 s45, s{c}, {QUNIT}"), S(f"s_add_u32 s45, s45, s{S_BQM}")]
        sel = [S(f"s_cmp_eq_u32 s{c}, 5"), S("s_cselect_b32 s44, 0x40000000, s44"),
               S(f"s_cselect_b32 s46, 0, {5 * QUNIT}"),
               S(f"s_cselect_b32 s{S_QSTEP}, 0, 1056"),
               S(f"s_cselect_b32 s45, {QDUMMY}, s45")]
        for k, x in enumerate(pre):
            R_.add(3 + 2 * k, [x])
        R_.add(18, sel)
        for it in (0, 1):
            b = 64 * it
            if it == 0:
                R_.add(b + 22, [S(f"s_add_u32 s{S_QS}, s44, s{S_BQ}"), S(f"s_mov_b32 s{S_QM}, s45")])
            else:
                R_.add(b + 22, [S(f"s_add_u32 s{S_QS}, s44, s{S_BQ}"), S(f"s_add_u32 s{S_QS}, s{S_QS}, 32768"), S(f"s_add_u32 s{S_QM}, s45, s46")])
            for io in range(4):
                R_.add(b + QD[io], wrap2([S(f"s_mov_b32 m0, s{S_QM}", rd=[S_QM], wr=["m0"]), S(f"s_add_u32 s{S_QM}, s{S_QM}, s{S_QSTEP}"),
                                    dma(V_QDMA, S_Q, f"s{S_QS}", 0, tag=("Q", G + it), flags=QNT),
                                    S(f"s_add_u32 s{S_QS}, s{S_QS}, 0x1000")], 88))
        drain(R_, 0, 5 * QUNIT, 1)
        df = [S(f"s_add_u32 s92, s{c}, {NDIR + 1}"), S("s_and_b32 s93, s92, 1"), S("s_lshl_b32 s93, s93, 14"),
              S("s_lshr_b32 s92, s92, 1"), S("s_lshl_b32 s92, s92, 7"), S("s_or_b32 s92, s92, s93"),
              S(f"s_add_u32 s92, s92, s{S_BQ}")]
        for k, x in enumerate(df):
            R_.add(33 + 2 * k, [x])
        R_.add(63, [S(f"s_cmp_ge_u32 s{c}, 4"), S(f"s_cselect_b32 s{S_DF}, 0x40000000, s92"), S(f"s_cselect_b32 s93, 0, {QUNIT}")])
        drain(R_, 64, QUNIT, 0)
        R_.add(64 + 28, [valu("v_add_u32", V_LIN, "s93", V_LIN)])
    else:
        R_.add(64 + 4, [S(f"s_cmp_eq_u32 s{c}, 5"),
                        S(f"s_cselect_b32 s{S_K}, s{S_KN}, s{S_K}"),
                        S(f"s_cselect_b32 s{S_K+1}, s{S_KN+1}, s{S_K+1}"),
                        S(f"s_cselect_b32 s{S_K+2}, s{S_KVN}, s{S_K+2}"),
                        S(f"s_cselect_b32 s{S_KOFF}, s{S_ROT}, s{S_KOFF}"),
                        S(f"s_cselect_b32 s{S_KOFF2}, s{S_ROT2}, s{S_KOFF2}")])
    softmax_part(R_, 0, 2, G, "l0", HEAD, HEAD)
    softmax_part(R_, 64, 3, G + 1, "l1", HEAD, HEAD)
    return R_


def build_special(G):
    R_ = Region(256)
    base_iteration(R_, 0, 14, G, "s14")
    base_iteration(R_, 64, 15, G + 1, "s15")
    base_iteration(R_, 128, 0, G + 2, "s0")
    base_iteration(R_, 192, 1, G + 3, "s1")
    if opt('fine', 0):
        for g in range(0, 256, opt('fine', 0)):
            if g % 64:
                R_.add(g, stamp())
    if ROLE == "A":
        R_.add(50, [S(f"s_mov_b32 s{S_V}, s{S_VN}"), S(f"s_mov_b32 s{S_V+1}, s{S_VN+1}"),
                    S(f"s_mov_b32 s{S_V+2}, s{S_KVN}"), S(f"s_mov_b32 s{S_VOFF}, s{S_ROT}"), S(f"s_mov_b32 s{S_VOFF2}, s{S_ROT2}")])
    for u, (qb, lam) in enumerate(UNITS):
        for ksl in range(4):
            ks = 4 * lam + ksl
            R_.add(2 * ks + qb + 2, [q_read(qb, ks, u)])
    def unit_regs(qb, lam):
        r = []
        for ksl in range(4):
            k, lo = Qfrag(qb, 4 * lam + ksl)
            r += R(k, lo, 4)
        return r
    late_start = [11, 12, 19]
    for idx, ((qb, lam), space) in enumerate(LATE):
        oq, ol = UNITS[space]
        grp = q_dma_static(qb, lam, space, ("QL", G, idx))
        grp[0] = [touch(unit_regs(oq, ol))] + grp[0]
        g0 = late_start[idx]
        for io in range(4):
            R_.add(g0 + 2 * io, grp[io])
    rd_at = [64 + LR0, 64 + LR1, 64 + LR2]
    for idx, ((qb, lam), space) in enumerate(LATE):
        R_.add(rd_at[idx], [wait_vm(("QL", G, idx))] + [q_read(qb, 4 * lam + ksl, space) for ksl in range(4)])
    softmax_part(R_, 0, 14, G, "s14", HEAD, HEAD)
    softmax_part(R_, 64, 15, G + 1, "s15", HEAD, HEAD0, next_true_max=True)
    softmax_part(R_, 128, 0, G + 2, "s0", HEAD0, HEAD)
    softmax_part(R_, 192, 1, G + 3, "s1", HEAD, HEAD)
    R_.add(64 + 26, [valu("v_mbcnt_lo_u32_b32", V_W, "-1", "0"), valu("v_mbcnt_hi_u32_b32", V_W, "-1", V_W),
                     valu("v_and_b32", V_T2, "31", V_W), valu("v_mul_u32_u24", V_T3, "0x90", V_T2)])
    R_.add(64 + 28, [valu("v_lshrrev_b32", V_T2, "4", V_T2), valu("v_lshl_add_u32", V_T3, V_T2, "6", V_T3),
                     valu("v_lshrrev_b32", V_W, "5", V_W), valu("v_lshl_add_u32", V_W, V_W, "4", V_T3),
                     valu("v_add_u32", V_W, f"s{S_QMB}", V_W)])
    seq = []
    if ROLE == "B":
        seq.append(([valu("v_add_u32", V_LIN, f"s{S_LD1}", V_LIN)], 64 + 30, 64 + 40))
    pend = []
    for tp in range(4):
        items, bst = epi_chunks(tp)
        dl = 128 + 32 + 8 * tp - 1
        k = 0
        for g, kind, t in items:
            rel = 64 + 32 + 4 * t + 2 + EREL + (1 if kind == "b" else 0)
            seq.append((g, rel, dl))
            k += 1
            if pend and k in (2, 4, 6, 8):
                g2, d2 = pend.pop(0)
                seq.append((g2, rel, d2))
        assert not pend
        pend = [(g, dl) for g, kind, t in bst]
    for g2, d2 in pend:
        seq.append((g2, 0, d2))
    for g_, _, _ in seq:
        for x in g_:
            x.note = "epi"
    R_.place(seq, "epilogue")
    if ROLE == "B":
        R_.add(192 + 0, [valu("v_add_u32", V_LIN, f"s{S_LD2}", V_LIN),
                         S(f"s_mov_b32 s{S_OD}, s{S_O}"), S(f"s_mov_b32 s{S_OD+1}, s{S_O+1}"), S(f"s_mov_b32 s{S_OD+2}, s{S_O+2}"),
                         S(f"s_add_u32 s{S_DF}, s{S_BQ}, {fchunk(NDIR)}")])
        drain(R_, 192, 0, 0)
    seq = [([S(f"s_mov_b32 s{S_O}, s{S_ON}"), S(f"s_mov_b32 s{S_O+1}, s{S_ON+1}"), S(f"s_mov_b32 s{S_O+2}, s{S_ON+2}")], 192 + 2, 250)]
    seq.append(([S(f"s_add_u32 s{S_T}, s{S_T}, 32")], 192 + 2, 250))
    seq += [(g, 192 + 2, 250) for g in tile_params()]
    seq.append(([S(f"s_mov_b32 s{S_CNT}, 0")], 192 + 2, 250))
    R_.place(seq, "params")
    return R_


def build_final(G, stf):
    par = G & 1
    name = "f15" + ROLE
    pre = []
    pre += flat(softmax_steps(par, par)[HEAD:])
    pre += [valu("v_add_f32", V_TMP, V_LT[0], V_LT[1]), nop(0),
            valu("v_cmp_nge_f32", "vcc", f"s{S_THR}", V_TMP),
            raw(f"s_cbranch_vccnz L_rare{name}", kind="branch"),
            label(f"L_back{name}"),
            valu("v_add_f32", V_L[0], V_L[0], V_LT[0]),
            valu("v_add_f32", V_L[1], V_L[1], V_LT[1])]
    pre += [wait_vm(("V", G)), wait_vm(("QL", G - 1, 2)), wait_lgkm0(), barrier()] + v_read(0, par) + v_read(1, par) + v_read(2, par) + v_read(3, par)
    pre += rinv_group()
    pre += [valu("v_mbcnt_lo_u32_b32", V_W, "-1", "0"), valu("v_mbcnt_hi_u32_b32", V_W, "-1", V_W),
            valu("v_and_b32", V_T2, "31", V_W), valu("v_mul_u32_u24", V_T3, "0x90", V_T2),
            valu("v_lshrrev_b32", V_T2, "4", V_T2), valu("v_lshl_add_u32", V_T3, V_T2, "6", V_T3),
            valu("v_lshrrev_b32", V_W, "5", V_W), valu("v_lshl_add_u32", V_W, V_W, "4", V_T3),
            valu("v_add_u32", V_W, f"s{S_QMB}", V_W)]
    if ROLE == "B":
        pre.append(valu("v_add_u32", V_LIN, f"s{S_LD1}", V_LIN))
    pre.append(nop(3))
    N = 32 + 48
    R_ = Region(N)
    for f in range(16):
        t, s_ = f >> 1, f & 1
        for qb in (0, 1):
            F = ("v", FB + 4 * (f % 4))
            D = Oacc(qb, t)
            R_.mf[2 * f + qb] = mfma32(D, F, Pfrag(par, qb, s_), D)
    for f in range(4, 16):
        R_.add(2 * f - 7, v_read(f, par))
    seq = []
    pend = []
    for tp in range(4):
        items, bst = epi_chunks(tp, final=True)
        k = 0
        for g, kind, t in items:
            rel = 4 * t + 2 + opt('frel', 5) + (1 if kind == "b" else 0)
            seq.append((g, rel, N - 1))
            k += 1
            if pend and k in (2, 4, 6, 8):
                seq.append((pend.pop(0), rel, N - 1))
        assert not pend
        pend = [g for g, kind, t in bst]
    for g2 in pend:
        seq.append((g2, 0, N - 1))
    R_.place(seq, "final")
    R_.g[31] = R_.g[31] + [nop(7), nop(7)]
    r = insert_waits(pre + R_.flatten(), stf)
    return r


LR0 = opt("lr0", 10)
LR1 = opt("lr1", 16)
LR2 = opt("lr2", 18)
EREL = opt("erel", 4)


def prologue_head():
    o = []
    A = o.append
    T = lambda s: A(raw(s, kind="salu"))
    T("s_cmp_ge_u32 s2, 256")
    A(raw("s_cbranch_scc1 L_end", kind="branch"))
    T("s_load_dwordx4 s[32:35], s[0:1], 0")
    T("s_load_dwordx4 s[36:39], s[0:1], 16")
    T(f"s_and_b32 s{S_XH}, s2, 7")
    T(f"s_lshl_b32 s{S_XH}, s{S_XH}, 5")
    T(f"s_lshr_b32 s{S_T}, s2, 3")
    T(f"s_mov_b32 s{S_16K}, 16384")
    A(valu("v_lshrrev_b32", V_TMP, "6", 0))
    A(valu("v_and_b32", V_T2, "63", 0))
    A(valu("v_readfirstlane_b32", f"s{S_W}", V_TMP))
    A(raw("s_waitcnt lgkmcnt(0)", kind="wait"))
    return o


def prologue(it15_vm):
    o = []
    A = o.append
    T = lambda s: A(raw(s, kind="salu"))
    for g in tile_params():
        o += g
    T(f"s_mov_b32 s{S_Q+3}, 0x00020000")
    T(f"s_mov_b32 s{S_K}, s{S_KN}")
    T(f"s_mov_b32 s{S_K+1}, s{S_KN+1}")
    T(f"s_mov_b32 s{S_K+2}, 262144")
    T(f"s_mov_b32 s{S_K+3}, 0x00020000")
    T(f"s_mov_b32 s{S_V}, s{S_VN}")
    T(f"s_mov_b32 s{S_V+1}, s{S_VN+1}")
    T(f"s_mov_b32 s{S_V+2}, 262144")
    T(f"s_mov_b32 s{S_V+3}, 0x00020000")
    T(f"s_mov_b32 s{S_O}, s{S_ON}")
    T(f"s_mov_b32 s{S_O+1}, s{S_ON+1}")
    T(f"s_mov_b32 s{S_O+2}, 0")
    T(f"s_mov_b32 s{S_O+3}, 0x00020000")
    T(f"s_mov_b32 s{S_C}, {f32bits(SCALE):#x}")
    T(f"s_mov_b32 s{S_NC}, {f32bits(-SCALE):#x}")
    T(f"s_mov_b32 s{S_THR}, {f32bits(4096.0):#x}")
    T(f"s_mov_b32 s{S_KOFF}, s{S_ROT}")
    T(f"s_mov_b32 s{S_VOFF}, s{S_ROT}")
    T(f"s_mov_b32 s{S_RHO}, 0")
    T(f"s_mul_i32 s{S_KM0}, s{S_W}, {4*KBLK}")
    T(f"s_add_u32 s{S_KM0}, s{S_KM0}, {KSLOT[0]}")
    T(f"s_mul_i32 s{S_VM0}, s{S_W}, {4*VBLK}")
    T(f"s_add_u32 s{S_VM0}, s{S_VM0}, {VSLOT[0]}")
    T(f"s_mul_i32 s{S_QMB}, s{S_W}, {5*QUNIT}")
    T(f"s_add_u32 s{S_QMB}, s{S_QMB}, {QBASE}")
    T(f"s_lshl_b32 s{S_WQ}, s{S_W}, 15")
    L = V_T2
    A(valu("v_lshrrev_b32", V_TMP, "5", L))
    A(valu("v_lshlrev_b32", V_DMA, "11", V_TMP))
    A(valu("v_and_b32", V_T3, "31", L))
    A(valu("v_lshl_add_u32", V_DMA, V_T3, "4", V_DMA))
    T(f"s_lshl_b32 s46, s{S_W}, 12")
    A(valu("v_add_u32", V_DMA, "s46", V_DMA))
    A(valu("v_lshrrev_b32", TT, "3", L))
    A(valu("v_bfe_u32", TT + 1, L, "4", "1"))
    A(valu("v_and_b32", TT + 2, "7", L))
    A(valu("v_xor_b32", TT + 2, TT + 2, TT + 1))
    A(valu("v_lshlrev_b32", V_QDMA, "9", TT))
    A(valu("v_lshl_add_u32", V_QDMA, TT + 2, "4", V_QDMA))

    def issue(kind, j):
        r = []
        for g in dma_unit(kind, j, four=True):
            r += g
        return r
    o += issue("K", 0)
    for u, (qb, lam) in enumerate(UNITS):
        for g in q_dma_static(qb, lam, u, ("Q0", u)):
            o += g
    A(valu("v_lshrrev_b32", TT, "3", V_T3))
    T("s_movk_i32 s46, 1056")
    A(valu("v_mul_lo_u32", V_QRD, TT, "s46"))
    A(valu("v_and_b32", TT, "7", V_T3))
    A(valu("v_lshl_add_u32", V_QRD, TT, "7", V_QRD))
    A(valu("v_bfe_u32", TT, V_T3, "1", "1"))
    A(valu("v_xor_b32", TT, TT, V_TMP))
    A(valu("v_lshl_add_u32", V_QRD, TT, "4", V_QRD))
    A(valu("v_add_u32", V_QRD, f"s{S_QMB}", V_QRD))
    LATE_CODE = []
    for idx, ((qb, lam), space) in enumerate(LATE):
        oq, ol = UNITS[space]
        LATE_CODE.append(wait_vm(("Q0", space)))
        for ksl in range(4):
            LATE_CODE.append(q_read(oq, 4 * ol + ksl, space))
        LATE_CODE.append(wait_lgkm0())
        for g in q_dma_static(qb, lam, space, ("QL0", idx)):
            LATE_CODE += g
    KV1 = issue("K", 1) + issue("V", 0)
    if opt('kvfirst', 0):
        o += KV1
    A(valu("v_and_b32", V_KA, "3", V_T3))
    A(valu("v_lshrrev_b32", TT, "3", V_T3))
    A(valu("v_lshl_add_u32", V_KA, TT, "2", V_KA))
    T(f"s_movk_i32 s46, {KBLK}")
    A(valu("v_mul_lo_u32", V_KA, V_KA, "s46"))
    A(valu("v_bfe_u32", TT, V_T3, "2", "1"))
    A(valu("v_lshl_add_u32", V_KA, TT, "9", V_KA))
    A(valu("v_lshl_add_u32", V_KA, V_TMP, "4", V_KA))
    A(valu("v_bfe_u32", V_VA, L, "2", "2"))
    T(f"s_movk_i32 s46, {VBLK}")
    A(valu("v_mul_lo_u32", V_VA, V_VA, "s46"))
    A(valu("v_lshl_add_u32", V_VA, V_TMP, "9", V_VA))
    A(valu("v_bfe_u32", TT, L, "4", "1"))
    A(valu("v_lshl_add_u32", V_VA, TT, "5", V_VA))
    A(valu("v_and_b32", TT, "1", L))
    A(valu("v_lshl_add_u32", V_VA, TT, "4", V_VA))
    A(valu("v_bfe_u32", TT, L, "1", "1"))
    A(valu("v_lshl_add_u32", V_VA, TT, "3", V_VA))
    A(valu("v_bfe_u32", TT, L, "3", "2"))
    A(valu("v_lshrrev_b32", TT + 1, "5", L))
    A(valu("v_lshl_add_u32", TT, TT, "2", TT + 1))
    A(valu("v_and_b32", TT + 1, "7", L))
    A(valu("v_lshlrev_b32", V_OST, "9", TT))
    A(valu("v_lshl_add_u32", V_OST, TT + 1, "4", V_OST))
    A(valu("v_mul_u32_u24", V_LIN, "0x90", TT))
    A(valu("v_lshl_add_u32", V_LIN, TT + 1, "4", V_LIN))
    A(valu("v_add_u32", V_LIN, f"s{S_QMB}", V_LIN))
    A(valu("v_mul_u32_u24", V_W, "0x90", V_T3))
    A(valu("v_lshrrev_b32", TT, "4", V_T3))
    A(valu("v_lshl_add_u32", V_W, TT, "6", V_W))
    A(valu("v_lshl_add_u32", V_W, V_TMP, "4", V_W))
    A(valu("v_add_u32", V_W, f"s{S_QMB}", V_W))
    o += LATE_CODE
    if not opt('kvfirst', 0):
        o += KV1
    if ROLE == "A":
        T(f"s_lshl_b32 s46, s{S_W}, 12")
        A(valu("v_add_u32", V_DMA, "s46", V_DMA))
        T(f"s_mul_i32 s{S_KM0}, s{S_W}, {8*KBLK}")
        T(f"s_add_u32 s{S_KM0}, s{S_KM0}, {KSLOT[0]}")
        T(f"s_mul_i32 s{S_VM0}, s{S_W}, {8*VBLK}")
        T(f"s_add_u32 s{S_VM0}, s{S_VM0}, {VSLOT[0]}")
        T(f"s_add_u32 s{S_KOFF2}, s{S_KOFF}, 4096")
        T(f"s_add_u32 s{S_VOFF2}, s{S_VOFF}, 4096")
    else:
        A(valu("v_lshlrev_b32", V_DMA, "7", L))
        T(f"s_mov_b32 s{S_OD+2}, 0")
        T(f"s_mov_b32 s{S_OD+3}, 0x00020000")
        T(f"s_sub_u32 s46, s{S_W}, 2")
        T(f"s_lshl_b32 s{S_BQ}, s46, 16")
        T(f"s_mul_i32 s{S_BQM}, s46, {10 * QUNIT}")
        T(f"s_add_u32 s{S_BQM}, s{S_BQM}, {QBASE}")
        T(f"s_sub_u32 s{S_LD1}, s{S_QMB}, s{S_BQM}")
        T(f"s_sub_u32 s{S_LD2}, s{S_BQM}, s{S_QMB}")
        T(f"s_sub_u32 s{S_LD1}, s{S_LD1}, {4 * QUNIT}")
    A(wait_vm(("K", 0)))
    A(barrier())
    for f in range(4):
        o += k_read(f, 0)
    for ks in range(16):
        lam = ks >> 2
        if (ks & 3) == 0:
            for u, (qb, l2) in enumerate(UNITS):
                if l2 == lam and u >= len(LATE):
                    A(wait_vm(("Q0", u)))
                    for ksl in range(4):
                        A(q_read(qb, 4 * lam + ksl, u))
            for idx, ((qb, l2), space) in enumerate(LATE):
                if l2 == lam:
                    A(wait_vm(("QL0", idx)))
                    for ksl in range(4):
                        A(q_read(qb, 4 * lam + ksl, space))
        for qb in (0, 1):
            F = ("v", FB + 4 * (ks % 4))
            D = Sacc(0, qb)
            A(mfma32(D, F, Qfrag(qb, ks), None if ks == 0 else D))
            g = 2 * ks + qb
            if g >= 1 and (g + 7) % 2 == 0 and 4 <= (g + 7) // 2 < 16:
                o += k_read((g + 7) // 2, 0)
            if g == 27:
                o += [wait_vm(("V", 0)), wait_lgkm0(), barrier()]
                o += k_read(0, 1) + k_read(1, 1)
            if g == 29:
                o += k_read(2, 1)
            if g == 31:
                o += k_read(3, 1)
    o += it15_vm
    A(nop(7))
    A(nop(7))
    for g in row_max2(0):
        o += g
    o += flat(softmax_steps(0, 0)[:HEAD0])
    A(wait_lgkm0())
    return o


def stamp(k=0, force=False):
    if not STAMP or ((PROF or PROF2) and not force):
        return []
    return [raw("s_memrealtime s[60:61]" if opt('rt', 0) else "s_memtime s[60:61]", kind="salu"), raw("s_waitcnt lgkmcnt(0)", kind="wait"),
            raw("v_mov_b32 v255, s60"), raw("buffer_store_dword v255, off, s[64:67], s62"),
            raw("s_add_u32 s62, s62, 4", kind="salu")]


def dump2():
    if not (PROF2 or PROF):
        return []
    o = stamp(force=True)
    for k in range(2):
        o += [raw(f"v_mov_b32 v255, s{88+k}"), raw("buffer_store_dword v255, off, s[64:67], s62"), raw("s_add_u32 s62, s62, 4", kind="salu"),
              raw(f"s_mov_b32 s{88+k}, 0", kind="salu")]
    return o


def stamp_init():
    if not STAMP:
        return []
    o = []
    T = lambda s: o.append(raw(s, kind="salu"))
    T("s_load_dwordx2 s[64:65], s[0:1], 32")
    T("v_lshrrev_b32 v255, 6, v0")
    T("s_nop 1")
    T("v_readfirstlane_b32 s62, v255")
    T("s_memrealtime s[94:95]")
    T("s_waitcnt lgkmcnt(0)")
    T("s_and_b32 s65, s65, 0xffff")
    T("s_mov_b32 s67, 0x00020000")
    T("s_lshl_b32 s62, s62, 8")
    T("s_add_u32 s62, s62, s2")
    T(f"s_cmp_eq_u32 s62, {opt('swg', 0)}")
    T("s_cselect_b32 s66, 256, 0")
    T("s_mov_b32 s62, 0")
    for k in range(4):
        T(f"s_mov_b32 s{88+k}, 0")
    return o


def stamp_out(n):
    if not STAMP:
        return []
    o = [raw("s_waitcnt vmcnt(0)", kind="wait")] + stamp(force=True)
    o += [raw("s_memrealtime s[60:61]", kind="salu"), raw("s_waitcnt lgkmcnt(0)", kind="wait"), raw("s_sub_u32 s60, s60, s94", kind="salu"),
          raw("v_mov_b32 v255, s60"), raw("s_movk_i32 s62, 252", kind="salu"), raw("buffer_store_dword v255, off, s[64:67], s62")]
    if PROF:
        for k in range(2):
            o += [raw(f"v_mov_b32 v255, s{88+k}"), raw("buffer_store_dword v255, off, s[64:67], s62"), raw("s_add_u32 s62, s62, 4", kind="salu")]
    return o


def build_role():
    import io, contextlib
    RL = ROLE
    st = WaitState()
    G = 14
    rounds = []
    for r in range(3):
        buf = io.StringIO()
        with contextlib.redirect_stdout(buf):
            Sx = build_special(G)
            L1 = build_loop(G + 4)
            L2 = build_loop(G + 6)
        if r == 2:
            print(buf.getvalue(), end="")
            for nm, Rg in (("S", Sx), ("L", L1)):
                print(RL, nm, "loads:", " ".join(str(Rg.load(i)) for i in range(Rg.n)))
                print(RL, nm, "over24:", sum(max(0, Rg.load(i) - 24) for i in range(Rg.n)))
        fl = Sx.flatten()
        mis = [i for i, x in enumerate(fl) if x.kind == "mfma"]
        mi, mi2, mi3 = mis[64], mis[128], mis[192]
        sr = insert_waits(fl[:mi], st)
        stf = st.clone()
        Gf = G + 1
        sr = sr + insert_waits(fl[mi:mi2], st)
        st1 = st.clone()
        st1.lds = []
        sr = sr + insert_waits(fl[mi2:mi3], st)
        first_b = insert_waits([x for x in fl[mi2:mi3] if not (x.note == "epi" and x.kind in ("valu", "trans", "ds_rd", "ds_wr"))], st1)
        assert st1.sig() == st.sig(), "first it0 state mismatch"
        sr = sr + insert_waits(fl[mi3:], st)
        l1 = insert_waits(L1.flatten(), st)
        l2 = insert_waits(L2.flatten(), st)
        rounds.append((sr, l1, l2))
        G += 8
    sr, l1, l2 = rounds[2]
    l1 = l2
    tx = lambda s: [x.text for x in s]
    if RL == "A":
        assert tx(rounds[2][1]) == tx(l2), "loop not steady"
    assert tx(rounds[1][0]) == tx(sr), "special not steady"
    assert tx(rounds[1][2]) == tx(l2)
    sp = {}
    mcount = 0
    for i, x in enumerate(sr):
        if x.kind == "mfma":
            if mcount in (64, 128, 192):
                j = i
                while sr[j - 1].kind == "wait":
                    j -= 1
                sp[mcount] = j
            mcount += 1
    s14, s15, s_b, s_c = sr[:sp[64]], sr[sp[64]:sp[128]], sr[sp[128]:sp[192]], sr[sp[192]:]
    vm = []
    if RL == "A":
        started = False
        last_m0 = None
        offs = [f"s_add_u32 s{r}," for r in (S_KOFF, S_KOFF2, S_VOFF, S_VOFF2)] + [f"s_and_b32 s{r}," for r in (S_KOFF, S_KOFF2, S_VOFF, S_VOFF2)]
        for x in s15:
            if x.kind == "salu" and x.text.startswith("s_add_u32 m0"):
                last_m0 = x
            if x.kind == "dma" and x.tag[0] == "K":
                started = True
            if started:
                if x.kind == "dma":
                    assert x.tag[0] in ("K", "V")
                    vm += [last_m0, nop(0), x]
                elif x.kind == "vmem_st":
                    vm.append(x)
                elif x.kind == "salu" and any(x.text.startswith(p) for p in offs):
                    vm.append(x)
    pro = prologue([uncountedcopy(x) for x in vm])
    pro_r = insert_waits(pro, WaitState())
    loop_ctl = [raw(f"s_add_u32 s{S_CNT}, s{S_CNT}, 1", kind="salu"),
                raw(f"s_cmp_lt_u32 s{S_CNT}, 6", kind="salu"),
                raw(f"s_cbranch_scc1 L_loop{RL}", kind="branch")]
    exit_ctl = [raw(f"s_add_u32 s{S_RHO}, s{S_RHO}, 1", kind="salu")]
    fin_ctl = [raw(f"s_cmp_eq_u32 s{S_RHO}, 3", kind="salu"),
               raw(f"s_cbranch_scc1 L_f15{RL}", kind="branch")]
    fin = build_final(Gf, stf)
    check_hazards(s14 + fin_ctl + fin, "final" + RL)
    check_hazards(pro_r + s_b + exit_ctl + s_c + l1 + loop_ctl + l1 + loop_ctl + s14 + s15 + s_b + exit_ctl + s_c + l1, "main" + RL)
    names = [("l0" + RL, 0), ("l1" + RL, 1), ("s14" + RL, 0), ("s15" + RL, 1), ("s1" + RL, 1), ("f15" + RL, 1)]
    if opt('first', 1):
        check_hazards(pro_r + first_b + exit_ctl + s_c, "first" + RL)
        seq = [label(f"L_pro{RL}")] + pro_r + stamp() + first_b + [raw(f"s_branch L_it0e{RL}", kind="branch")]
    else:
        seq = [label(f"L_pro{RL}")] + pro_r + [raw(f"s_branch L_it0{RL}", kind="branch")]
    seq += [label(f"L_sa{RL}")] + dump2() + stamp() + s14 + fin_ctl + stamp() + s15 + [label(f"L_it0{RL}")] + stamp() + s_b + [label(f"L_it0e{RL}")] + exit_ctl + stamp() + s_c + stamp() + [label(f"L_loop{RL}")] + l1 + loop_ctl
    seq += [raw(f"s_branch L_sa{RL}", kind="branch")]
    seq += [label(f"L_f15{RL}")] + stamp() + fin + [raw("s_branch L_fin", kind="branch")]
    rare = []
    for nm, par in names:
        r = rare_path(par, nm)
        check_hazards(r, "rare")
        rare += r
    return seq, rare


def final_drain():
    o = [wait_lgkm0()]
    rds, sts = [], []
    for k in range(NDIR, 8):
        u = chunk_space(k)
        for io in range(4):
            reg = 16 * u + 4 * io
            rds.append(ds_read("ds_read_b128", "v", reg, 4, V_LIN, u * QUNIT + rdoff(io)))
            sts.append([S(f"s_add_u32 s47, s{S_WQ}, {fchunk(k) + stoff(io)}"),
                        bstore("v", reg, 4, V_OST, S_O, "s47", 0, tag="ST", flags=STNT)])
    n = len(rds)
    for i in range(n + 6):
        if i < n:
            o.append(rds[i])
        if i >= 6:
            o += sts[i - 6]
    r = insert_waits(o, WaitState())
    check_hazards(r, "fin")
    return r


def main():
    global ROLE
    head = prologue_head()
    ROLE = "A"
    sa, ra = build_role()
    ROLE = "B"
    sb, rb = build_role()
    seq = head[:2] + stamp_init() + stamp(0, force=True) + head[2:]
    seq += [raw(f"s_cmp_ge_u32 s{S_W}, 2", kind="salu"), raw("s_cbranch_scc1 L_proB", kind="branch")]
    seq += sa + [label("L_fin")] + stamp_out(2) + [label("L_end"), raw("s_endpgm")] + sb + ra + rb + [raw("s_endpgm")]
    hdr = open(f"cdna_kernels/{NAME}.s.ref").read().split("\n")
    head = [l for l in hdr if l.startswith(";") and "@launch" not in l and "Override" not in l and "grid=ceil" not in l]
    txt = "\n".join(head) + "\n"
    txt += f"; @launch grid=(256,1,1) block=(256,1,1) lds={LDS_BYTES}\n"
    txt += f'.amdgcn_target "amdgcn-amd-amdhsa--gfx950"\n.text\n.globl {NAME}_kernel\n.p2align 8\n.type {NAME}_kernel,@function\n{NAME}_kernel:\n'
    txt += render(seq) + "\n"
    txt += f""".section .rodata,"a"
.p2align 6
.amdhsa_kernel {NAME}_kernel
  .amdhsa_next_free_vgpr 512
  .amdhsa_next_free_sgpr 96
  .amdhsa_accum_offset 256
  .amdhsa_group_segment_fixed_size 0
  .amdhsa_kernarg_size 48
  .amdhsa_user_sgpr_count 2
  .amdhsa_user_sgpr_kernarg_segment_ptr 1
  .amdhsa_system_sgpr_workgroup_id_x 1
.end_amdhsa_kernel
"""
    out = sys.argv[1] if len(sys.argv) > 1 else f"cdna_kernels/{NAME}.s"
    open(out, "w").write(txt)
    print("wrote", out, len(seq), "instructions", len(txt), "bytes")


def uncountedcopy(x):
    y = Ins(x.text, rd=x.rd, wr=x.wr, kind=x.kind, cost=x.cost, tag=x.tag)
    return y


main()
```

```python
import sys, math, struct
sys.path.insert(0, "work")
from fw import *

NAME = "standalone__mha_softmax__near_ridge"
ARGS = sys.argv[2:]
STAMP = "stamp" in ARGS
PROF = "prof" in ARGS
PROF2 = "prof2" in ARGS
PFS = 128


def opt(name, default):
    for a in ARGS:
        if a.startswith(name + "="):
            return int(a.split("=")[1])
    return default


OA = ("v", 0)
OB = ("a", 0)
QA = 128
QB = 192
SB = [128, 160]
P0 = 192
P1 = 208
FB = 216
TT = 232
V_KA, V_VA, V_DMA = 236, 237, 238
V_NMC = [239, 240]
V_L = [241, 242]
V_LT = [243, 244]
V_TMP = 245
V_QO = 246
V_T2 = 247
V_T3 = 248
V_QDMA = 249
V_QRD = 250
V_PF = 251
V_RINV = [252, 254]
V_QCUR = 253
V_TMP2 = 255

S_Q, S_K, S_V, S_O = 4, 8, 12, 16
S_XH = 3
S_W = 20
S_C = 21
S_THR = 22
S_KOFF = 23
S_VOFF = 24
S_KM0 = 25
S_VM0 = 26
S_CNT = 27
S_QS = 28
S_QSTEP = 29
S_NC = 30
S_QM = 31
S_KN = 48
S_VN = 50
S_KVN = 52
S_16K = 53
S_ON = 54
S_T = 57
S_QMB = 58
S_RHO = 59
S_KOFF2 = 68
S_VOFF2 = 69
S_PF = 72
S_PFOFF = 70
S_PFN = 76
S_WQ = 71
S_BQ = 78
S_BQM = 79
S_ROT = 80
S_ROT2 = 81
S_PAD = 84
ROTM = opt('rot', 15)
PFMODE = opt('pf', 0)
QNT = [' ', ' nt', ' sc1', ' sc0 sc1', ' sc1 nt', ' sc0 sc1 nt', ' sc0', ' sc0 nt'][opt('qnt', 1)].rstrip()
if QNT and not QNT.startswith(' '):
    QNT = ' ' + QNT
FL = ['', ' nt', ' sc1', ' sc0 sc1', ' sc1 nt', ' sc0 sc1 nt', ' sc0', ' sc0 nt']
STNT = FL[opt('stnt', 1)]
KVNT = [' ', ' nt', ' sc1', ' sc0 sc1', ' sc1 nt', ' sc0 sc1 nt', ' sc0', ' sc0 nt'][opt('kvnt', 1)].rstrip()
if KVNT and not KVNT.startswith(' '):
    KVNT = ' ' + KVNT
ROLE = "A"
PD = opt("pd", 6)

KBLK, VBLK = 1040, 1088
KSLOT = [0, 16 * KBLK]
VSLOT = [32 * KBLK, 32 * KBLK + 16 * VBLK]
QBASE = 32 * KBLK + 32 * VBLK
QUNIT = 4656
QDUMMY = QBASE + 4 * 5 * QUNIT
LDS_BYTES = QDUMMY + 1024

SCALE = (256 ** -0.5) * math.log2(math.e)
HEAD = opt("head", 19)
HEAD0 = opt("head0", 12)
UNITS = [(0, 0), (1, 0), (0, 1), (1, 1), (0, 2)]
LATE = [((1, 2), 0), ((0, 3), 1), ((1, 3), 2)]


def f32bits(x):
    return struct.unpack("<I", struct.pack("<f", x))[0]


def Oacc(qb, t):
    k, lo = (OA, OB)[qb]
    return (k, lo + 16 * t)


def Qfrag(qb, ks):
    return ("a", (QA, QB)[qb] + 4 * ks)


def Sacc(buf, qb):
    return ("v", SB[buf] + 16 * qb)


def Pfrag(par, qb, s):
    if s == 0:
        return ("v", P0 + par * 8 + qb * 4)
    return ("v", P1 + qb * 4)


def S(text, rd=(), wr=()):
    return salu(text, rd=rd, wr=wr)


def k_read(f, slot):
    return [ds_read("ds_read_b128", "v", FB + 4 * (f % 4), 4, V_KA, KSLOT[slot] + 32 * f)]


def v_read(f, slot):
    t, s = f >> 1, f & 1
    b = FB + 4 * (f % 4)
    return [ds_read("ds_read_b64_tr_b16", "v", b + 2 * u, 2, V_VA, VSLOT[slot] + (2 * s + u) * 4 * VBLK + 64 * t) for u in (0, 1)]


def q_read(qb, ks, space):
    k, lo = Qfrag(qb, ks)
    return ds_read("ds_read_b128", k, lo, 4, V_QRD, space * QUNIT + 32 * (ks & 3))


def dma_unit(kind, j, four=False):
    slot = j & 1
    if kind == "K":
        base, blk, sl, srd, soff, soff2 = S_KM0, KBLK, KSLOT, S_K, S_KOFF, S_KOFF2
    else:
        base, blk, sl, srd, soff, soff2 = S_VM0, VBLK, VSLOT, S_V, S_VOFF, S_VOFF2
    rel = sl[slot] - sl[0]
    groups = []
    for half in ((0,) if four else (0, 1)):
        so = (soff, soff2)[half]
        for q in range(4):
            g = [S(f"s_add_u32 m0, s{base}, {rel + half * 4 * blk + (blk - 512) * q}", rd=[base], wr=["m0"]),
                 nop(0),
                 dma(V_DMA, srd, f"s{so}", 512 * q, tag=(kind, j), flags=KVNT)]
            if q == 3:
                g.append(S(f"s_add_u32 s{so}, s{so}, 16384", rd=[so], wr=[so]))
                g.append(S(f"s_and_b32 s{so}, s{so}, 0x3ffff", rd=[so], wr=[so]))
            groups.append(g)
    return groups


def q_dma_static(qb, lam, space, tag):
    groups = []
    for io in range(4):
        groups.append([S(f"s_add_u32 m0, s{S_QMB}, {space * QUNIT + 1056 * io}", rd=[S_QMB], wr=["m0"]),
                       S(f"s_add_u32 s40, s{S_WQ}, {qb * 16384 + lam * 128 + io * 4096}", wr=[40]),
                       dma(V_QDMA, S_Q, "s40", 0, tag=tag, flags=QNT)])
    return groups


def softmax_steps(buf, par):
    def elem(e):
        s = e >> 4
        qb = (e >> 3) & 1
        r = 8 * s + (e & 7)
        return s, qb, r
    steps = []
    for k in range(34):
        st = []
        if k < 32:
            s, qb, r = elem(k)
            st.append(valu("v_fma_f32", TT + k % 4, SB[buf] + 16 * qb + r, f"s{S_C}", V_NMC[qb]))
        if 0 <= k - 1 < 32:
            e = k - 1
            st.append(trans("v_exp_f32", TT + e % 4, TT + e % 4))
        if 0 <= k - 2 < 32:
            e = k - 2
            s, qb, r = elem(e)
            if r == 1:
                st.append(valu("v_add_f32", V_LT[qb], TT + (e - 1) % 4, TT + e % 4))
            elif r > 1:
                st.append(valu("v_add_f32", V_LT[qb], V_LT[qb], TT + e % 4))
            if r & 1:
                pk, pl = Pfrag(par, qb, s)
                st.append(valu("v_cvt_pk_bf16_f32", pl + ((r & 7) >> 1), TT + (e - 1) % 4, TT + e % 4))
        steps.append(st)
    return steps


def swap32(a, b):
    return Ins(f"v_permlane32_swap_b32 v{a}, v{b}", rd=[("v", a), ("v", b)], wr=[("v", a), ("v", b)], kind="valu")


def row_max2(buf):
    dst = [V_T2, V_T3]
    tmp = [V_TMP, V_TMP2]
    groups = []
    b = [SB[buf], SB[buf] + 16]
    groups.append([valu("v_max3_f32", dst[q], b[q], b[q] + 1, b[q] + 2) for q in (0, 1)])
    for i in range(3, 15, 2):
        groups.append([valu("v_max3_f32", dst[q], dst[q], b[q] + i, b[q] + i + 1) for q in (0, 1)])
    groups.append([valu("v_max_f32", dst[q], dst[q], b[q] + 15) for q in (0, 1)])
    g = [valu("v_mov_b32", tmp[q], dst[q]) for q in (0, 1)]
    g += [nop(1)]
    g += [swap32(tmp[q], dst[q]) for q in (0, 1)]
    g += [nop(0)]
    g += [valu("v_max_f32", dst[q], dst[q], tmp[q]) for q in (0, 1)]
    g += [valu("v_mul_f32", V_NMC[q], f"s{S_NC}", dst[q]) for q in (0, 1)]
    if opt('pad', 1):
        g += [valu("v_min_f32", V_NMC[1], f"s{S_PAD}", V_NMC[1])]
    groups.append(g)
    return groups


def rinv_group():
    tmp = [V_TMP, V_TMP2]
    g = [valu("v_mov_b32", tmp[q], V_L[q]) for q in (0, 1)]
    g += [nop(1)]
    g += [swap32(tmp[q], V_L[q]) for q in (0, 1)]
    g += [nop(0)]
    g += [valu("v_add_f32", V_L[q], V_L[q], tmp[q]) for q in (0, 1)]
    g += [trans("v_rcp_f32", V_RINV[q], V_L[q]) for q in (0, 1)]
    return g


def row_max(buf, qb, dst, tmp):
    b = SB[buf] + 16 * qb
    out = [valu("v_max3_f32", dst, b, b + 1, b + 2)]
    for i in range(3, 15, 2):
        out.append(valu("v_max3_f32", dst, dst, b + i, b + i + 1))
    out.append(valu("v_max_f32", dst, dst, b + 15))
    out.append(valu("v_mov_b32", tmp, dst))
    out.append(nop(1))
    out.append(swap32(tmp, dst))
    out.append(nop(0))
    out.append(valu("v_max_f32", dst, dst, tmp))
    return out


def flat(steps):
    out = []
    for st in steps:
        out += st
        out.append(nop(0))
    return out


def rare_path(par, name):
    out = [label(f"L_rare{name}")]
    out.append(nop(7))
    for qb in (0, 1):
        out += row_max(par, qb, V_T2, V_TMP)
        out.append(valu("v_mul_f32", V_T2, f"s{S_NC}", V_T2))
        out.append(valu("v_min_f32", V_T2, V_T2, V_NMC[qb]))
        out.append(valu("v_sub_f32", V_T3, V_T2, V_NMC[qb]))
        out.append(trans("v_exp_f32", V_T3, V_T3))
        out.append(valu("v_mov_b32", V_NMC[qb], V_T2))
        out.append(valu("v_mul_f32", V_L[qb], V_L[qb], V_T3))
        for r in range(128):
            if qb == 0:
                out.append(valu("v_mul_f32", r, r, V_T3))
            else:
                out.append(valu("v_accvgpr_read_b32", V_TMP, ("a", r)))
                out.append(valu("v_mul_f32", V_TMP, V_TMP, V_T3))
                out.append(valu("v_accvgpr_write_b32", ("a", r), V_TMP))
    out += flat(softmax_steps(par, par))
    out.append(nop(3))
    out.append(raw(f"s_branch L_back{name}", kind="branch"))
    return out


def pk_mul(r, qb):
    sel = "op_sel_hi:[1,0]"
    p = V_RINV[qb]
    return Ins(f"v_pk_mul_f32 v[{r}:{r+1}], v[{r}:{r+1}], v[{p}:{p+1}] {sel}",
               rd=[("v", r), ("v", r + 1), ("v", V_RINV[qb])], wr=[("v", r), ("v", r + 1)], kind="valu")


def pk_muls(rs_, qb):
    if opt('pkm', 1):
        return [pk_mul(r, qb) for r in rs_]
    return [valu("v_mul_f32", r + e, r + e, V_RINV[qb]) for r in rs_ for e in (0, 1)]


V_LIN = 251
V_W = 253
V_OST = 246
S_LD1 = 76
S_LD2 = 77


def rdoff(io):
    return ((io & 1) * 18 + (io >> 1) * 148) * 16


def stoff(io):
    return (io & 1) * 1024 + (io >> 1) * 8192


V_DR = 252
S_OD = 72
S_DF = 70
NDIR = opt('ndir', 3)


def chunk_space(k):
    return (k - NDIR) % 5


def fchunk(k):
    return (k & 1) * 16384 + (k >> 1) * 128


def epi_chunks(tp, final=False):
    Rb = 32 * tp
    items = []
    spa = chunk_space(2 * tp) * QUNIT
    spb = chunk_space(2 * tp + 1) * QUNIT
    dira = 2 * tp < NDIR
    dirb = 2 * tp + 1 < NDIR
    if final:
        spa = ((2 * tp) % 5) * QUNIT
        spb = ((2 * tp + 1) % 5) * QUNIT
        dira = dirb = True

    def wr(reg, sp, j):
        return ds_write("ds_write_b128", V_W, "v", reg, 4, sp + 32 * j)

    def rd(reg, sp, io):
        return ds_read("ds_read_b128", "v", reg, 4, V_LIN, sp + rdoff(io))

    def st(reg, qb, io):
        return [S(f"s_add_u32 s47, s{S_WQ}, {qb * 16384 + stoff(io)}"),
                bstore("v", reg, 4, V_OST, S_O, "s47", 128 * tp, tag="ST", flags=STNT)]
    for tl in (0, 1):
        t = 2 * tp + tl
        for gp in (0, 1):
            o = Rb + 16 * tl + 8 * gp
            items.append((pk_muls([o + 2 * j for j in range(4)], 0), "a", t))
            items.append(([valu("v_cvt_pk_bf16_f32", o + e, o + 2 * e, o + 2 * e + 1) for e in range(4)] + [wr(o, spa, 2 * tl + gp)], "a", t))
    areg = [Rb, Rb + 8, Rb + 16, Rb + 24]
    astores = []
    if dira:
        items.append(([rd(areg[io], spa, io) for io in range(4)], "a", 2 * tp + 1))
        astores = [(st(areg[io], 0, io), "a", 2 * tp + 1) for io in range(4)]
    breg = [Rb + 4, Rb + 12, Rb + 20, Rb + 28]
    first = True
    for tl in (0, 1):
        t = 2 * tp + tl
        for gp in (0, 1):
            tmp = [breg[2 * gp] + e for e in range(4)] + [breg[2 * gp + 1] + e for e in range(4)]
            src = 16 * t + 8 * gp
            items.append(([valu("v_accvgpr_read_b32", tmp[e], ("a", src + e)) for e in range(4)], "b", t))
            items.append(([valu("v_accvgpr_read_b32", tmp[e], ("a", src + e)) for e in range(4, 8)], "b", t))
            items.append((pk_muls([tmp[2 * j] for j in range(4)], 1), "b", t))
            items.append(([valu("v_cvt_pk_bf16_f32", tmp[e], tmp[2 * e], tmp[2 * e + 1]) for e in range(4)] + [wr(tmp[0], spb, 2 * tl + gp)], "b", t))
            if first:
                items += astores[:2]
                first = False
            elif astores:
                items += astores[2:]
                astores = []
    bstores = []
    if dirb:
        items.append(([rd(breg[io], spb, io) for io in range(4)], "b", 2 * tp + 1))
        bstores = [(st(breg[io], 1, io), "b", 2 * tp + 1) for io in range(4)]
    def keep(x):
        t = x.text
        if opt('xmul', 0) and ('pk_mul' in t or 'v_mul_f32' in t): return False
        if opt('xacc', 0) and 'accvgpr_read' in t: return False
        if opt('xcvt', 0) and 'v_cvt_pk' in t: return False
        if opt('xwr', 0) and 'ds_write' in t: return False
        return True
    items = [([x for x in g if keep(x)], k, t) for g, k, t in items]
    items = [it for it in items if it[0]]
    return items, bstores


DRR = [1, 7, 13, 19]
DRS = [5, 11, 17, 23]


def drain(R_, b, ldsoff, client):
    for io in range(4):
        R_.add(b + DRR[io], [ds_read("ds_read_b128", "v", V_DR, 4, V_LIN, ldsoff + rdoff(io))])
        R_.add(b + DRS[io], [S(f"s_add_u32 s47, s{S_DF}, {client * 32768 + stoff(io)}"),
                             bstore("v", V_DR, 4, V_OST, S_OD, "s47", 0, tag="DR", flags=STNT)])


def tile_params():
    o = []
    A = lambda t: o.append([S(t)])
    A(f"s_mul_hi_u32 s42, s{S_T}, 0x55555556")
    A("s_mul_i32 s43, s42, 3")
    A(f"s_sub_u32 s43, s{S_T}, s43")
    if opt('pad', 1):
        o.append([S("s_cmp_eq_u32 s43, 2"), S("s_cselect_b32 s85, 3, 7"), S(f"s_cmp_eq_u32 s{S_W}, s85"),
                  S(f"s_mov_b32 s85, {f32bits(1e38):#x}"), S(f"s_cselect_b32 s{S_PAD}, {f32bits(-1e30):#x}, s85")])
    A(f"s_add_u32 s42, s42, s{S_XH}")
    A("s_mul_i32 s44, s42, 376832")
    A("s_lshl_b32 s43, s43, 17")
    A("s_add_u32 s44, s44, s43")
    A("s_lshl_b32 s45, s42, 18")
    A(f"s_lshr_b32 s{S_ROT}, s42, 4")
    A(f"s_xor_b32 s{S_ROT}, s{S_ROT}, s42")
    A(f"s_and_b32 s{S_ROT}, s{S_ROT}, {ROTM}")
    A(f"s_lshl_b32 s{S_ROT}, s{S_ROT}, 14")
    A(f"s_add_u32 s{S_ROT2}, s{S_ROT}, 0x1000")
    A("s_sub_u32 s43, 376832, s43")
    o.append([S(f"s_cmp_lt_u32 s{S_T}, 96"), S("s_cselect_b32 s43, s43, 0"), S(f"s_cselect_b32 s{S_KVN}, 262144, 0")])
    o.append([S(f"s_add_u32 s{S_Q}, s32, s44"), S(f"s_addc_u32 s{S_Q+1}, s33, 0")])
    A(f"s_and_b32 s{S_Q+1}, s{S_Q+1}, 0xffff")
    A(f"s_mov_b32 s{S_Q+2}, s43" if not opt('noq', 0) else f"s_mov_b32 s{S_Q+2}, 0")
    o.append([S(f"s_add_u32 s{S_ON}, s38, s44"), S(f"s_addc_u32 s{S_ON+1}, s39, 0")])
    A(f"s_and_b32 s{S_ON+1}, s{S_ON+1}, 0xffff")
    A(f"s_mov_b32 s{S_ON+2}, s43" if not opt('nost', 0) else f"s_mov_b32 s{S_ON+2}, 0")
    o.append([S(f"s_add_u32 s{S_KN}, s34, s45"), S(f"s_addc_u32 s{S_KN+1}, s35, 0")])
    A(f"s_and_b32 s{S_KN+1}, s{S_KN+1}, 0xffff")
    o.append([S(f"s_add_u32 s{S_VN}, s36, s45"), S(f"s_addc_u32 s{S_VN+1}, s37, 0")])
    A(f"s_and_b32 s{S_VN+1}, s{S_VN+1}, 0xffff")
    return o


def wrap2(g, acc):
    if not PROF2:
        return g
    T = lambda t: raw(t, kind="salu", cost=0)
    out = []
    for x in g:
        if x.kind == "dma":
            out += [T("s_memtime s[82:83]"), raw("s_waitcnt lgkmcnt(0)", kind="wait", cost=0), x,
                    T("s_memtime s[84:85]"), raw("s_waitcnt lgkmcnt(0)", kind="wait", cost=0),
                    T("s_sub_u32 s82, s84, s82"), T(f"s_add_u32 s{acc}, s{acc}, s82")]
        else:
            out.append(x)
    return out


class Region:
    def __init__(self, n):
        self.n = n
        self.mf = [None] * n
        self.g = [[] for _ in range(n)]

    def add(self, gap, items):
        self.g[gap] += [x for x in items if x is not None]

    def load(self, gap):
        return sum(x.cost for x in self.g[gap])

    def place(self, seqs, name=""):
        base = [self.load(i) for i in range(self.n)]

        def attempt(level):
            ld = list(base)
            res = []
            cur = 0
            for grp, rel, dl in seqs:
                c = sum(x.cost for x in grp)
                g = max(cur, rel)
                while g <= dl and ld[g] + c > level and not (ld[g] == 0):
                    g += 1
                if g > dl:
                    return None
                ld[g] += c
                res.append(g)
                cur = g
            return res
        level = 8
        while True:
            r = attempt(level)
            if r is not None:
                break
            level += 2
            assert level < 400, "cannot place " + name
        for (grp, rel, dl), g in zip(seqs, r):
            self.g[g] += grp
        if name:
            print(f"  place {name}: level {level}")

    def flatten(self):
        out = []
        for i in range(self.n):
            if self.mf[i] is not None:
                out.append(self.mf[i])
            out += self.g[i]
        return out


def base_iteration(R_, b, role, G, name, extra59=()):
    par = G & 1
    np_ = par ^ 1
    first_of_tile = (role == 0)
    for ks in range(16):
        for qb in (0, 1):
            F = ("v", FB + 4 * (ks % 4))
            D = Sacc(np_, qb)
            R_.mf[b + 2 * ks + qb] = mfma32(D, F, Qfrag(qb, ks), None if ks == 0 else D)
    for f in range(16):
        t, s = f >> 1, f & 1
        for qb in (0, 1):
            F = ("v", FB + 4 * (f % 4))
            D = Oacc(qb, t)
            C = None if (first_of_tile and s == 0) else D
            R_.mf[b + 32 + 2 * f + qb] = mfma32(D, F, Pfrag(par, qb, s), C)
    extra59 = list(extra59)
    for f in range(4, 16):
        R_.add(b + 2 * f - 7, k_read(f, np_))
    A_ = ROLE == "A"

    def prof(w, acc):
        if not PROF:
            return list(w) + [wait_lgkm0(), barrier()]
        T = lambda t: raw(t, kind="salu", cost=0)
        return [wait_lgkm0(), T("s_memtime s[82:83]"), wait_lgkm0()] + list(w) + [T("s_memtime s[84:85]"), raw("s_waitcnt lgkmcnt(0)", kind="wait", cost=0), barrier(),
                T("s_memtime s[86:87]"), raw("s_waitcnt lgkmcnt(0)", kind="wait", cost=0),
                T("s_sub_u32 s82, s82, s92"), T("s_mov_b32 s92, s86"),
                T(f"s_add_u32 s{88 if acc == 88 else 89}, s{88 if acc == 88 else 89}, s82")]
    R_.add(b + 27, prof([wait_vm(("V", G))] if A_ else [], 88) + v_read(0, par) + v_read(1, par))
    R_.add(b + 29, v_read(2, par))
    R_.add(b + 31, v_read(3, par))
    for f in range(4, 16):
        R_.add(b + 32 + 2 * f - 7, v_read(f, par))
    R_.add(b + 59, prof([wait_vm(("K", G + 2))] if A_ else extra59, 90) + k_read(0, par) + k_read(1, par))
    R_.add(b + 61, k_read(2, par))
    R_.add(b + 63, k_read(3, par))
    if A_:
        grp = dma_unit("K", G + 3)
        for q, g in enumerate(grp):
            R_.add(b + KD[q], wrap2(g, 88))
        grp = dma_unit("V", G + 2)
        for q in range(len(VD)):
            R_.add(b + VD[q], wrap2(grp[q], 89))
        grp = dma_unit("V", G + 1)
        for q in range(len(VD2)):
            R_.add(b + VD2[q], wrap2(grp[len(VD) + q], 89))
    elif PFMODE:
        for q in range(2):
            g = [S(f"s_mov_b32 m0, {QDUMMY}", wr=["m0"]),
                 S(f"s_add_u32 s41, s{S_PFOFF}, {8192 * q}"),
                 Ins(f"buffer_load_dword v{V_DMA}, s[{S_PF}:{S_PF+3}], s41 offen lds", rd=[("v", V_DMA), ("s", "m0")], kind="dma", cost=16, tag=("PF", G))]
            if q == 1:
                g.append(S(f"s_add_u32 s{S_PFOFF}, s{S_PFOFF}, 16384"))
                g.append(S(f"s_and_b32 s{S_PFOFF}, s{S_PFOFF}, 0x3ffff"))
            R_.add(b + PFD[q], wrap2(g, 89))


KD = [[29, 32, 35, 38, 41, 44, 47, 50], [29, 33, 37, 41, 45, 49, 53, 57], [28, 32, 36, 40, 44, 48, 52, 56], [30, 34, 38, 42, 46, 50, 54, 58]][opt('kd', 2)]
VD = [[60, 61, 62, 63], [60, 62], [60, 62], [61]][opt('vd', 2)]
VD2 = [[0, 2, 4, 6], [0, 2, 4, 6, 9, 12], [0, 3, 6, 9, 12, 15], [0, 3, 6, 9, 12, 15, 18]][opt('vd', 2)]
QD = [34, 38, 42, 46]
PFD = [12, 20]


def softmax_part(R_, b, role, G, name, head_prev, head_next, next_true_max=False):
    name = name + ROLE
    par = G & 1
    np_ = par ^ 1
    st = softmax_steps(par, par)
    R_.place([(s_, b + 0, b + 28) for s_ in st[head_prev:]], name + ".tail")
    if role == 0:
        R_.add(b + 30, [valu("v_mov_b32", V_L[0], V_LT[0]), valu("v_mov_b32", V_L[1], V_LT[1])])
    else:
        R_.add(b + 29, [valu("v_add_f32", V_TMP, V_LT[0], V_LT[1])])
        R_.add(b + 30, [valu("v_cmp_nge_f32", "vcc", f"s{S_THR}", V_TMP),
                        raw(f"s_cbranch_vccnz L_rare{name}", kind="branch"),
                        label(f"L_back{name}"),
                        valu("v_add_f32", V_L[0], V_L[0], V_LT[0]),
                        valu("v_add_f32", V_L[1], V_L[1], V_LT[1])])
    st = softmax_steps(np_, np_)
    seq = []
    lo = b + 35
    if next_true_max:
        seq.append((rinv_group(), b + 32, b + 34))
        for g in row_max2(np_):
            seq.append((g, b + 34, b + 63))
    for s_ in st[:head_next]:
        seq.append((s_, lo, b + 63))
    R_.place(seq, name + ".head")


def build_loop(G):
    R_ = Region(128)
    c = S_CNT
    x59 = []
    if ROLE == "B":
        x59 = [S(f"s_cmp_lg_u32 s{c}, 5"), raw("s_cbranch_scc1 L_skipq", kind="branch"), wait_vm(("Q", G - 1)), label("L_skipq")]
    base_iteration(R_, 0, 2, G, "l0")
    base_iteration(R_, 64, 3, G + 1, "l1", extra59=x59)
    if opt('lfine', 0):
        for g in range(0, 128, opt('lfine', 0)):
            R_.g[g] = stamp() + R_.g[g]
    if ROLE == "B":
        pre = [S(f"s_and_b32 s42, s{c}, 1"), S("s_lshl_b32 s42, s42, 14"), S(f"s_lshr_b32 s43, s{c}, 1"),
               S("s_lshl_b32 s43, s43, 7"), S("s_or_b32 s44, s42, s43"),
               S(f"s_mul_i32 s45, s{c}, {QUNIT}"), S(f"s_add_u32 s45, s45, s{S_BQM}")]
        sel = [S(f"s_cmp_eq_u32 s{c}, 5"), S("s_cselect_b32 s44, 0x40000000, s44"),
               S(f"s_cselect_b32 s46, 0, {5 * QUNIT}"),
               S(f"s_cselect_b32 s{S_QSTEP}, 0, 1056"),
               S(f"s_cselect_b32 s45, {QDUMMY}, s45")]
        for k, x in enumerate(pre):
            R_.add(3 + 2 * k, [x])
        R_.add(18, sel)
        for it in (0, 1):
            b = 64 * it
            if it == 0:
                R_.add(b + 22, [S(f"s_add_u32 s{S_QS}, s44, s{S_BQ}"), S(f"s_mov_b32 s{S_QM}, s45")])
            else:
                R_.add(b + 22, [S(f"s_add_u32 s{S_QS}, s44, s{S_BQ}"), S(f"s_add_u32 s{S_QS}, s{S_QS}, 32768"), S(f"s_add_u32 s{S_QM}, s45, s46")])
            for io in range(4):
                R_.add(b + QD[io], wrap2([S(f"s_mov_b32 m0, s{S_QM}", rd=[S_QM], wr=["m0"]), S(f"s_add_u32 s{S_QM}, s{S_QM}, s{S_QSTEP}"),
                                    dma(V_QDMA, S_Q, f"s{S_QS}", 0, tag=("Q", G + it), flags=QNT),
                                    S(f"s_add_u32 s{S_QS}, s{S_QS}, 0x1000")], 88))
        drain(R_, 0, 5 * QUNIT, 1)
        df = [S(f"s_add_u32 s92, s{c}, {NDIR + 1}"), S("s_and_b32 s93, s92, 1"), S("s_lshl_b32 s93, s93, 14"),
              S("s_lshr_b32 s92, s92, 1"), S("s_lshl_b32 s92, s92, 7"), S("s_or_b32 s92, s92, s93"),
              S(f"s_add_u32 s92, s92, s{S_BQ}")]
        for k, x in enumerate(df):
            R_.add(33 + 2 * k, [x])
        R_.add(63, [S(f"s_cmp_ge_u32 s{c}, 4"), S(f"s_cselect_b32 s{S_DF}, 0x40000000, s92"), S(f"s_cselect_b32 s93, 0, {QUNIT}")])
        drain(R_, 64, QUNIT, 0)
        R_.add(64 + 28, [valu("v_add_u32", V_LIN, "s93", V_LIN)])
    else:
        R_.add(64 + 4, [S(f"s_cmp_eq_u32 s{c}, 5"),
                        S(f"s_cselect_b32 s{S_K}, s{S_KN}, s{S_K}"),
                        S(f"s_cselect_b32 s{S_K+1}, s{S_KN+1}, s{S_K+1}"),
                        S(f"s_cselect_b32 s{S_K+2}, s{S_KVN}, s{S_K+2}"),
                        S(f"s_cselect_b32 s{S_KOFF}, s{S_ROT}, s{S_KOFF}"),
                        S(f"s_cselect_b32 s{S_KOFF2}, s{S_ROT2}, s{S_KOFF2}")])
    softmax_part(R_, 0, 2, G, "l0", HEAD, HEAD)
    softmax_part(R_, 64, 3, G + 1, "l1", HEAD, HEAD)
    return R_


def build_special(G):
    R_ = Region(256)
    base_iteration(R_, 0, 14, G, "s14")
    base_iteration(R_, 64, 15, G + 1, "s15")
    base_iteration(R_, 128, 0, G + 2, "s0")
    base_iteration(R_, 192, 1, G + 3, "s1")
    if opt('fine', 0):
        for g in range(0, 256, opt('fine', 0)):
            if g % 64:
                R_.add(g, stamp())
    if ROLE == "A":
        R_.add(50, [S(f"s_mov_b32 s{S_V}, s{S_VN}"), S(f"s_mov_b32 s{S_V+1}, s{S_VN+1}"),
                    S(f"s_mov_b32 s{S_V+2}, s{S_KVN}"), S(f"s_mov_b32 s{S_VOFF}, s{S_ROT}"), S(f"s_mov_b32 s{S_VOFF2}, s{S_ROT2}")])
    for u, (qb, lam) in enumerate(UNITS):
        for ksl in range(4):
            ks = 4 * lam + ksl
            R_.add(2 * ks + qb + 2, [q_read(qb, ks, u)])
    def unit_regs(qb, lam):
        r = []
        for ksl in range(4):
            k, lo = Qfrag(qb, 4 * lam + ksl)
            r += R(k, lo, 4)
        return r
    late_start = [11, 12, 19]
    for idx, ((qb, lam), space) in enumerate(LATE):
        oq, ol = UNITS[space]
        grp = q_dma_static(qb, lam, space, ("QL", G, idx))
        grp[0] = [touch(unit_regs(oq, ol))] + grp[0]
        g0 = late_start[idx]
        for io in range(4):
            R_.add(g0 + 2 * io, grp[io])
    rd_at = [64 + LR0, 64 + LR1, 64 + LR2]
    for idx, ((qb, lam), space) in enumerate(LATE):
        R_.add(rd_at[idx], [wait_vm(("QL", G, idx))] + [q_read(qb, 4 * lam + ksl, space) for ksl in range(4)])
    softmax_part(R_, 0, 14, G, "s14", HEAD, HEAD)
    softmax_part(R_, 64, 15, G + 1, "s15", HEAD, HEAD0, next_true_max=True)
    softmax_part(R_, 128, 0, G + 2, "s0", HEAD0, HEAD)
    softmax_part(R_, 192, 1, G + 3, "s1", HEAD, HEAD)
    R_.add(64 + 26, [valu("v_mbcnt_lo_u32_b32", V_W, "-1", "0"), valu("v_mbcnt_hi_u32_b32", V_W, "-1", V_W),
                     valu("v_and_b32", V_T2, "31", V_W), valu("v_mul_u32_u24", V_T3, "0x90", V_T2)])
    R_.add(64 + 28, [valu("v_lshrrev_b32", V_T2, "4", V_T2), valu("v_lshl_add_u32", V_T3, V_T2, "6", V_T3),
                     valu("v_lshrrev_b32", V_W, "5", V_W), valu("v_lshl_add_u32", V_W, V_W, "4", V_T3),
                     valu("v_add_u32", V_W, f"s{S_QMB}", V_W)])
    seq = []
    if ROLE == "B":
        seq.append(([valu("v_add_u32", V_LIN, f"s{S_LD1}", V_LIN)], 64 + 30, 64 + 40))
    pend = []
    for tp in range(4):
        items, bst = epi_chunks(tp)
        dl = 128 + 32 + 8 * tp - 1
        k = 0
        for g, kind, t in items:
            rel = 64 + 32 + 4 * t + 2 + EREL + (1 if kind == "b" else 0)
            seq.append((g, rel, dl))
            k += 1
            if pend and k in (2, 4, 6, 8):
                g2, d2 = pend.pop(0)
                seq.append((g2, rel, d2))
        assert not pend
        pend = [(g, dl) for g, kind, t in bst]
    for g2, d2 in pend:
        seq.append((g2, 0, d2))
    for g_, _, _ in seq:
        for x in g_:
            x.note = "epi"
    R_.place(seq, "epilogue")
    if ROLE == "B":
        R_.add(192 + 0, [valu("v_add_u32", V_LIN, f"s{S_LD2}", V_LIN),
                         S(f"s_mov_b32 s{S_OD}, s{S_O}"), S(f"s_mov_b32 s{S_OD+1}, s{S_O+1}"), S(f"s_mov_b32 s{S_OD+2}, s{S_O+2}"),
                         S(f"s_add_u32 s{S_DF}, s{S_BQ}, {fchunk(NDIR)}")])
        drain(R_, 192, 0, 0)
    seq = [([S(f"s_mov_b32 s{S_O}, s{S_ON}"), S(f"s_mov_b32 s{S_O+1}, s{S_ON+1}"), S(f"s_mov_b32 s{S_O+2}, s{S_ON+2}")], 192 + 2, 250)]
    seq.append(([S(f"s_add_u32 s{S_T}, s{S_T}, 32")], 192 + 2, 250))
    seq += [(g, 192 + 2, 250) for g in tile_params()]
    seq.append(([S(f"s_mov_b32 s{S_CNT}, 0")], 192 + 2, 250))
    R_.place(seq, "params")
    return R_


def build_final(G, stf):
    par = G & 1
    name = "f15" + ROLE
    pre = []
    pre += flat(softmax_steps(par, par)[HEAD:])
    pre += [valu("v_add_f32", V_TMP, V_LT[0], V_LT[1]), nop(0),
            valu("v_cmp_nge_f32", "vcc", f"s{S_THR}", V_TMP),
            raw(f"s_cbranch_vccnz L_rare{name}", kind="branch"),
            label(f"L_back{name}"),
            valu("v_add_f32", V_L[0], V_L[0], V_LT[0]),
            valu("v_add_f32", V_L[1], V_L[1], V_LT[1])]
    pre += [wait_vm(("V", G)), wait_vm(("QL", G - 1, 2)), wait_lgkm0(), barrier()] + v_read(0, par) + v_read(1, par) + v_read(2, par) + v_read(3, par)
    pre += rinv_group()
    pre += [valu("v_mbcnt_lo_u32_b32", V_W, "-1", "0"), valu("v_mbcnt_hi_u32_b32", V_W, "-1", V_W),
            valu("v_and_b32", V_T2, "31", V_W), valu("v_mul_u32_u24", V_T3, "0x90", V_T2),
            valu("v_lshrrev_b32", V_T2, "4", V_T2), valu("v_lshl_add_u32", V_T3, V_T2, "6", V_T3),
            valu("v_lshrrev_b32", V_W, "5", V_W), valu("v_lshl_add_u32", V_W, V_W, "4", V_T3),
            valu("v_add_u32", V_W, f"s{S_QMB}", V_W)]
    if ROLE == "B":
        pre.append(valu("v_add_u32", V_LIN, f"s{S_LD1}", V_LIN))
    pre.append(nop(3))
    N = 32 + 48
    R_ = Region(N)
    for f in range(16):
        t, s_ = f >> 1, f & 1
        for qb in (0, 1):
            F = ("v", FB + 4 * (f % 4))
            D = Oacc(qb, t)
            R_.mf[2 * f + qb] = mfma32(D, F, Pfrag(par, qb, s_), D)
    for f in range(4, 16):
        R_.add(2 * f - 7, v_read(f, par))
    seq = []
    pend = []
    for tp in range(4):
        items, bst = epi_chunks(tp, final=True)
        k = 0
        for g, kind, t in items:
            rel = 4 * t + 2 + opt('frel', 5) + (1 if kind == "b" else 0)
            seq.append((g, rel, N - 1))
            k += 1
            if pend and k in (2, 4, 6, 8):
                seq.append((pend.pop(0), rel, N - 1))
        assert not pend
        pend = [g for g, kind, t in bst]
    for g2 in pend:
        seq.append((g2, 0, N - 1))
    R_.place(seq, "final")
    R_.g[31] = R_.g[31] + [nop(7), nop(7)]
    r = insert_waits(pre + R_.flatten(), stf)
    return r


LR0 = opt("lr0", 10)
LR1 = opt("lr1", 16)
LR2 = opt("lr2", 18)
EREL = opt("erel", 4)


def prologue_head():
    o = []
    A = o.append
    T = lambda s: A(raw(s, kind="salu"))
    T("s_cmp_ge_u32 s2, 256")
    A(raw("s_cbranch_scc1 L_end", kind="branch"))
    T("s_load_dwordx4 s[32:35], s[0:1], 0")
    T("s_load_dwordx4 s[36:39], s[0:1], 16")
    T(f"s_and_b32 s{S_XH}, s2, 7")
    T(f"s_lshl_b32 s{S_XH}, s{S_XH}, 5")
    T(f"s_lshr_b32 s{S_T}, s2, 3")
    T(f"s_mov_b32 s{S_16K}, 16384")
    A(valu("v_lshrrev_b32", V_TMP, "6", 0))
    A(valu("v_and_b32", V_T2, "63", 0))
    A(valu("v_readfirstlane_b32", f"s{S_W}", V_TMP))
    A(raw("s_waitcnt lgkmcnt(0)", kind="wait"))
    return o


def prologue(it15_vm):
    o = []
    A = o.append
    T = lambda s: A(raw(s, kind="salu"))
    for g in tile_params():
        o += g
    T(f"s_mov_b32 s{S_Q+3}, 0x00020000")
    T(f"s_mov_b32 s{S_K}, s{S_KN}")
    T(f"s_mov_b32 s{S_K+1}, s{S_KN+1}")
    T(f"s_mov_b32 s{S_K+2}, 262144")
    T(f"s_mov_b32 s{S_K+3}, 0x00020000")
    T(f"s_mov_b32 s{S_V}, s{S_VN}")
    T(f"s_mov_b32 s{S_V+1}, s{S_VN+1}")
    T(f"s_mov_b32 s{S_V+2}, 262144")
    T(f"s_mov_b32 s{S_V+3}, 0x00020000")
    T(f"s_mov_b32 s{S_O}, s{S_ON}")
    T(f"s_mov_b32 s{S_O+1}, s{S_ON+1}")
    T(f"s_mov_b32 s{S_O+2}, 0")
    T(f"s_mov_b32 s{S_O+3}, 0x00020000")
    T(f"s_mov_b32 s{S_C}, {f32bits(SCALE):#x}")
    T(f"s_mov_b32 s{S_NC}, {f32bits(-SCALE):#x}")
    T(f"s_mov_b32 s{S_THR}, {f32bits(4096.0):#x}")
    T(f"s_mov_b32 s{S_KOFF}, s{S_ROT}")
    T(f"s_mov_b32 s{S_VOFF}, s{S_ROT}")
    T(f"s_mov_b32 s{S_RHO}, 0")
    T(f"s_mul_i32 s{S_KM0}, s{S_W}, {4*KBLK}")
    T(f"s_add_u32 s{S_KM0}, s{S_KM0}, {KSLOT[0]}")
    T(f"s_mul_i32 s{S_VM0}, s{S_W}, {4*VBLK}")
    T(f"s_add_u32 s{S_VM0}, s{S_VM0}, {VSLOT[0]}")
    T(f"s_mul_i32 s{S_QMB}, s{S_W}, {5*QUNIT}")
    T(f"s_add_u32 s{S_QMB}, s{S_QMB}, {QBASE}")
    T(f"s_lshl_b32 s{S_WQ}, s{S_W}, 15")
    L = V_T2
    A(valu("v_lshrrev_b32", V_TMP, "5", L))
    A(valu("v_lshlrev_b32", V_DMA, "11", V_TMP))
    A(valu("v_and_b32", V_T3, "31", L))
    A(valu("v_lshl_add_u32", V_DMA, V_T3, "4", V_DMA))
    T(f"s_lshl_b32 s46, s{S_W}, 12")
    A(valu("v_add_u32", V_DMA, "s46", V_DMA))
    A(valu("v_lshrrev_b32", TT, "3", L))
    A(valu("v_bfe_u32", TT + 1, L, "4", "1"))
    A(valu("v_and_b32", TT + 2, "7", L))
    A(valu("v_xor_b32", TT + 2, TT + 2, TT + 1))
    A(valu("v_lshlrev_b32", V_QDMA, "9", TT))
    A(valu("v_lshl_add_u32", V_QDMA, TT + 2, "4", V_QDMA))

    def issue(kind, j):
        r = []
        for g in dma_unit(kind, j, four=True):
            r += g
        return r
    o += issue("K", 0)
    for u, (qb, lam) in enumerate(UNITS):
        for g in q_dma_static(qb, lam, u, ("Q0", u)):
            o += g
    A(valu("v_lshrrev_b32", TT, "3", V_T3))
    T("s_movk_i32 s46, 1056")
    A(valu("v_mul_lo_u32", V_QRD, TT, "s46"))
    A(valu("v_and_b32", TT, "7", V_T3))
    A(valu("v_lshl_add_u32", V_QRD, TT, "7", V_QRD))
    A(valu("v_bfe_u32", TT, V_T3, "1", "1"))
    A(valu("v_xor_b32", TT, TT, V_TMP))
    A(valu("v_lshl_add_u32", V_QRD, TT, "4", V_QRD))
    A(valu("v_add_u32", V_QRD, f"s{S_QMB}", V_QRD))
    LATE_CODE = []
    for idx, ((qb, lam), space) in enumerate(LATE):
        oq, ol = UNITS[space]
        LATE_CODE.append(wait_vm(("Q0", space)))
        for ksl in range(4):
            LATE_CODE.append(q_read(oq, 4 * ol + ksl, space))
        LATE_CODE.append(wait_lgkm0())
        for g in q_dma_static(qb, lam, space, ("QL0", idx)):
            LATE_CODE += g
    KV1 = issue("K", 1) + issue("V", 0)
    if opt('kvfirst', 0):
        o += KV1
    A(valu("v_and_b32", V_KA, "3", V_T3))
    A(valu("v_lshrrev_b32", TT, "3", V_T3))
    A(valu("v_lshl_add_u32", V_KA, TT, "2", V_KA))
    T(f"s_movk_i32 s46, {KBLK}")
    A(valu("v_mul_lo_u32", V_KA, V_KA, "s46"))
    A(valu("v_bfe_u32", TT, V_T3, "2", "1"))
    A(valu("v_lshl_add_u32", V_KA, TT, "9", V_KA))
    A(valu("v_lshl_add_u32", V_KA, V_TMP, "4", V_KA))
    A(valu("v_bfe_u32", V_VA, L, "2", "2"))
    T(f"s_movk_i32 s46, {VBLK}")
    A(valu("v_mul_lo_u32", V_VA, V_VA, "s46"))
    A(valu("v_lshl_add_u32", V_VA, V_TMP, "9", V_VA))
    A(valu("v_bfe_u32", TT, L, "4", "1"))
    A(valu("v_lshl_add_u32", V_VA, TT, "5", V_VA))
    A(valu("v_and_b32", TT, "1", L))
    A(valu("v_lshl_add_u32", V_VA, TT, "4", V_VA))
    A(valu("v_bfe_u32", TT, L, "1", "1"))
    A(valu("v_lshl_add_u32", V_VA, TT, "3", V_VA))
    A(valu("v_bfe_u32", TT, L, "3", "2"))
    A(valu("v_lshrrev_b32", TT + 1, "5", L))
    A(valu("v_lshl_add_u32", TT, TT, "2", TT + 1))
    A(valu("v_and_b32", TT + 1, "7", L))
    A(valu("v_lshlrev_b32", V_OST, "9", TT))
    A(valu("v_lshl_add_u32", V_OST, TT + 1, "4", V_OST))
    A(valu("v_mul_u32_u24", V_LIN, "0x90", TT))
    A(valu("v_lshl_add_u32", V_LIN, TT + 1, "4", V_LIN))
    A(valu("v_add_u32", V_LIN, f"s{S_QMB}", V_LIN))
    A(valu("v_mul_u32_u24", V_W, "0x90", V_T3))
    A(valu("v_lshrrev_b32", TT, "4", V_T3))
    A(valu("v_lshl_add_u32", V_W, TT, "6", V_W))
    A(valu("v_lshl_add_u32", V_W, V_TMP, "4", V_W))
    A(valu("v_add_u32", V_W, f"s{S_QMB}", V_W))
    o += LATE_CODE
    if not opt('kvfirst', 0):
        o += KV1
    if ROLE == "A":
        T(f"s_lshl_b32 s46, s{S_W}, 12")
        A(valu("v_add_u32", V_DMA, "s46", V_DMA))
        T(f"s_mul_i32 s{S_KM0}, s{S_W}, {8*KBLK}")
        T(f"s_add_u32 s{S_KM0}, s{S_KM0}, {KSLOT[0]}")
        T(f"s_mul_i32 s{S_VM0}, s{S_W}, {8*VBLK}")
        T(f"s_add_u32 s{S_VM0}, s{S_VM0}, {VSLOT[0]}")
        T(f"s_add_u32 s{S_KOFF2}, s{S_KOFF}, 4096")
        T(f"s_add_u32 s{S_VOFF2}, s{S_VOFF}, 4096")
    else:
        A(valu("v_lshlrev_b32", V_DMA, "7", L))
        T(f"s_mov_b32 s{S_OD+2}, 0")
        T(f"s_mov_b32 s{S_OD+3}, 0x00020000")
        T(f"s_sub_u32 s46, s{S_W}, 2")
        T(f"s_lshl_b32 s{S_BQ}, s46, 16")
        T(f"s_mul_i32 s{S_BQM}, s46, {10 * QUNIT}")
        T(f"s_add_u32 s{S_BQM}, s{S_BQM}, {QBASE}")
        T(f"s_sub_u32 s{S_LD1}, s{S_QMB}, s{S_BQM}")
        T(f"s_sub_u32 s{S_LD2}, s{S_BQM}, s{S_QMB}")
        T(f"s_sub_u32 s{S_LD1}, s{S_LD1}, {4 * QUNIT}")
    A(wait_vm(("K", 0)))
    A(barrier())
    for f in range(4):
        o += k_read(f, 0)
    for ks in range(16):
        lam = ks >> 2
        if (ks & 3) == 0:
            for u, (qb, l2) in enumerate(UNITS):
                if l2 == lam and u >= len(LATE):
                    A(wait_vm(("Q0", u)))
                    for ksl in range(4):
                        A(q_read(qb, 4 * lam + ksl, u))
            for idx, ((qb, l2), space) in enumerate(LATE):
                if l2 == lam:
                    A(wait_vm(("QL0", idx)))
                    for ksl in range(4):
                        A(q_read(qb, 4 * lam + ksl, space))
        for qb in (0, 1):
            F = ("v", FB + 4 * (ks % 4))
            D = Sacc(0, qb)
            A(mfma32(D, F, Qfrag(qb, ks), None if ks == 0 else D))
            g = 2 * ks + qb
            if g >= 1 and (g + 7) % 2 == 0 and 4 <= (g + 7) // 2 < 16:
                o += k_read((g + 7) // 2, 0)
            if g == 27:
                o += [wait_vm(("V", 0)), wait_lgkm0(), barrier()]
                o += k_read(0, 1) + k_read(1, 1)
            if g == 29:
                o += k_read(2, 1)
            if g == 31:
                o += k_read(3, 1)
    o += it15_vm
    A(nop(7))
    A(nop(7))
    for g in row_max2(0):
        o += g
    o += flat(softmax_steps(0, 0)[:HEAD0])
    A(wait_lgkm0())
    return o


def stamp(k=0, force=False):
    if not STAMP or ((PROF or PROF2) and not force):
        return []
    return [raw("s_memrealtime s[60:61]" if opt('rt', 0) else "s_memtime s[60:61]", kind="salu"), raw("s_waitcnt lgkmcnt(0)", kind="wait"),
            raw("v_mov_b32 v255, s60"), raw("buffer_store_dword v255, off, s[64:67], s62"),
            raw("s_add_u32 s62, s62, 4", kind="salu")]


def dump2():
    if not (PROF2 or PROF):
        return []
    o = stamp(force=True)
    for k in range(2):
        o += [raw(f"v_mov_b32 v255, s{88+k}"), raw("buffer_store_dword v255, off, s[64:67], s62"), raw("s_add_u32 s62, s62, 4", kind="salu"),
              raw(f"s_mov_b32 s{88+k}, 0", kind="salu")]
    return o


def stamp_init():
    if not STAMP:
        return []
    o = []
    T = lambda s: o.append(raw(s, kind="salu"))
    T("s_load_dwordx2 s[64:65], s[0:1], 32")
    T("v_lshrrev_b32 v255, 6, v0")
    T("s_nop 1")
    T("v_readfirstlane_b32 s62, v255")
    T("s_memrealtime s[94:95]")
    T("s_waitcnt lgkmcnt(0)")
    T("s_and_b32 s65, s65, 0xffff")
    T("s_mov_b32 s67, 0x00020000")
    T("s_lshl_b32 s62, s62, 8")
    T("s_add_u32 s62, s62, s2")
    T(f"s_cmp_eq_u32 s62, {opt('swg', 0)}")
    T("s_cselect_b32 s66, 256, 0")
    T("s_mov_b32 s62, 0")
    for k in range(4):
        T(f"s_mov_b32 s{88+k}, 0")
    return o


def stamp_out(n):
    if not STAMP:
        return []
    o = [raw("s_waitcnt vmcnt(0)", kind="wait")] + stamp(force=True)
    o += [raw("s_memrealtime s[60:61]", kind="salu"), raw("s_waitcnt lgkmcnt(0)", kind="wait"), raw("s_sub_u32 s60, s60, s94", kind="salu"),
          raw("v_mov_b32 v255, s60"), raw("s_movk_i32 s62, 252", kind="salu"), raw("buffer_store_dword v255, off, s[64:67], s62")]
    if PROF:
        for k in range(2):
            o += [raw(f"v_mov_b32 v255, s{88+k}"), raw("buffer_store_dword v255, off, s[64:67], s62"), raw("s_add_u32 s62, s62, 4", kind="salu")]
    return o


def build_role():
    import io, contextlib
    RL = ROLE
    st = WaitState()
    G = 14
    rounds = []
    for r in range(3):
        buf = io.StringIO()
        with contextlib.redirect_stdout(buf):
            Sx = build_special(G)
            L1 = build_loop(G + 4)
            L2 = build_loop(G + 6)
        if r == 2:
            print(buf.getvalue(), end="")
            for nm, Rg in (("S", Sx), ("L", L1)):
                print(RL, nm, "loads:", " ".join(str(Rg.load(i)) for i in range(Rg.n)))
                print(RL, nm, "over24:", sum(max(0, Rg.load(i) - 24) for i in range(Rg.n)))
        fl = Sx.flatten()
        mis = [i for i, x in enumerate(fl) if x.kind == "mfma"]
        mi, mi2, mi3 = mis[64], mis[128], mis[192]
        sr = insert_waits(fl[:mi], st)
        stf = st.clone()
        Gf = G + 1
        sr = sr + insert_waits(fl[mi:mi2], st)
        st1 = st.clone()
        st1.lds = []
        sr = sr + insert_waits(fl[mi2:mi3], st)
        first_b = insert_waits([x for x in fl[mi2:mi3] if not (x.note == "epi" and x.kind in ("valu", "trans", "ds_rd", "ds_wr"))], st1)
        assert st1.sig() == st.sig(), "first it0 state mismatch"
        sr = sr + insert_waits(fl[mi3:], st)
        l1 = insert_waits(L1.flatten(), st)
        l2 = insert_waits(L2.flatten(), st)
        rounds.append((sr, l1, l2))
        G += 8
    sr, l1, l2 = rounds[2]
    l1 = l2
    tx = lambda s: [x.text for x in s]
    if RL == "A":
        assert tx(rounds[2][1]) == tx(l2), "loop not steady"
    assert tx(rounds[1][0]) == tx(sr), "special not steady"
    assert tx(rounds[1][2]) == tx(l2)
    sp = {}
    mcount = 0
    for i, x in enumerate(sr):
        if x.kind == "mfma":
            if mcount in (64, 128, 192):
                j = i
                while sr[j - 1].kind == "wait":
                    j -= 1
                sp[mcount] = j
            mcount += 1
    s14, s15, s_b, s_c = sr[:sp[64]], sr[sp[64]:sp[128]], sr[sp[128]:sp[192]], sr[sp[192]:]
    vm = []
    if RL == "A":
        started = False
        last_m0 = None
        offs = [f"s_add_u32 s{r}," for r in (S_KOFF, S_KOFF2, S_VOFF, S_VOFF2)] + [f"s_and_b32 s{r}," for r in (S_KOFF, S_KOFF2, S_VOFF, S_VOFF2)]
        for x in s15:
            if x.kind == "salu" and x.text.startswith("s_add_u32 m0"):
                last_m0 = x
            if x.kind == "dma" and x.tag[0] == "K":
                started = True
            if started:
                if x.kind == "dma":
                    assert x.tag[0] in ("K", "V")
                    vm += [last_m0, nop(0), x]
                elif x.kind == "vmem_st":
                    vm.append(x)
                elif x.kind == "salu" and any(x.text.startswith(p) for p in offs):
                    vm.append(x)
    pro = prologue([uncountedcopy(x) for x in vm])
    pro_r = insert_waits(pro, WaitState())
    loop_ctl = [raw(f"s_add_u32 s{S_CNT}, s{S_CNT}, 1", kind="salu"),
                raw(f"s_cmp_lt_u32 s{S_CNT}, 6", kind="salu"),
                raw(f"s_cbranch_scc1 L_loop{RL}", kind="branch")]
    exit_ctl = [raw(f"s_add_u32 s{S_RHO}, s{S_RHO}, 1", kind="salu")]
    fin_ctl = [raw(f"s_cmp_eq_u32 s{S_RHO}, 3", kind="salu"),
               raw(f"s_cbranch_scc1 L_f15{RL}", kind="branch")]
    fin = build_final(Gf, stf)
    check_hazards(s14 + fin_ctl + fin, "final" + RL)
    check_hazards(pro_r + s_b + exit_ctl + s_c + l1 + loop_ctl + l1 + loop_ctl + s14 + s15 + s_b + exit_ctl + s_c + l1, "main" + RL)
    names = [("l0" + RL, 0), ("l1" + RL, 1), ("s14" + RL, 0), ("s15" + RL, 1), ("s1" + RL, 1), ("f15" + RL, 1)]
    if opt('first', 1):
        check_hazards(pro_r + first_b + exit_ctl + s_c, "first" + RL)
        seq = [label(f"L_pro{RL}")] + pro_r + stamp() + first_b + [raw(f"s_branch L_it0e{RL}", kind="branch")]
    else:
        seq = [label(f"L_pro{RL}")] + pro_r + [raw(f"s_branch L_it0{RL}", kind="branch")]
    seq += [label(f"L_sa{RL}")] + dump2() + stamp() + s14 + fin_ctl + stamp() + s15 + [label(f"L_it0{RL}")] + stamp() + s_b + [label(f"L_it0e{RL}")] + exit_ctl + stamp() + s_c + stamp() + [label(f"L_loop{RL}")] + l1 + loop_ctl
    seq += [raw(f"s_branch L_sa{RL}", kind="branch")]
    seq += [label(f"L_f15{RL}")] + stamp() + fin + [raw("s_branch L_fin", kind="branch")]
    rare = []
    for nm, par in names:
        r = rare_path(par, nm)
        check_hazards(r, "rare")
        rare += r
    return seq, rare


def final_drain():
    o = [wait_lgkm0()]
    rds, sts = [], []
    for k in range(NDIR, 8):
        u = chunk_space(k)
        for io in range(4):
            reg = 16 * u + 4 * io
            rds.append(ds_read("ds_read_b128", "v", reg, 4, V_LIN, u * QUNIT + rdoff(io)))
            sts.append([S(f"s_add_u32 s47, s{S_WQ}, {fchunk(k) + stoff(io)}"),
                        bstore("v", reg, 4, V_OST, S_O, "s47", 0, tag="ST", flags=STNT)])
    n = len(rds)
    for i in range(n + 6):
        if i < n:
            o.append(rds[i])
        if i >= 6:
            o += sts[i - 6]
    r = insert_waits(o, WaitState())
    check_hazards(r, "fin")
    return r


def main():
    global ROLE
    head = prologue_head()
    ROLE = "A"
    sa, ra = build_role()
    ROLE = "B"
    sb, rb = build_role()
    seq = head[:2] + stamp_init() + stamp(0, force=True) + head[2:]
    seq += [raw(f"s_cmp_ge_u32 s{S_W}, 2", kind="salu"), raw("s_cbranch_scc1 L_proB", kind="branch")]
    seq += sa + [label("L_fin")] + stamp_out(2) + [label("L_end"), raw("s_endpgm")] + sb + ra + rb + [raw("s_endpgm")]
    hdr = open(f"cdna_kernels/{NAME}.s.ref").read().split("\n")
    head = [l for l in hdr if l.startswith(";") and "@launch" not in l and "Override" not in l and "grid=ceil" not in l]
    txt = "\n".join(head) + "\n"
    txt += f"; @launch grid=(256,1,1) block=(256,1,1) lds={LDS_BYTES}\n"
    txt += f'.amdgcn_target "amdgcn-amd-amdhsa--gfx950"\n.text\n.globl {NAME}_kernel\n.p2align 8\n.type {NAME}_kernel,@function\n{NAME}_kernel:\n'
    txt += render(seq) + "\n"
    txt += f""".section .rodata,"a"
.p2align 6
.amdhsa_kernel {NAME}_kernel
  .amdhsa_next_free_vgpr 512
  .amdhsa_next_free_sgpr 96
  .amdhsa_accum_offset 256
  .amdhsa_group_segment_fixed_size 0
  .amdhsa_kernarg_size 48
  .amdhsa_user_sgpr_count 2
  .amdhsa_user_sgpr_kernarg_segment_ptr 1
  .amdhsa_system_sgpr_workgroup_id_x 1
.end_amdhsa_kernel
"""
    out = sys.argv[1] if len(sys.argv) > 1 else f"cdna_kernels/{NAME}.s"
    open(out, "w").write(txt)
    print("wrote", out, len(seq), "instructions", len(txt), "bytes")


def uncountedcopy(x):
    y = Ins(x.text, rd=x.rd, wr=x.wr, kind=x.kind, cost=x.cost, tag=x.tag)
    return y


main()
```
